```python
import torch

def _softmax(x, axis=-1):
    return torch.softmax(x, dim=axis)

def _gelu(x):
    return torch.nn.functional.gelu(x, approximate='tanh')

def _silu(x):
    return torch.nn.functional.silu(x)

def _sigmoid(x):
    return torch.sigmoid(x)

def _layernorm(x, axis=-1, eps=1e-05):
    m = x.mean(dim=axis, keepdim=True)
    v = x.var(dim=axis, keepdim=True, unbiased=False)
    return (x - m) / torch.sqrt(v + eps)

def _scatter_add(tgt, idx, src, axis=0):
    return tgt.clone().index_add_(axis, idx, src)

def _segment_sum(src, seg, n):
    out = torch.zeros((n,) + src.shape[1:], dtype=src.dtype)
    return out.index_add_(0, seg, src)

def _pad(x, pw):
    flat = tuple((v for pair in reversed(pw) for v in pair))
    return torch.nn.functional.pad(x, flat)
kernel_name = 'interleave_layers__grouped_kv_mqa__memory_aug_recurrent_mem_tr__prompt'

def setup_inputs():

    _w = lambda a: (lambda t: t.to(torch.bfloat16) if t.is_floating_point() else t)(torch.as_tensor(a))

    def _A_setup():
        B, S, D, H = (1, 2048, 640, 32)
        Dh = D // H
        return {'x': _w((lambda *s: torch.randn(*s, dtype=torch.bfloat16) * 0.05)(B, S, D)), 'wq': _w((lambda *s: torch.randn(*s, dtype=torch.bfloat16) * 0.05)(D, H * Dh)), 'wk': _w((lambda *s: torch.randn(*s, dtype=torch.bfloat16) * 0.05)(D, Dh)), 'wv': _w((lambda *s: torch.randn(*s, dtype=torch.bfloat16) * 0.05)(D, Dh)), 'wo': _w((lambda *s: torch.randn(*s, dtype=torch.bfloat16) * 0.05)(H * Dh, D))}
    _A_in = _A_setup()

    def _B_setup():
        B, S, Dm = (1, 2048, 640)
        H, Dh = (32, 128)
        M, seg = (8, 32)
        seg = min(seg, S)
        S = S // seg * seg
        return {'x': _w((lambda *s: torch.randn(*s, dtype=torch.bfloat16) * 0.05)(B, S, Dm)), 'mem0': _w((lambda *s: torch.randn(*s, dtype=torch.bfloat16) * 0.8)(B, M, Dm)), 'Wq': _w((lambda *s: torch.randn(*s, dtype=torch.bfloat16) * 1.6)(Dm, H, Dh) * Dm ** (-0.5)), 'Wk': _w((lambda *s: torch.randn(*s, dtype=torch.bfloat16) * 1.6)(Dm, H, Dh) * Dm ** (-0.5)), 'Wv': _w((lambda *s: torch.randn(*s, dtype=torch.bfloat16) * 0.8)(Dm, H, Dh) * Dm ** (-0.5)), 'Wo': _w((lambda *s: torch.randn(*s, dtype=torch.bfloat16) * 0.8)(H, Dh, Dm) * (H * Dh) ** (-0.5)), 'seg_len': seg}
    _B_in = _B_setup()
    return {'A_x': _A_in['x'], 'A_wq': _A_in['wq'], 'A_wk': _A_in['wk'], 'A_wv': _A_in['wv'], 'A_wo': _A_in['wo'], 'B_x': _B_in['x'], 'B_mem0': _B_in['mem0'], 'B_Wq': _B_in['Wq'], 'B_Wk': _B_in['Wk'], 'B_Wv': _B_in['Wv'], 'B_Wo': _B_in['Wo'], 'B_seg_len': _B_in['seg_len']}

def reference(A_x, A_wq, A_wk, A_wv, A_wo, B_x, B_mem0, B_Wq, B_Wk, B_Wv, B_Wo, B_seg_len):

    def _A_ref(x, wq, wk, wv, wo):
        B, S, D = x.shape
        H = 32
        Dh = D // H
        q = (lambda x, *d: x.permute(*d))((x @ wq).reshape(B, S, H, Dh), 0, 2, 1, 3)
        k = x @ wk
        v = x @ wv
        scores = torch.einsum('bhqd,bkd->bhqk', q, k) * Dh ** (-0.5)
        p = _softmax(scores, axis=-1)
        o = torch.einsum('bhqk,bkd->bhqd', p, v)
        return (lambda x, *d: x.permute(*d))(o, 0, 2, 1, 3).reshape(B, S, H * Dh) @ wo

    def _B_ref(x, mem0, Wq, Wk, Wv, Wo, seg_len):
        B, S, Dm = x.shape
        H, Dh = (Wq.shape[1], Wq.shape[2])
        M = mem0.shape[1]
        scale = Dh ** (-0.5)
        n_seg = S // seg_len
        L = M + seg_len
        idx = torch.arange(L)
        mask = (idx[:, None] < M) | (idx[:, None] >= idx[None, :])
        mem = mem0
        outs = []
        for s in range(n_seg):
            xs = x[:, s * seg_len:(s + 1) * seg_len, :].clone()
            h = torch.concatenate([mem, xs], axis=1)
            q = torch.einsum('btd,dhe->bhte', h, Wq)
            k = torch.einsum('btd,dhe->bhte', h, Wk)
            v = torch.einsum('btd,dhe->bhte', h, Wv)
            scores = torch.einsum('bhqe,bhke->bhqk', q, k) * scale
            scores = torch.where(mask[None, None], scores, -1000000000.0)
            p = _softmax(scores, axis=-1)
            o = torch.einsum('bhqk,bhke->bhqe', p, v)
            o = torch.einsum('bhte,hed->btd', o, Wo)
            mem = o[:, :M, :].clone()
            outs.append(o[:, M:, :])
        return torch.concatenate(outs, axis=1)
    x = A_x
    x = x + _A_ref(_layernorm(x, axis=-1), A_wq, A_wk, A_wv, A_wo)
    x = x + _B_ref(_layernorm(x, axis=-1), B_mem0, B_Wq, B_Wk, B_Wv, B_Wo, B_seg_len)
    x = x + _A_ref(_layernorm(x, axis=-1), A_wq, A_wk, A_wv, A_wo)
    x = x + _B_ref(_layernorm(x, axis=-1), B_mem0, B_Wq, B_Wk, B_Wv, B_Wo, B_seg_len)
    return x
```

```python
from em import Em, R
from layout import *
import math, struct

def fbits(x): return struct.unpack('<I', struct.pack('<f', x))[0]

L_MEM = 0; L_O = 0; L_KX = 10240; L_QK = 18432; L_SEL = 23040; L_MISC = 24064; L_W = 24576
QS = 288; L_K = L_QK + 8*QS
Q0, Q1, VA = 16, 24, 32
ABUF = [12, 40, 44]
X = [48, 56, 64, 72]
OWN = [[0,1,2],[3,4,5],[6,7],[8,9]]
WS = 's[4:7]'
NSCR = 10

def plan(w):
    own = OWN[w]
    order = own + [c % 10 for c in range(own[-1]+1, own[-1]+1+10-len(own))]
    qk = []
    for j, c in enumerate(order):
        qk += [(m, t, c) for (m, t) in (('q',0),('q',1),('k',0),('k',1))]
        if j < 7: qk += [('v',0,c),('v',1,c)]
    for j in (9, 8, 7): qk += [('v',0,order[j]),('v',1,order[j])]
    o = [('o', t, c) for t in (8,9,0,1,2,3,4,5,6,7) for c in (0,1)]
    qs = [[(0,'S'),(26,'S'),(32,'L'),(59,'S')],
          [(1,'S'),(7,'L'),(35,'S'),(41,'L'),(47,'L'),(53,'L')],
          [(2,'L'),(8,'L'),(13,'L'),(19,'L'),(45,'S'),(51,'L')],
          [(3,'L'),(9,'L'),(15,'L'),(21,'L'),(27,'L'),(52,'S')]]
    os_ = [[(0,'S'),(7,'L')], [(1,'S'),(8,'L')]]
    def mk(sl):
        u = []
        for k, l in enumerate(sl):
            for i, (p, ty) in enumerate(l): u.append((p, ty, k, l[i-1][0] if i else None))
        return u
    qu, ou = mk(qs), mk(os_)
    loc = {}; nl = ns = 0
    for lst, us in ((qk, qu), (o, ou)):
        for (p, ty, sl, ia) in us:
            if ty == 'L': loc[lst[p]] = ('L', nl*2048); nl += 1
            else: loc[lst[p]] = ('S', ns); ns += 1
    assert nl == 17 and ns == 9, (nl, ns)
    res = [f for f in o if f not in loc] + [f for f in qk if f not in loc]
    assert len(res) == 54, len(res)
    for i, f in enumerate(res):
        loc[f] = ('R', 'a', 8*i) if i < 32 else ('R', 'v', 80 + 8*(i-32))
    return order, qk, o, qu, ou, loc

def srd(e, base, koff, nbytes):
    e(f's_load_dwordx2 s[{base}:{base+1}], s[0:1], {koff}')
    e(f's_mov_b32 s{base+2}, {nbytes}')
    e(f's_mov_b32 s{base+3}, 0x20000')

def put_frag(e, loc, f, srcs):
    L = loc[f]
    put_frag.k ^= 1
    tmp = 64 + 8*put_frag.k
    for j, (r1, r0, sel) in enumerate(srcs):
        d = L[2]+j if (L[0] == 'R' and L[1] == 'v') else tmp+j
        e(f'v_perm_b32 v{d}, v{r1}, v{r0}, {sel}')
    if L[0] == 'R' and L[1] == 'a':
        for j in range(8): e(f'v_accvgpr_write_b32 a{L[2]+j}, v{tmp+j}')
    elif L[0] == 'L':
        e(f'ds_write_b128 v5, {R(tmp,4)} offset:{L[1]}')
        e(f'ds_write_b128 v5, {R(tmp+4,4)} offset:{L[1]+1024}')
    elif L[0] == 'S':
        e(f's_add_u32 s19, s18, {L[1]*2048}')
        e(f'buffer_store_dwordx4 {R(tmp,4)}, v0, {WS}, s19 offen')
        e(f'buffer_store_dwordx4 {R(tmp+4,4)}, v0, {WS}, s19 offen offset:1024')
put_frag.k = 0

def krow(j, b): return 32*(j>>2) + 2*((j>>1)&1) + 8*(j&1) + b

def prologue(e, w, loc):
    e('v_and_b32 v0, 63, v0')
    e('v_and_b32 v12, 15, v0')
    e('v_lshrrev_b32 v13, 4, v0')
    e('v_lshlrev_b32 v0, 4, v0')
    e('s_mov_b32 s22, 0x05040100')
    e('s_mov_b32 s23, 0x07060302')
    e(f'v_add_u32 v5, {L_W + w*17*2048}, v0')
    e(f's_mul_i32 s18, s8, {4*NSCR*2048}')
    e(f's_add_u32 s18, s18, {SCR + w*NSCR*2048}')
    e('v_lshrrev_b32 v14, 1, v13')
    e('v_lshlrev_b32 v14, 4, v14')
    e('v_and_b32 v1, 1, v13')
    e('v_lshl_add_u32 v14, v1, 2, v14')
    srd(e, 24, B_WO, 32*128*640*2)
    e('v_mul_u32_u24 v2, 1280, v14')
    e('v_lshl_add_u32 v3, v12, 2, v2')
    e('v_lshl_add_u32 v2, v12, 4, v2')
    e(f'v_add_u32 v2, {256*w}, v2')
    e(f'v_add_u32 v3, {1024+64*w}, v3')
    e('s_mul_i32 s17, s8, 163840')
    for c in range(2):
        for j in range(8):
            for b in range(2):
                e(f's_add_u32 s19, s17, {(64*c+krow(j,b))*1280}')
                e(f'buffer_load_dwordx4 {R(80+c*64+(2*j+b)*4,4)}, v2, s[24:27], s19 offen')
                e(f'buffer_load_dword v{208+c*16+2*j+b}, v3, s[24:27], s19 offen')
    for c in range(2):
        for t in range(8):
            put_frag(e, loc, ('o',t,c), [(80+c*64+(2*j+1)*4+(t>>1), 80+c*64+(2*j)*4+(t>>1), 's23' if t&1 else 's22') for j in range(8)])
        for t in (8,9):
            put_frag(e, loc, ('o',t,c), [(208+c*16+2*j+1, 208+c*16+2*j, 's23' if t&1 else 's22') for j in range(8)])
    srd(e, 24, B_WQ, 640*4096*2); srd(e, 28, B_WK, 640*4096*2); srd(e, 32, B_WV, 640*4096*2)
    e('v_lshlrev_b32 v2, 13, v14')
    e('v_lshl_add_u32 v2, v12, 2, v2')
    e(f'v_add_u32 v2, {64*w}, v2')
    e('s_lshl_b32 s17, s8, 8')
    units = [(m, c) for m in 'qkv' for c in range(10)]
    def issue(u):
        m, c = units[u]; sb = {'q':24,'k':28,'v':32}[m]
        for j in range(8):
            for b in range(2):
                e(f's_add_u32 s19, s17, {(64*c+krow(j,b))*8192}')
                e(f'buffer_load_dword v{16+(u%3)*16+2*j+b}, v2, s[{sb}:{sb+3}], s19 offen')
    for u in range(3): issue(u)
    for u, (m, c) in enumerate(units):
        bb = 16+(u%3)*16
        for t in range(2):
            put_frag(e, loc, (m,t,c), [(bb+2*j+1, bb+2*j, 's23' if t else 's22') for j in range(8)])
        if u+3 < len(units): issue(u+3)
    e('v_lshrrev_b32 v14, 1, v12'); e('v_and_b32 v14, 1, v14')
    e('v_mov_b32 v1, 0x4444'); e('v_mov_b32 v15, 0xeeee')
    e('v_cmp_eq_u32 vcc, 1, v14'); e('v_cndmask_b32 v1, v1, v15, vcc')
    e('v_lshrrev_b32 v15, 2, v12'); e('v_lshlrev_b32 v15, 1, v15'); e('v_and_b32 v16, 1, v12'); e('v_add_u32 v15, v15, v16')
    e('v_mul_u32_u24 v7, 1280, v15'); e('v_lshl_add_u32 v7, v13, 5, v7'); e('v_lshl_add_u32 v7, v14, 4, v7')
    e(f'v_mul_u32_u24 v10, {QS}, v15'); e('v_lshl_add_u32 v10, v13, 4, v10'); e(f'v_add_u32 v10, {L_K}, v10')
    e('v_and_b32 v16, 7, v12')
    e(f'v_mul_u32_u24 v9, {QS}, v16'); e('v_lshl_add_u32 v9, v13, 4, v9'); e(f'v_add_u32 v9, {L_QK}, v9')
    e(f'v_mul_u32_u24 v8, {2*QS}, v13'); e('v_lshl_add_u32 v8, v12, 2, v8'); e(f'v_add_u32 v8, {L_QK+64*w}, v8')
    e('v_lshrrev_b32 v17, 1, v16'); e('v_lshlrev_b32 v17, 2, v17'); e('v_and_b32 v18, 1, v16'); e('v_add_u32 v17, v17, v18')
    e('v_and_b32 v18, 1, v13'); e('v_lshl_add_u32 v17, v18, 1, v17')
    e('v_lshrrev_b32 v18, 1, v13'); e('v_lshl_add_u32 v17, v18, 4, v17')
    e('v_lshlrev_b32 v11, 4, v17'); e(f'v_add_u32 v11, {L_O + (w>>1)*1024 + (w&1)*512}, v11')
    e('s_mul_i32 s19, s8, 10240')
    e('v_mul_u32_u24 v2, 2560, v13'); e('v_add_u32 v2, s19, v2')
    e('v_lshl_add_u32 v3, v12, 2, v2'); e(f'v_add_u32 v3, {1024+64*w}, v3')
    e('v_lshl_add_u32 v2, v12, 4, v2'); e(f'v_add_u32 v2, {256*w}, v2')
    e('v_lshrrev_b32 v16, 3, v12'); e('v_lshl_add_u32 v16, v13, 1, v16')
    e('v_and_b32 v17, 7, v12')
    e(f's_lshl_b32 s19, s8, 7'); e(f's_add_u32 s19, s19, {32*128*w}')
    e('v_mul_u32_u24 v4, 10240, v16'); e('v_lshl_add_u32 v4, v17, 4, v4'); e('v_add_u32 v4, s19, v4')
    e(f'v_mov_b32 v19, {OOB}')
    e('v_lshlrev_b32 v6, 4, v12'); e('v_lshl_add_u32 v6, v13, 3, v6'); e('v_add_u32 v6, s19, v6')
    e('v_cmp_le_u32 vcc, 8, v12'); e('v_cndmask_b32 v6, v6, v19, vcc')
    e('v_cmp_le_u32 vcc, 2, v13'); e('v_cndmask_b32 v6, v6, v19, vcc')
    if w == 0:
        e('v_and_b32 v16, 1, v12'); e('v_mov_b32 v17, 0x3f80'); e('v_mov_b32 v18, 0x3f800000')
        e('v_cmp_eq_u32 vcc, 1, v16'); e('v_cndmask_b32 v17, v17, v18, vcc')
        e('v_lshrrev_b32 v16, 1, v12')
        for i in range(4):
            e(f'v_cmp_eq_u32 vcc, {i}, v16'); e(f'v_cndmask_b32 v{20+i}, 0, v17, vcc')
        e(f'ds_write_b128 v0, v[20:23] offset:{L_SEL}')
    e(f's_mov_b32 s21, {fbits(128**-0.5*math.log2(math.e))}')
    e('s_mov_b32 s20, 400000')
    e(f's_mov_b32 s12, {PART}')
    e(f's_mov_b32 s15, {MEMR}')
    e.wait(vm=0, lgkm=0)

CFG = {}
def load_frag(e, loc, f, slot):
    L = loc[f]; b = X[slot]
    if CFG.get('no'+L[0]): return
    sf = CFG.get('sf', '')
    if L[0] == 'L':
        e(f'ds_read_b128 {R(b,4)}, v5 offset:{L[1]}'); e(f'ds_read_b128 {R(b+4,4)}, v5 offset:{L[1]+1024}')
    else:
        e(f's_add_u32 s19, s18, {L[1]*2048}')
        e(f'buffer_load_dwordx4 {R(b,4)}, v0, {WS}, s19 offen {sf}'); e(f'buffer_load_dwordx4 {R(b+4,4)}, v0, {WS}, s19 offen offset:1024 {sf}')

def bop(loc, f, uses, pos):
    L = loc[f]
    if L[0] == 'R': return R(L[2], 8, L[1])
    for (p, ty, sl, ia) in uses:
        if p == pos: return R(X[sl], 8)
    raise KeyError

def check(e, regs, t0, t1):
    r = list(regs)
    e(f'v_max3_u32 v{t0}, v{r[0]}, v{r[1]}, v{r[2]}')
    r = r[3:]
    while len(r) >= 2:
        e(f'v_max3_u32 v{t0}, v{t0}, v{r[0]}, v{r[1]}'); r = r[2:]
    if r: e(f'v_max_u32 v{t0}, v{t0}, v{r[0]}')
    e(f'v_cmp_eq_u32 vcc, -1, v{t0}')

def spin_flag(e, need_sgpr, t):
    lp = e.newlabel('CF'); dn = e.newlabel('CFD')
    e.label(lp)
    e(f'buffer_load_dwordx2 {R(t,2)}, off, {WS}, s24 sc1')
    e(f'v_min_u32 v{t}, v{t}, v{t+1}')
    e(f'v_readfirstlane_b32 s25, v{t}')
    e(f's_cmp_ge_u32 s25, {need_sgpr}')
    e(f's_cbranch_scc1 {dn}')
    e('s_sleep 2')
    e('s_sub_u32 s20, s20, 1'); e('s_cmp_gt_i32 s20, 0'); e(f's_cbranch_scc1 {lp}')
    e.label(dn)

def kx_dma(e, w, soff):
    for i in range(2):
        f = 2*w+i
        e(f's_mov_b32 m0, {L_KX + f*1024}')
        e(f's_add_u32 s19, {soff}, {f*1024}')
        e(f'buffer_load_dwordx4 v0, {WS}, s19 offen sc1 lds')

def allred(e, op, x, t):
    e(f'v_mov_b32 v{t}, v{x}'); e(f'v_permlane32_swap_b32 v{x}, v{t}'); e(f'{op} v{x}, v{x}, v{t}')
    e(f'v_mov_b32 v{t}, v{x}'); e(f'v_permlane16_swap_b32 v{x}, v{t}'); e(f'{op} v{x}, v{x}, v{t}')

def zero(e, b, n, val=0):
    for k in range(0, n, 2): e(f'v_mov_b64 {R(b+k,2)}, {val}')

NST = 10
def steps(e, w, P, st='', stamp=False, cfg={}):
    order, qk, o, qu, ou, loc = P
    CFG.update(cfg)
    own = OWN[w]; nown = len(own)
    tag = f'w{w}' + ('x' if st else '')
    sm = 'v_smfmac_f32_16x16x64_bf16'; mf = 'v_mfma_f32_16x16x32_bf16'; m16 = 'v_mfma_f32_16x16x16_bf16'
    def T(i):
        if stamp: e.raw(f'    s_memtime s[{40+2*i}:{41+2*i}]')
    e(f's_lshl_b32 s24, s8, 7'); e(f's_add_u32 s26, s24, {F_CH}'); e(f's_add_u32 s24, s24, {F_KV}')
    e('s_mov_b32 s11, 0')
    e('s_lshl_b32 s17, s8, 13'); e(f's_add_u32 s17, s17, {KX}')
    e('s_lshl_b32 s27, s8, 12'); e(f's_add_u32 s27, s27, {KVM + w*1024}')
    srd(e, 28, B_MEM0, 10240)
    if w == 3:
        e('v_mov_b64 v[12:13], 0'); e(f'v_mov_b32 v14, {L_MISC+256}'); e('ds_write_b64 v14, v[12:13]')
    if stamp:
        for i in range(NST): e(f's_mov_b32 s{70+i}, 0')
    e.wait(lgkm=0)
    e.label(f'CL_{tag}')
    e('s_mov_b32 s10, 0')
    if w == 3:
        e('s_add_u32 s22, s11, 1')
        spin_flag(e, 's22', 12)
    e.barrier()
    if stamp:
        e('s_mov_b32 s84, s86'); e('s_mov_b32 s85, s87'); e('s_memrealtime s[86:87]'); e.wait(lgkm=0)
    kx_dma(e, w, 's17')
    for i, c in enumerate(own):
        e(f'buffer_load_dwordx4 {R(ABUF[i],4)}, v7, s[28:31], 0 offen offset:{c*128}')
    for (p, ty, sl, ia) in qu:
        if ia is None: load_frag(e, loc, qk[p], sl)
    zero(e, Q0, 24)
    e.wait(vm=0, lgkm=0)
    e.label(f'CS_{tag}')
    T(0)
    for i, c in enumerate(own):
        e(f'ds_write_b128 v0, {R(ABUF[i],4)} offset:{L_MEM + c*1024}')
    barpos = cfg.get('bar3', 6) if nown == 3 else cfg.get('bar2', 4)
    acc = {('q',0):Q0, ('q',1):Q0+4, ('k',0):Q1, ('k',1):Q1+4, ('v',0):VA, ('v',1):VA+4}
    lastpos = {}
    for i, f in enumerate(qk[:54]): lastpos[order.index(f[2])] = i
    nextA = nown
    def M(i):
        f = qk[i]; j = order.index(f[2])
        e(f'{sm} {R(acc[f[:2]],4)}, {R(ABUF[j%3],4)}, {bop(loc,f,qu,i)}, v1')
        for (p, ty, sl, ia) in qu:
            if ia == i: load_frag(e, loc, qk[p], sl)
    for i in range(54):
        if i == barpos:
            e.wait(lgkm=len(e.lq) - nown if len(e.lq) >= nown and e.lq[0] == set() else 0)
            e('s_barrier')
        if i >= barpos:
            while nextA < 10 and (nextA < 3 or lastpos[nextA-3] < i):
                e(f'ds_read_b128 {R(ABUF[nextA%3],4)}, v0 offset:{L_MEM + order[nextA]*1024}'); nextA += 1
        M(i)
        if i == 51:
            e(f's_add_u32 s19, s17, {VX-KX + w*2048}')
            e(f'buffer_load_dwordx4 {R(X[2],4)}, v0, {WS}, s19 offen sc1')
            e(f'buffer_load_dwordx4 {R(X[2]+4,4)}, v0, {WS}, s19 offen offset:1024 sc1')
    T(1)
    def kxrd(tile, ks, b): e(f'ds_read_b128 {R(b,4)}, v0 offset:{L_KX + (tile*4+ks)*1024}')
    M(54); M(55)
    kxrd(0,0,X[3]); kxrd(1,0,X[3]+4); kxrd(0,1,X[1]); kxrd(1,1,X[1]+4)
    for b in (Q0, Q1):
        for k in (0, 1, 4, 5): e(f'v_add_f32 v{b+k}, v{b+k}, v{b+k+2}')
        for r in range(2): e(f'v_cvt_pk_bf16_f32 v{b+2+r}, v{b+r}, v{b+4+r}')
        if b == Q0: e(f'ds_write2_b32 v8, v{b+2}, v{b+3} offset0:0 offset1:{QS//4}')
        else:
            e(f'ds_write_b32 v8, v{b+2} offset:{8*QS}'); e(f'ds_write_b32 v8, v{b+3} offset:{9*QS}')
    M(56); M(57)
    zero(e, 12, 4, -1)
    e(f's_xor_b32 s13, s12, 0x80000')
    e.barrier()
    T(2)
    def qrd(ks, b): e(f'ds_read_b128 {R(b,4)}, v9 offset:{ks*64}'); e(f'ds_read_b128 {R(b+4,4)}, v10 offset:{ks*64}')
    qrd(0, Q0); qrd(1, Q1)
    e(f'buffer_store_dwordx4 v[12:15], v2, {WS}, s13 offen {st}')
    e(f'buffer_store_dwordx4 v[12:15], v2, {WS}, s13 offen offset:1280 {st}')
    e(f'buffer_store_dword v12, v3, {WS}, s13 offen {st}')
    e(f'buffer_store_dword v12, v3, {WS}, s13 offen offset:1280 {st}')
    M(58); M(59)
    Sm, S0, S1 = 12, 40, 44
    def score(ks, qb, kb):
        z = ks == 0
        e(f'{mf} {R(S1,4)}, {R(kb+4,4)}, {R(qb,4)}, {0 if z else R(S1,4)}')
        e(f'{mf} {R(Sm,4)}, {R(qb+4,4)}, {R(qb,4)}, {0 if z else R(Sm,4)}')
        e(f'{mf} {R(S0,4)}, {R(kb,4)}, {R(qb,4)}, {0 if z else R(S0,4)}')
    kxrd(0,2,X[0]); kxrd(1,2,X[0]+4)
    score(0, Q0, X[3]); qrd(2, Q0); kxrd(0,3,X[3]); kxrd(1,3,X[3]+4)
    score(1, Q1, X[1]); qrd(3, Q1)
    load_frag(e, loc, o[1], 1)
    for k in (0, 1, 4, 5): e(f'v_add_f32 v{VA+k}, v{VA+k}, v{VA+k+2}')
    e(f'v_cvt_pk_bf16_f32 v{VA+2}, v{VA}, v{VA+1}'); e(f'v_cvt_pk_bf16_f32 v{VA+3}, v{VA+4}, v{VA+5}')
    score(2, Q0, X[0])
    load_frag(e, loc, o[0], 0)
    e(f'ds_read_b32 v{VA}, v8 offset:{8*QS}'); e(f'ds_read_b32 v{VA+1}, v8 offset:{9*QS}')
    score(3, Q1, X[3])
    ones = VA+4
    for k in range(4): e(f'v_mov_b32 v{ones+k}, 0x3f803f80')
    Pb = Q0
    e(f'v_mov_b32 v{Pb+5}, 0'); e(f'v_mov_b32 v{Pb+6}, 0')
    if not cfg.get('nofar'):
        e(f'buffer_store_dwordx4 {R(VA,4)}, v0, {WS}, s27 offen sc1')
        if w == 3:
            t = X[3]
            e(f'v_mov_b32 v{t}, s11'); e(f'buffer_store_dword v{t}, off, {WS}, s26 sc1')
            e('s_add_u32 s22, s11, 3'); e(f's_add_u32 s19, s17, {2*32*8192}')
            e('s_cmp_lt_u32 s25, s22'); e(f's_cselect_b32 s19, s17, s19')
            e('s_cmp_gt_u32 s10, 61'); e(f's_cselect_b32 s19, s17, s19')
            e(f'v_lshlrev_b32 v{t+1}, 3, v0'); e(f's_mov_b32 m0, {L_MISC}')
            e(f's_add_u32 s22, s19, {VX-KX}')
            e(f'buffer_load_dword v{t+1}, {WS}, s19 offen sc1 lds')
            e(f'buffer_load_dword v{t+1}, {WS}, s22 offen sc1 lds')
            e(f'v_lshrrev_b32 v{t+1}, 2, v0'); e(f's_mov_b32 m0, {L_MISC+256}')
            e(f'buffer_load_dword v{t+1}, {WS}, s24 offen sc1 lds')
    T(3)
    sc = [S1+i for i in range(4)] + [Sm, Sm+1] + [S0+i for i in range(4)]
    mx, tt = Q1, Q1+1
    e(f'v_max3_f32 v{mx}, v{sc[0]}, v{sc[1]}, v{sc[2]}'); e(f'v_max3_f32 v{mx}, v{mx}, v{sc[3]}, v{sc[4]}')
    e(f'v_max3_f32 v{mx}, v{mx}, v{sc[5]}, v{sc[6]}'); e(f'v_max3_f32 v{mx}, v{mx}, v{sc[7]}, v{sc[8]}')
    e(f'v_max_f32 v{mx}, v{mx}, v{sc[9]}')
    allred(e, 'v_max_f32', mx, tt)
    e(f'v_mul_f32 v{mx}, s21, v{mx}')
    for r in sc: e(f'v_fma_f32 v{r}, v{r}, s21, -v{mx}')
    for r in [S0+i for i in range(8)]: e(f'v_exp_f32 v{r}, v{r}')
    for k in range(4): e(f'v_cvt_pk_bf16_f32 v{Pb+k}, v{S0+2*k}, v{S0+2*k+1}')
    e(f'v_exp_f32 v{Sm}, v{Sm}'); e(f'v_exp_f32 v{Sm+1}, v{Sm+1}')
    Ls = S0
    e(f'{mf} {R(Ls,4)}, {R(ones,4)}, {R(Pb,4)}, 0')
    e(f'v_cvt_pk_bf16_f32 v{Pb+4}, v{Sm}, v{Sm+1}'); e(f'v_cvt_pk_bf16_f32 v{Pb+7}, v{Sm}, v{Sm+1}')
    e(f'{mf} {R(Q1,4)}, {R(X[2],4)}, {R(Pb,4)}, 0')
    e(f'{mf} {R(Q1+4,4)}, {R(X[2]+4,4)}, {R(Pb,4)}, 0')
    e(f'{m16} {R(Ls,4)}, {R(ones,2)}, {R(Pb+4,2)}, {R(Ls,4)}')
    e(f'{m16} {R(Q1,4)}, {R(VA+2,2)}, {R(Pb+4,2)}, {R(Q1,4)}')
    e(f'{m16} {R(Q1+4,4)}, {R(VA+2,2)}, {R(Pb+6,2)}, {R(Q1+4,4)}')
    if w == 3:
        e(f'v_mov_b32 v14, {L_MISC+256}'); e('ds_read_b64 v[14:15], v14')
    e(f'v_rcp_f32 v12, v{Ls}'); e(f'v_rcp_f32 v13, v{Ls}')
    zero(e, X[3], 8)
    for k in range(4): e(f'v_pk_mul_f32 {R(Q1+2*k,2)}, {R(Q1+2*k,2)}, v[12:13]')
    for k in range(4): e(f'v_cvt_pk_bf16_f32 v{Q1+k}, v{Q1+k}, v{Q1+4+k}')
    e(f'ds_write_b128 v11, {R(Q1,4)}')
    zero(e, Q0, 8); zero(e, X[2], 8)
    if w == 3 and not cfg.get('nofar'):
        e('v_min_u32 v14, v14, v15'); e('v_readfirstlane_b32 s22, v14'); e('s_max_u32 s25, s25, s22')
        sk = e.newlabel('CN')
        e('s_add_u32 s22, s11, 2'); e('s_cmp_ge_u32 s25, s22'); e(f's_cbranch_scc1 {sk}')
        e('s_cmp_eq_u32 s10, 63'); e(f's_cbranch_scc1 {sk}')
        sv = e.save(); spin_flag(e, 's22', 14); e.restore(sv)
        e.label(sk)
    e.barrier()
    T(4)
    e(f'ds_read_b128 v[40:43], v0 offset:{L_O}'); e(f'ds_read_b128 v[44:47], v0 offset:{L_O+1024}')
    e('s_cmp_eq_u32 s10, 63'); e(f's_cbranch_scc1 CE_{tag}')
    zero(e, Q1, 16)
    if not cfg.get('samekv'): e(f's_add_u32 s17, s17, {32*8192}')
    kx_dma(e, w, 's17')
    tacc = {8: X[3], 9: X[3]+4, 0: Q0, 1: Q0+4, 2: X[2], 3: X[2]+4, 4: Q1, 5: Q1+4, 6: VA, 7: VA+4}
    pre = {sl: p for (p, ty, sl, ia) in qu if ia is None}
    for i, f in enumerate(o):
        e(f'{sm} {R(tacc[f[1]],4)}, {R(40+4*f[2],4)}, {bop(loc,f,ou,i)}, v1')
        for (p, ty, sl, ia) in ou:
            if ia == i: load_frag(e, loc, o[p], sl)
        if i in (7, 8): load_frag(e, loc, qk[pre[i-7]], i-7)
    a, b = tacc[8], tacc[9]
    for k in (a, a+1, b, b+1): e(f'v_add_f32 v{k}, v{k}, v{k+2}')
    e(f'v_cvt_pk_bf16_f32 v12, v{a}, v{b}'); e(f'v_cvt_pk_bf16_f32 v13, v{a+1}, v{b+1}')
    e(f'buffer_store_dword v12, v3, {WS}, s12 offen {st}'); e(f'buffer_store_dword v13, v3, {WS}, s12 offen offset:1280 {st}')
    for t in range(8): e(f'v_pk_add_f32 {R(tacc[t],2)}, {R(tacc[t],2)}, {R(tacc[t]+2,2)}')
    for r in range(2):
        for k in range(4): e(f'v_cvt_pk_bf16_f32 v{40+4*r+k}, v{tacc[2*k]+r}, v{tacc[2*k+1]+r}')
        e(f'buffer_store_dwordx4 {R(40+4*r,4)}, v2, {WS}, s12 offen offset:{1280*r} {st}')
    T(5)
    load_frag(e, loc, qk[pre[2]], 2); load_frag(e, loc, qk[pre[3]], 3)
    e('s_xor_b32 s16, s15, 0x4000')
    e('s_add_u32 s10, s10, 1'); e('s_add_u32 s11, s11, 1'); e(f's_add_u32 s27, s27, {32*4096}')
    if w < 3:
        sk = f'P1S_{tag}'
        if w == 2:
            e('s_cmp_ge_u32 s8, 16'); e(f's_cbranch_scc1 {sk}')
        sv = e.save()
        e(f'ds_read_b128 v[12:15], v0 offset:{L_SEL}')
        for i, r in enumerate((13, 14, 22)): e(f's_add_u32 s{r}, s12, {(i+1)*8*10240}')
        zero(e, VA+6, 2, -1)
        if cfg.get('d1'): e.nop(cfg['d1'])
        e.wait(lgkm=0)
        lp = f'P1_{tag}'; dn = f'P1D_{tag}'
        e.label(lp)
        for i, r in enumerate((12, 13, 14, 22)): e(f'buffer_load_dwordx4 {R(Q0+4*i,4)}, v4, {WS}, s{r} offen sc1')
        for i in range(4):
            e(f'{mf} {R(VA,4)}, v[12:15], {R(Q0+4*i,4)}, {R(VA,4) if i else 0}')
            b = Q0+4*i
            if i == 0: e(f'v_max3_u32 v{VA+4}, v{b}, v{b+1}, v{b+2}'); e(f'v_max_u32 v{VA+4}, v{VA+4}, v{b+3}')
            else: e(f'v_max3_u32 v{VA+4}, v{VA+4}, v{b}, v{b+1}'); e(f'v_max3_u32 v{VA+4}, v{VA+4}, v{b+2}, v{b+3}')
        e(f'v_cmp_eq_u32 vcc, -1, v{VA+4}')
        e(f's_cbranch_vccz {dn}')
        e('s_sub_u32 s20, s20, 1'); e('s_cmp_gt_i32 s20, 0'); e(f's_cbranch_scc1 {lp}')
        e.n -= 3
        e.label(dn)
        T(6)
        dp = 'row_mask:0xf bank_mask:0xf bound_ctrl:1'
        for k in range(4): e(f'v_add_f32_dpp v{Q0+k}, v{VA+k}, v{VA+k} row_shl:8 {dp}')
        e(f'v_cvt_pk_bf16_f32 v{VA+4}, v{Q0}, v{Q0+1}'); e(f'v_cvt_pk_bf16_f32 v{VA+5}, v{Q0+2}, v{Q0+3}')
        e(f'buffer_store_dwordx2 {R(VA+4,2)}, v6, {WS}, s15 offen {st}')
        e(f'buffer_store_dwordx2 {R(VA+6,2)}, v6, {WS}, s16 offen {st}')
        if w == 2:
            e.label(sk); e.restore(sv)
    else: T(6)
    e('s_barrier')
    T(7)
    zero(e, Q0+2, 22)
    e('s_xor_b32 s12, s12, 0x80000')
    if cfg.get('d2'): e.nop(cfg['d2'])
    e.wait(lgkm=0)
    lp = f'P2_{tag}'; dn = f'P2D_{tag}'
    e.label(lp)
    for i, c in enumerate(own):
        e(f'buffer_load_dwordx4 {R(ABUF[i],4)}, v7, {WS}, s15 offen offset:{c*128} sc1')
    check(e, [ABUF[i]+k for i in range(nown) for k in range(4)], Q0, Q0+1)
    zero(e, Q0, 2)
    e(f's_cbranch_vccz {dn}')
    e('s_sub_u32 s20, s20, 1'); e('s_cmp_gt_i32 s20, 0'); e(f's_cbranch_scc1 {lp}')
    e.label(dn)
    e('s_mov_b32 s15, s16')
    if stamp:
        T(8)
        e.raw('    s_waitcnt lgkmcnt(0)')
        for i in range(8):
            e(f's_sub_u32 s22, s{42+2*i}, s{40+2*i}'); e(f's_add_u32 s{70+i}, s{70+i}, s22')
    assert not e.vq and not e.lq, (e.vq, e.lq)
    e(f's_branch CS_{tag}')
    e.label(f'CE_{tag}')
    e.wait(vm=0, lgkm=0)
    e('s_barrier')
    e('s_add_u32 s11, s11, 1'); e(f's_add_u32 s27, s27, {32*4096}'); e(f's_add_u32 s17, s17, {32*8192}')
    if w == 3:
        e(f'v_mov_b32 v12, s11')
        e(f'buffer_store_dword v12, off, {WS}, s26 sc1')
    e(f's_mov_b32 s15, {MEMR + 0x8000}')
    if stamp:
        e('s_memrealtime s[88:89]'); e.wait(lgkm=0); e('s_mov_b32 s87, s88')
    e.wait(vm=0)
    e('s_cmp_lt_u32 s11, 128'); e(f's_cbranch_scc1 CL_{tag}')
```

```python
import re

REG = re.compile(r'^(-|abs\()?([vas])(\d+|\[(\d+):(\d+)\])\)?$')

def regs_of(tok):
    tok = tok.strip()
    if tok in ('vcc',): return [('s', 'vcc')]
    if tok in ('exec',): return [('s', 'exec')]
    if tok == 'm0': return [('s', 'm0')]
    m = REG.match(tok)
    if not m: return []
    k = m.group(2)
    if m.group(4) is not None:
        return [(k, i) for i in range(int(m.group(4)), int(m.group(5)) + 1)]
    return [(k, int(m.group(3)))]

TRANS = ('v_exp_f32', 'v_log_f32', 'v_rcp_f32', 'v_rsq_f32', 'v_sqrt_f32')

def R(b, n=1, k='v'):
    return f'{k}{b}' if n == 1 else f'{k}[{b}:{b+n-1}]'

class Em:
    def __init__(s):
        s.out = []
        s.n = 0
        s.vq = []
        s.lq = []
        s.smem = set()
        s.wr = {}
        s.strd = {}
        s.crd = {}
        s.uid = 0
        s.mfree = 0
        s.wop = {}
    def raw(s, t): s.out.append(t)
    def c(s, t): s.out.append('    ; ' + t)
    def label(s, name): s.out.append(name + ':')
    def newlabel(s, p='L'):
        s.uid += 1
        return f'{p}_{s.uid}'
    def nop(s, k):
        while k > 0:
            a = min(k, 16)
            s.out.append(f'    s_nop {a-1}')
            s.n += a; k -= a
    def reset(s):
        s.vq = []; s.lq = []; s.smem = set()
    def save(s): return (list(s.vq), list(s.lq), set(s.smem))
    def restore(s, st): s.vq, s.lq, s.smem = list(st[0]), list(st[1]), set(st[2])
    def wait(s, vm=None, lgkm=None):
        p = []
        if vm is not None:
            vm = min(vm, 63)
            p.append(f'vmcnt({vm})')
            if len(s.vq) > vm: s.vq = s.vq[len(s.vq) - vm:] if vm else []
        if lgkm is not None:
            lgkm = min(lgkm, 15)
            p.append(f'lgkmcnt({lgkm})')
            if len(s.lq) > lgkm: s.lq = s.lq[len(s.lq) - lgkm:] if lgkm else []
            if lgkm == 0: s.smem = set()
        s.out.append('    s_waitcnt ' + ' '.join(p))
        s.n += 1
    def _need(s, q, regs):
        idx = -1
        for i, d in enumerate(q):
            if d & regs: idx = i
        return None if idx < 0 else len(q) - 1 - idx
    def classify(s, op, ops, mods):
        rl = [regs_of(o) for o in ops]
        flat = lambda x: [r for l in x for r in l]
        if op.startswith('v_mfma'):
            return 'mfma', rl[0], flat(rl[1:])
        if op.startswith('v_smfmac'):
            return 'mfma', rl[0], flat(rl)
        if op.startswith('buffer_load') or op.startswith('global_load'):
            if 'lds' in mods.split() or 'load_lds' in op:
                return 'vload', [], flat(rl) + [('s', 'm0')]
            return 'vload', rl[0], flat(rl[1:])
        if op.startswith('buffer_store') or op.startswith('global_store'):
            return 'vstore', [], flat(rl)
        if op.startswith('global_atomic') or op.startswith('buffer_atomic'):
            if op.startswith('global') and len(ops) == 4:
                return 'vload', rl[0], flat(rl[1:])
            if op.startswith('buffer') and 'sc0' in mods.split():
                return 'vload', rl[0], flat(rl)
            return 'vstore', [], flat(rl)
        if op.startswith('ds_read') or op.startswith('ds_bpermute') or op.startswith('ds_swizzle'):
            return 'lload', rl[0], flat(rl[1:])
        if op.startswith('ds_write') or op.startswith('ds_add'):
            return 'lstore', [], flat(rl)
        if op.startswith('s_load') or op.startswith('s_memtime') or op.startswith('s_memrealtime'):
            return 'smem', rl[0], flat(rl[1:])
        if op.startswith('v_permlane') or op.startswith('v_swap'):
            return 'valu', flat(rl), flat(rl)
        if op.startswith('v_cmp'):
            return 'valu', rl[0], flat(rl[1:])
        if op.startswith('v_fmac') or op.startswith('v_pk_fmac') or op.startswith('v_dot2c') or op.startswith('v_writelane'):
            return 'valu', rl[0], flat(rl)
        if op.startswith('v_add_co') or op.startswith('v_addc_co') or op.startswith('v_sub_co'):
            return 'valu', rl[0] + rl[1], flat(rl[2:])
        if op.startswith('v_'):
            rd = flat(rl[1:])
            if '_dpp' in op or 'sdwa' in op: rd = rd + rl[0]
            return 'valu', rl[0], rd
        if op.startswith('s_cmp') or op.startswith('s_cbranch') or op.startswith('s_branch') or op in (
                's_barrier', 's_sleep', 's_setprio', 's_endpgm', 's_nop', 'buffer_inv', 'buffer_wbl2', 's_bitcmp1_b32', 's_bitcmp0_b32'):
            return 'salu', [], flat(rl)
        if op.startswith('s_'):
            w = rl[0]
            if 'saveexec' in op: w = w + [('s', 'exec')]
            return 'salu', w, flat(rl[1:])
        raise ValueError('unknown op ' + op)
    def __call__(s, text):
        for line in text.split('\n'):
            line = line.split(';')[0].strip()
            if line: s.ins(line)
    def ins(s, line):
        op, _, rest = line.partition(' ')
        parts = [p.strip() for p in rest.split(',')] if rest.strip() else []
        mods = ''
        if parts:
            last = parts[-1].split(None, 1)
            parts[-1] = last[0]
            mods = last[1] if len(last) > 1 else ''
        clean = []
        for p in parts:
            q = p.split(None, 1)
            clean.append(q[0])
        kind, W, Rd = s.classify(op, clean, mods)
        W = set(W); Rd = set(Rd)
        touch = W | Rd
        vm = s._need(s.vq, touch)
        lg = s._need(s.lq, touch)
        if s.smem & touch: lg = 0
        if lg is not None and s.smem: lg = 0
        if vm is not None or lg is not None: s.wait(vm, lg)
        need = 0
        passes = 8 if '32x32' in op else 4
        isdpp = '_dpp' in op or 'row_' in mods or 'quad_perm' in mods
        now = max(s.n, s.mfree) if kind == 'mfma' else s.n
        def dist(t): return now - t - 1
        for r in Rd:
            w = s.wr.get(r)
            if not w: continue
            k, t, p, full = w
            d = dist(t); req = 0
            if k == 'valu' or k == 'trans':
                if r[0] == 's':
                    if kind == 'valu': req = 4 if op.startswith(('v_readlane', 'v_writelane')) else 2
                    if kind in ('vload', 'vstore'): req = 5
                    if r[1] == 'exec': req = max(req, 4)
                else:
                    if kind == 'mfma': req = 2
                    elif kind == 'valu':
                        if isdpp or op.startswith('v_permlane'): req = 2
                        if op.startswith(('v_readlane', 'v_readfirstlane')): req = max(req, 1)
                        if k == 'trans': req = max(req, 1)
            elif k == 'mfma':
                if kind == 'mfma':
                    cset = set(regs_of(clean[0])) if op.startswith('v_smfmac') else set(regs_of(clean[3]))
                    ab = set(regs_of(clean[1])) | set(regs_of(clean[2]))
                    if op.startswith('v_smfmac'): ab |= set(regs_of(clean[3]))
                    if r in ab: req = 8 if p == 4 else 12
                    elif r in cset:
                        req = 0 if (cset == full and s.wop.get(r) == op) else (6 if p == 4 else 10)
                else:
                    req = 8 if p == 4 else 12
            elif k == 'salu':
                if r == ('s', 'm0') and kind == 'vload': req = 1
            need = max(need, req - d)
        for r in W:
            w = s.wr.get(r)
            if w and w[0] == 'mfma' and kind != 'mfma':
                need = max(need, (8 if w[2] == 4 else 12) - dist(w[1]))
            if w and w[0] == 'mfma' and kind == 'mfma' and r not in Rd:
                need = max(need, (6 if w[2] == 4 else 10) - dist(w[1]))
            if kind == 'valu':
                if r in s.strd: need = max(need, 2 - dist(s.strd[r]))
                if r in s.crd: need = max(need, (3 if s.crd[r][1] == 4 else 7) - dist(s.crd[r][0]))
            elif r in s.strd: need = max(need, 1 - dist(s.strd[r]))
        if need > 0: s.nop(need + now - s.n)
        s.out.append('    ' + line)
        if kind == 'mfma':
            s.n = max(s.n, s.mfree)
            s.mfree = s.n + (2 if '16x16x16' in op else passes)
        t = s.n
        s.n += 1
        if op == 's_nop': s.n += int(clean[0], 0)
        k2 = kind
        if kind == 'valu' and op.startswith(TRANS): k2 = 'trans'
        for r in W:
            s.wr[r] = (k2, t, passes, W); s.wop[r] = op
        if kind == 'mfma' and op.startswith('v_mfma'):
            for r in regs_of(clean[3]): s.crd[r] = (t, passes)
        if kind == 'vstore' and ('x4' in op or 'x3' in op):
            for r in Rd:
                if r[0] != 's': s.strd[r] = t
        if kind == 'vload': s.vq.append(W)
        elif kind == 'vstore': s.vq.append(set())
        elif kind == 'lload': s.lq.append(W)
        elif kind == 'lstore': s.lq.append(set())
        elif kind == 'smem': s.smem |= W
        if len(s.vq) > 63: s.wait(vm=62)
        if len(s.lq) > 15: s.lq = s.lq
    def barrier(s, lds=True):
        if lds and (s.lq or s.smem): s.wait(lgkm=0)
        s('s_barrier')
    def text(s): return '\n'.join(s.out) + '\n'
```

```python
F_KV   = 0x0000
F_CH   = 0x1000
F_XA   = 0x2000
F_AQ   = 0x2100
F_AKV  = 0x2200
F_AT   = 0x2300
F_AO   = 0x2400
F_XB   = 0x2500
F_BA   = 0x2600
F_BO   = 0x2700
FLAG_BYTES = 0x3000
PART  = 0x100000
MEMR  = 0x200000
DUMMY = 0x280000
SCR   = 0x300000
KX    = 0x1000000
SEG   = 20480
VX    = KX + 8192
KVM   = KX + 16384
XNA   = 0x6000000
XNB   = 0x6800000
XR    = 0x7000000
QA    = 0x8000000
KA    = 0x8800000
OA    = 0x9000000
OB    = 0xA000000
PA    = 0xC000000
PB    = 0xD000000
WS_BYTES = 0x10000000
OOB = 0x7f000000
A_X, A_WQ, A_WK, A_WV, A_WO, B_X, B_MEM0, B_WQ, B_WK, B_WV, B_WO, B_SEG, D_OUT, D_DBG, D_WS = [8*i for i in range(15)]
```

```python
from em import Em, R
from layout import *
from chain import srd, fbits, allred, zero, WS
import math
mf = 'v_mfma_f32_16x16x32_bf16'; m16 = 'v_mfma_f32_16x16x16_bf16'

def lanes(e):
    e('v_and_b32 v0, 63, v0'); e('v_and_b32 v1, 15, v0'); e('v_lshrrev_b32 v2, 4, v0'); e('v_lshlrev_b32 v0, 4, v0')
    e('s_mov_b32 s22, 0x05040100'); e('s_mov_b32 s23, 0x07060302'); e('s_mov_b32 s20, 300000')

def flagaddr(e, v, nwords):
    e(f'v_lshrrev_b32 v{v}, 2, v0'); e(f'v_min_u32 v{v}, {4*(nwords-1)}, v{v}')

def wait_flag(e, v, soff, need, t):
    lp = e.newlabel('WF'); dn = e.newlabel('WD')
    e.label(lp)
    e(f'buffer_load_dword v{t}, v{v}, {WS}, {soff} offen sc1')
    e(f'v_cmp_gt_u32 vcc, {need}, v{t}')
    e(f's_cbranch_vccz {dn}')
    e('s_sleep 3')
    e('s_sub_u32 s20, s20, 1'); e('s_cmp_gt_i32 s20, 0'); e(f's_cbranch_scc1 {lp}')
    e.label(dn)

def set_flag(e, soff, val, t):
    sk = e.newlabel('SF')
    e('s_cmp_lg_u32 s9, 0'); e(f's_cbranch_scc1 {sk}')
    sv = e.save()
    e(f'v_mov_b32 v{t}, {val}'); e(f'buffer_store_dword v{t}, off, {WS}, {soff} sc1')
    e.label(sk); e.restore(sv)
    e.vq.append(set())

def load_w(e, nks, rowstride, ksstride, vlo, vhi):
    D = 6
    def issue(ks):
        for j in range(8):
            e(f's_add_u32 s19, s17, {ks*ksstride + j*rowstride}')
            e(f'buffer_load_dword v{64+(ks%D)*8+j}, v{vlo if j<4 else vhi}, s[24:27], s19 offen')
    for ks in range(D): issue(ks)
    for ks in range(nks):
        b = 64+(ks % D)*8
        for t in range(2):
            for jj in range(4): e(f'v_perm_b32 v{56+4*t+jj}, v{b+2*jj+1}, v{b+2*jj}, {"s23" if t else "s22"}')
        for k in range(8): e(f'v_accvgpr_write_b32 a{8*ks+k}, v{56+k}')
        if ks+D < nks: issue(ks+D)

def xn_setup(e):
    e('v_lshrrev_b32 v7, 7, v0'); e('v_lshrrev_b32 v8, 4, v0'); e('v_and_b32 v8, 7, v8'); e('v_xor_b32 v8, v8, v7')
    e('s_lshl_b32 s19, s9, 3'); e('v_add_u32 v7, s19, v7'); e('v_mul_u32_u24 v4, 1280, v7'); e('v_lshl_add_u32 v4, v8, 4, v4')
    e('v_and_b32 v7, 7, v1'); e('v_lshrrev_b32 v8, 3, v1'); e('v_lshlrev_b32 v8, 10, v8'); e('v_lshl_add_u32 v8, v7, 7, v8')
    e('v_xor_b32 v7, v2, v7'); e('v_lshl_add_u32 v5, v7, 4, v8'); e('v_xor_b32 v6, 64, v5')

def xn_dma(e, sbase, sbuf):
    for m in range(10):
        e(f's_add_u32 m0, {sbuf}, {m*4096}'); e(f's_add_u32 s19, {sbase}, {m*128}')
        e(f'buffer_load_dwordx4 v4, {WS}, s19 offen sc1 lds')

def lin_dma(e, sbase, sbuf):
    for m in range(16):
        e(f's_add_u32 m0, {sbuf}, {m*1024}'); e(f's_add_u32 s19, {sbase}, {m*1024}')
        e(f'buffer_load_dwordx4 v0, {WS}, s19 offen sc1 lds')

ACC = 16
def gemm(e, nks, lin, vtype):
    NB = 6
    def rd(i):
        ks, a = divmod(i, 2)
        if lin: e(f'ds_read_b128 {R(32+4*(i%NB),4)}, v5 offset:{i*1024}')
        else: e(f'ds_read_b128 {R(32+4*(i%NB),4)}, v{5+(ks&1)} offset:{(ks>>1)*4096+a*2048}')
    for i in range(NB): rd(i)
    for i in range(2*nks):
        ks, a = divmod(i, 2)
        x = R(32+4*(i % NB), 4)
        for t in range(2):
            w = R(8*ks+4*t, 4, 'a'); d = R(ACC+8*a+4*t, 4)
            A, Bo = (x, w) if vtype else (w, x)
            e(f'{mf} {d}, {A}, {Bo}, {d if ks else 0}')
        if i+NB < 2*nks: rd(i+NB)

def epi_k(e, scale=None):
    for a in range(2):
        if scale:
            for k in range(8): e(f'v_mul_f32 v{ACC+8*a+k}, {scale}, v{ACC+8*a+k}')
        for i in range(4): e(f'v_cvt_pk_bf16_f32 v{32+4*a+i}, v{ACC+8*a+i}, v{ACC+8*a+4+i}')
def epi_v(e):
    for t in range(2):
        for a in range(2):
            for i in range(2): e(f'v_cvt_pk_bf16_f32 v{32+4*t+2*a+i}, v{ACC+8*a+4*t+2*i}, v{ACC+8*a+4*t+2*i+1}')

def gemm_loop(e, name, lin, g0, gstep, body, srcbase, srcstride, fin_off, nwords, flag_off_fn=None):
    bufsz = 65536 if lin else 40960
    wsh = 14 if lin else 10
    flagaddr(e, 3, nwords)
    if lin: e('v_mov_b32 v5, v0')
    else: xn_setup(e)
    e(f's_mov_b32 s10, {g0}') if isinstance(g0, int) else e(f's_mov_b32 s10, {g0}')
    e(f's_lshl_b32 s11, s9, {wsh}'); e('s_mov_b32 s15, 0')
    if lin: e('s_add_u32 s14, s14, s11')
    def issue(gs):
        e(f's_mul_i32 s18, {gs}, {srcstride}'); e(f's_add_u32 s18, s18, {srcbase}'); e('s_add_u32 s18, s18, s14')
        (lin_dma if lin else xn_dma)(e, 's18', 's11')
    def foff(gs):
        if flag_off_fn: flag_off_fn(gs)
        else: e('s_mov_b32 s21, s12')
    e.wait(vm=0, lgkm=0)
    e.label(f'{name}_L')
    e('s_cmp_lg_u32 s15, 0'); e(f's_cbranch_scc1 {name}_H')
    e('s_add_u32 s16, s10, 1'); foff('s10')
    wait_flag(e, 3, 's21', 's16', 9)
    issue('s10')
    e.label(f'{name}_H')
    e(f's_add_u32 s28, s10, {gstep}'); foff('s28')
    e(f'buffer_load_dword v9, v3, {WS}, s21 offen sc1')
    e.wait(vm=0)
    e('s_barrier')
    e('s_add_u32 s16, s28, 1')
    e('v_cmp_gt_u32 vcc, s16, v9')
    e('s_mov_b32 s15, 0')
    e(f's_xor_b32 s11, s11, {bufsz if lin else 65536}')
    e(f's_cbranch_vccnz {name}_C')
    e('s_mov_b32 s15, 1')
    issue('s28')
    e.label(f'{name}_C'); e.reset()
    body()
    e.wait(vm=0, lgkm=0)
    e('s_barrier')
    e('s_add_u32 s16, s10, 1')
    set_flag(e, 's13', 's16', 9)
    e('v_xor_b32 v5, 0x10000, v5')
    if not lin: e('v_xor_b32 v6, 0x10000, v6')
    e('s_mov_b32 s10, s28'); e('s_cmp_lt_u32 s10, 128'); e(f's_cbranch_scc1 {name}_L')
    e.wait(vm=0)
    e('s_endpgm')

def role_kv(e):
    lanes(e)
    e('s_and_b32 s30, s8, 1'); e('s_lshr_b32 s31, s8, 1')
    e('s_lshl_b32 s19, s30, 3'); e('s_add_u32 s34, s0, s19'); e('s_addc_u32 s35, s1, 0')
    e(f's_load_dwordx2 s[24:25], s[34:35], {B_WK}'); e(f's_mov_b32 s26, {640*8192}'); e('s_mov_b32 s27, 0x20000')
    e('v_lshlrev_b32 v4, 16, v2'); e('v_lshl_add_u32 v4, v1, 2, v4')
    e('s_lshl_b32 s17, s31, 8'); e('s_lshl_b32 s19, s9, 6'); e('s_add_u32 s17, s17, s19')
    load_w(e, 20, 8192, 32*8192, 4, 4)
    e(f's_mov_b32 s12, {F_XB}'); e('s_lshl_b32 s13, s31, 7'); e('s_lshl_b32 s19, s30, 2'); e('s_add_u32 s13, s13, s19')
    e('s_mov_b32 s14, 0')
    def body():
        e('s_lshl_b32 s18, s10, 5'); e('s_add_u32 s18, s18, s31'); e('s_lshl_b32 s18, s18, 13')
        e('s_cmp_lg_u32 s30, 0'); e('s_cbranch_scc1 KV_V')
        gemm(e, 20, False, False); epi_k(e)
        e('s_lshl_b32 s19, s9, 10'); e('s_add_u32 s18, s18, s19'); e(f's_add_u32 s18, s18, {KX}'); e('s_add_u32 s19, s18, 4096')
        e(f'buffer_store_dwordx4 v[32:35], v0, {WS}, s18 offen sc1'); e(f'buffer_store_dwordx4 v[36:39], v0, {WS}, s19 offen sc1')
        e('s_branch KV_E')
        e.label('KV_V'); e.reset()
        gemm(e, 20, False, True); epi_v(e)
        e('s_lshl_b32 s19, s9, 11'); e('s_add_u32 s18, s18, s19'); e(f's_add_u32 s18, s18, {VX}')
        e(f'buffer_store_dwordx4 v[32:35], v0, {WS}, s18 offen sc1'); e(f'buffer_store_dwordx4 v[36:39], v0, {WS}, s18 offen offset:1024 sc1')
        e.label('KV_E')
    gemm_loop(e, 'KV', False, 0, 1, body, XNB, 40960, None, 8)

def aqkv_weights(e, akv):
    e(f'v_mov_b32 v9, {OOB}')
    if akv:
        e('s_and_b32 s19, s9, 1'); e('s_lshl_b32 s19, s19, 3'); e('s_add_u32 s34, s0, s19'); e('s_addc_u32 s35, s1, 0')
        e(f's_load_dwordx2 s[24:25], s[34:35], {A_WK}'); e(f's_mov_b32 s26, {640*40}'); e('s_mov_b32 s27, 0x20000')
        rs = 40; e('s_mov_b32 s17, 0')
    else:
        srd(e, 24, A_WQ, 640*1280); rs = 1280
        e('s_lshl_b32 s17, s8, 2'); e('s_add_u32 s17, s17, s9'); e('s_mul_i32 s17, s17, 40')
    e(f'v_mul_u32_u24 v4, {8*rs}, v2'); e('v_lshl_add_u32 v4, v1, 2, v4')
    e('v_cmp_le_u32 vcc, 10, v1'); e('v_cndmask_b32 v4, v4, v9, vcc')
    load_w(e, 20, rs, 32*rs, 4, 4)

def akv_body(e, tag, sc):
    e('s_lshl_b32 s18, s10, 12'); e(f's_add_u32 s18, s18, {KA}')
    e('s_cmp_ge_u32 s9, 2'); e(f's_cbranch_scc1 {tag}_E')
    e('s_cmp_eq_u32 s9, 1'); e(f's_cbranch_scc1 {tag}_V')
    gemm(e, 20, False, False); epi_k(e)
    e(f's_branch {tag}_S')
    e.label(f'{tag}_V'); e.reset()
    gemm(e, 20, False, True); epi_v(e)
    e('v_mov_b32 v40, 0x3f803f80'); e('v_cmp_eq_u32 vcc, 10, v1')
    for k in range(4): e(f'v_cndmask_b32 v{32+k}, v{32+k}, v40, vcc')
    e('s_add_u32 s18, s18, 2048')
    e.label(f'{tag}_S')
    e(f'buffer_store_dwordx4 v[32:35], v0, {WS}, s18 offen {sc}'); e(f'buffer_store_dwordx4 v[36:39], v0, {WS}, s18 offen offset:1024 {sc}')
    e.label(f'{tag}_E')

def role_aq(e):
    lanes(e); aqkv_weights(e, False)
    e(f's_mov_b32 s12, {F_XA}'); e('s_lshl_b32 s13, s8, 2'); e(f's_add_u32 s13, s13, {F_AQ}'); e('s_mov_b32 s14, 0')
    e(f's_mov_b32 s29, {fbits(20**-0.5*math.log2(math.e))}')
    e('s_lshl_b32 s31, s8, 2'); e('s_add_u32 s31, s31, s9')
    def body():
        e('s_lshl_b32 s18, s10, 5'); e('s_add_u32 s18, s18, s31'); e('s_lshl_b32 s18, s18, 11'); e(f's_add_u32 s18, s18, {QA}')
        gemm(e, 20, False, False); epi_k(e, 's29')
        e(f'buffer_store_dwordx4 v[32:35], v0, {WS}, s18 offen sc1'); e(f'buffer_store_dwordx4 v[36:39], v0, {WS}, s18 offen offset:1024 sc1')
    gemm_loop(e, 'AQ', False, 0, 1, body, XNA, 40960, None, 8)

def role_akv(e):
    lanes(e); aqkv_weights(e, True)
    e(f's_mov_b32 s12, {F_XA}'); e(f's_mov_b32 s13, {F_AKV}'); e('s_mov_b32 s14, 0')
    gemm_loop(e, 'AK', False, 64, 1, lambda: akv_body(e, 'AKB', 'sc1'), XNA, 40960, None, 8)

def role_out(e, isA):
    lanes(e)
    if isA:
        srd(e, 24, A_WO, 640*1280); e('s_mov_b32 s30, 0'); e('s_mov_b32 s31, s8')
    else:
        srd(e, 24, B_WO, 4096*1280)
        e('s_mul_i32 s30, s8, 52'); e('s_lshr_b32 s30, s30, 8'); e('s_mul_i32 s19, s30, 5'); e('s_sub_u32 s31, s8, s19')
    e('v_mul_u32_u24 v4, 10240, v2'); e('v_lshl_add_u32 v4, v1, 2, v4'); e('v_mov_b32 v5, v4')
    if isA:
        e(f'v_mov_b32 v9, {OOB}')
        e('v_cmp_le_u32 vcc, 3, v2'); e('v_cndmask_b32 v4, v4, v9, vcc')
        e('v_cmp_le_u32 vcc, 2, v2'); e('v_cndmask_b32 v5, v5, v9, vcc')
    e(f's_mul_i32 s17, s30, {1024*1280}'); e('s_lshl_b32 s19, s31, 8'); e('s_add_u32 s17, s17, s19'); e('s_lshl_b32 s19, s9, 6'); e('s_add_u32 s17, s17, s19')
    load_w(e, 32, 1280, (20 if isA else 32)*1280, 4, 5)
    e('v_mul_u32_u24 v10, 2560, v1'); e('v_lshl_add_u32 v10, v2, 5, v10')
    e('s_lshl_b32 s29, s31, 9'); e('s_lshl_b32 s19, s9, 7'); e('s_add_u32 s29, s29, s19')
    e('s_mul_i32 s19, s30, 81920'); e('s_add_u32 s29, s29, s19'); e(f's_add_u32 s29, s29, {PA if isA else PB}')
    e('s_lshl_b32 s13, s8, 2'); e(f's_add_u32 s13, s13, {F_AO if isA else F_BO}')
    e('s_lshl_b32 s14, s30, 16')
    e('s_lshl_b32 s12, s30, 5'); e(f's_add_u32 s12, s12, {F_BA}')
    def body():
        e(f's_mul_i32 s18, s10, {81920 if isA else 4*81920}'); e('s_add_u32 s18, s18, s29'); e(f's_add_u32 s19, s18, {16*2560}')
        gemm(e, 32, True, False)
        for a in range(2):
            for i in range(4):
                for t in range(2): e(f'v_mov_b32 v{32+8*a+2*i+t}, v{ACC+8*a+4*t+i}')
            for hh in range(2): e(f'buffer_store_dwordx4 {R(32+8*a+4*hh,4)}, v10, {WS}, s{18+a} offen offset:{16*hh} sc1')
    def fo(gs):
        e(f's_and_b32 s21, {gs}, 1'); e('s_lshl_b32 s21, s21, 7'); e(f's_add_u32 s21, s21, {F_AT}')
    gemm_loop(e, 'AO' if isA else 'BO', True, 0, 1, body, OA if isA else OB, 65536 if isA else 262144, None,
              32 if isA else 8, fo if isA else None)

def wave_sum(e, x, t):
    dp = 'row_mask:0xf bank_mask:0xf'
    for sh in (8, 4, 2, 1): e(f'v_add_f32_dpp v{x}, v{x}, v{x} row_ror:{sh} {dp}')
    allred(e, 'v_add_f32', x, t)

def ln_token(e, xb):
    s, t = xb+15, xb+16
    e(f'v_add_f32 v{s}, v{xb}, v{xb+1}')
    for k in range(2, 10): e(f'v_add_f32 v{s}, v{s}, v{xb+k}')
    wave_sum(e, s, t)
    e(f'v_mul_f32 v{s}, {fbits(1/640)}, v{s}')
    for k in range(10): e(f'v_sub_f32 v{xb+k}, v{xb+k}, v{s}')
    e(f'v_mul_f32 v{s}, v{xb}, v{xb}')
    for k in range(1, 10): e(f'v_fmac_f32 v{s}, v{xb+k}, v{xb+k}')
    wave_sum(e, s, t)
    e(f'v_mov_b32 v{t}, {fbits(1e-5)}'); e(f'v_fmac_f32 v{t}, {fbits(1/640)}, v{s}')
    e(f'v_rsq_f32 v{t}, v{t}')
    for k in range(10): e(f'v_mul_f32 v{xb+k}, v{xb+k}, v{t}')
    for k in range(5): e(f'v_cvt_pk_bf16_f32 v{xb+10+k}, v{xb+2*k}, v{xb+2*k+1}')

def unpack(e, d, s):
    e(f'v_and_b32 v{d+1}, 0xffff0000, v{s}'); e(f'v_lshlrev_b32 v{d}, 16, v{s}')

def role_red(e, isA):
    lanes(e); nm = 'RA' if isA else 'RB'; NP = 1 if isA else 4
    flagaddr(e, 3, 5 if isA else 20)
    e('v_lshrrev_b32 v4, 1, v0'); e('v_lshrrev_b32 v5, 2, v0')
    e('s_lshl_b32 s31, s8, 2'); e('s_add_u32 s31, s31, s9')
    srd(e, 24, A_X if isA else D_OUT, 2048*1280)
    e('s_lshl_b32 s13, s8, 2'); e(f's_add_u32 s13, s13, {F_XB if isA else F_XA}')
    e(f's_mov_b32 s12, {F_AO if isA else F_BO}')
    e('s_mov_b32 s10, 0')
    e.wait(lgkm=0)
    e.label(f'{nm}_L')
    e('s_and_b32 s14, s10, 63'); e('s_lshl_b32 s14, s14, 5'); e('s_add_u32 s14, s14, s31'); e('s_mul_i32 s14, s14, 1280')
    e('s_lshr_b32 s15, s10, 6'); e(f's_mul_i32 s15, s15, {2*2048*1280}'); e('s_add_u32 s15, s15, s14'); e(f's_add_u32 s15, s15, {XR + (0 if isA else 2048*1280)}')
    e('s_add_u32 s16, s10, 1')
    wait_flag(e, 3, 's12', 's16', 9)
    e(f's_mul_i32 s18, s10, {NP*81920}'); e('s_mul_i32 s19, s31, 2560'); e('s_add_u32 s18, s18, s19'); e(f's_add_u32 s18, s18, {PA if isA else PB}')
    for p in range(NP):
        for k in range(5): e(f'buffer_load_dwordx2 {R(64+10*p+2*k,2)}, v4, {WS}, s18 offen offset:{512*k} sc1')
        if p+1 < NP: e('s_add_u32 s18, s18, 81920')
    if isA:
        e('s_cmp_ge_u32 s10, 64'); e(f's_cbranch_scc1 {nm}_X')
        sv = e.save()
        for k in range(5): e(f'buffer_load_dword v{16+k}, v5, s[24:27], s14 offen offset:{256*k}')
        e(f's_branch {nm}_Y'); e.label(f'{nm}_X'); e.restore(sv)
    for k in range(5): e(f'buffer_load_dword v{16+k}, v5, {WS}, s15 offen offset:{256*k} sc1')
    if isA: e.label(f'{nm}_Y')
    for p in range(1, NP):
        for k in range(10): e(f'v_add_f32 v{64+k}, v{64+k}, v{64+10*p+k}')
    for k in range(5):
        e(f'v_cvt_pk_bf16_f32 v{24+k}, v{64+2*k}, v{65+2*k}')
        unpack(e, 64+2*k, 24+k); unpack(e, 32+2*k, 16+k)
    for k in range(10): e(f'v_add_f32 v{32+k}, v{32+k}, v{64+k}')
    for k in range(5): e(f'v_cvt_pk_bf16_f32 v{24+k}, v{32+2*k}, v{33+2*k}')
    e(f's_add_u32 s15, s15, {2048*1280}')
    if not isA:
        e('s_cmp_lt_u32 s10, 64'); e(f's_cbranch_scc1 {nm}_X')
        for k in range(5): e(f'buffer_store_dword v{24+k}, v5, s[24:27], s14 offen offset:{256*k}')
        e(f's_branch {nm}_N'); e.label(f'{nm}_X')
    for k in range(5): e(f'buffer_store_dword v{24+k}, v5, {WS}, s15 offen offset:{256*k} sc1')
    for k in range(5): unpack(e, 32+2*k, 24+k)
    ln_token(e, 32)
    e('s_mul_i32 s18, s10, 40960'); e('s_mul_i32 s19, s31, 1280'); e('s_add_u32 s18, s18, s19'); e(f's_add_u32 s18, s18, {XNB if isA else XNA + 64*40960}')
    for k in range(5): e(f'buffer_store_dword v{42+k}, v5, {WS}, s18 offen offset:{256*k} sc1')
    e.wait(vm=0); e('s_barrier')
    e(f's_add_u32 s16, s10, {1 if isA else 65}')
    set_flag(e, 's13', 's16', 9)
    if not isA: e.label(f'{nm}_N')
    e('s_add_u32 s10, s10, 1'); e('s_cmp_lt_u32 s10, 128'); e(f's_cbranch_scc1 {nm}_L')
    e.wait(vm=0); e('s_endpgm')

def need_prog(e, sc, soff, need, t, two=False):
    lp = e.newlabel('NP'); dn = e.newlabel('ND')
    e(f's_cmp_ge_u32 {sc}, {need}'); e(f's_cbranch_scc1 {dn}')
    sv = e.save()
    e.label(lp)
    if two:
        e(f'buffer_load_dwordx2 {R(t,2)}, off, {WS}, {soff} sc1'); e(f'v_min_u32 v{t}, v{t}, v{t+1}')
    else: e(f'buffer_load_dword v{t}, off, {WS}, {soff} sc1')
    e(f'v_readfirstlane_b32 {sc}, v{t}')
    e(f's_cmp_ge_u32 {sc}, {need}'); e(f's_cbranch_scc1 {dn}')
    e('s_sleep 2')
    e('s_sub_u32 s20, s20, 1'); e('s_cmp_gt_i32 s20, 0'); e(f's_cbranch_scc1 {lp}')
    e.label(dn); e.restore(sv)

def role_att(e):
    lanes(e)
    e('s_lshr_b32 s31, s8, 1'); e('s_and_b32 s30, s8, 1')
    e('s_lshr_b32 s12, s31, 2'); e('s_lshl_b32 s12, s12, 2'); e(f's_add_u32 s12, s12, {F_AQ}')
    e('s_lshl_b32 s13, s30, 7'); e('s_lshl_b32 s19, s31, 2'); e('s_add_u32 s13, s13, s19'); e(f's_add_u32 s13, s13, {F_AT}')
    e(f's_mov_b32 s14, {F_AKV}'); e('s_mov_b32 s25, 0'); e('s_mov_b32 s26, 0')
    e('s_lshl_b32 s19, s9, 12'); e('v_add_u32 v4, s19, v0')
    e('v_lshlrev_b32 v5, 12, v2'); e('v_lshl_add_u32 v5, v1, 4, v5')
    e('s_lshl_b32 s19, s9, 11'); e('v_add_u32 v6, s19, v0')
    e('s_lshl_b32 s19, s9, 7'); e('v_lshlrev_b32 v7, 3, v1'); e('v_add_u32 v7, s19, v7')
    e('v_lshlrev_b32 v8, 7, v2'); e('v_lshl_add_u32 v8, v1, 3, v8')
    e(f's_mov_b32 s28, {fbits(2.0**-80)}'); e(f's_mov_b32 s29, {fbits(2.0**80)}')
    zero(e, 24, 8)
    e('s_mov_b32 s11, 0')
    e.label('AT_LAY')
    e('s_add_u32 s16, s11, s9'); e('s_lshl_b32 s18, s16, 12'); e(f's_add_u32 s18, s18, {KA}'); e('s_add_u32 s16, s16, 1')
    for i in range(16):
        need_prog(e, 's25', 's14', 's16', 9)
        for k in range(4): e(f'buffer_load_dwordx4 {R(16*i+4*k,4,"a")}, v0, {WS}, s18 offen offset:{1024*k} sc1')
        e('s_add_u32 s16, s16, 4'); e(f's_add_u32 s18, s18, {4*4096}')
        if i == 7: e.wait(vm=0)
    e('s_add_u32 s10, s11, s30')
    e.label('AT_U')
    e('s_add_u32 s16, s10, 1')
    need_prog(e, 's26', 's12', 's16', 9)
    e('s_lshl_b32 s18, s10, 5'); e('s_add_u32 s18, s18, s31'); e('s_lshl_b32 s18, s18, 11'); e(f's_add_u32 s19, s18, {QA}')
    e(f'buffer_load_dwordx4 v[16:19], v0, {WS}, s19 offen sc1'); e(f'buffer_load_dwordx4 v[20:23], v0, {WS}, s19 offen offset:1024 sc1')
    e('s_mov_b32 s15, 0')
    e.wait(vm=0)
    e.label('AT_M')
    def sco(i, kt, a, c=None):
        return f'{mf} {R(32+16*(i&1)+8*a+4*kt,4)}, {R(16*i+4*kt,4,"a")}, {R(16+4*a,4)}, {c if c is not None else R(24+4*a,4)}'
    def pv(i, a, t):
        d = R(72+8*a+4*t, 4)
        return f'{mf} {d}, {R(16*i+8+4*t,4,"a")}, {R(64+4*a,4)}, {d if i else 0}'
    for a in range(2):
        for kt in range(2): e(sco(0, kt, a))
    for i in range(16):
        b = 32+16*(i & 1)
        ms = {}
        if i: ms[1] = pv(i-1, 1, 0); ms[3] = pv(i-1, 1, 1)
        if i < 15:
            ms[5] = sco(i+1, 0, 0); ms[7] = sco(i+1, 1, 0); ms[18] = sco(i+1, 0, 1); ms[20] = sco(i+1, 1, 1)
        ms[14] = pv(i, 0, 0); ms[16] = pv(i, 0, 1)
        V = []
        for a in range(2):
            V += [f'v_exp_f32 v{b+8*a+k}, v{b+8*a+k}' for k in range(8)]
            V += [f'v_cvt_pk_bf16_f32 v{64+4*a+k}, v{b+8*a+2*k}, v{b+8*a+2*k+1}' for k in range(4)]
        for k, x in enumerate(V):
            if k in ms: e(ms[k])
            e(x)
    e(pv(15, 1, 0)); e(pv(15, 1, 1))
    for k in range(4): e(f'ds_write_b128 v4, {R(72+4*k,4)} offset:{1024*k}')
    e.barrier()
    e('ds_read_b32 v32, v5 offset:520'); e('ds_read_b32 v33, v5 offset:2568')
    for ww in range(4):
        for t in range(2): e(f'ds_read_b128 {R(40+8*ww+4*t,4)}, v6 offset:{4096*ww+1024*t}')
    allred(e, 'v_add_f32', 32, 34); allred(e, 'v_add_f32', 33, 34)
    e('v_cmp_lt_f32 s[32:33], s28, v32'); e('v_cmp_lt_f32 s[34:35], s28, v33')
    e('v_cmp_gt_f32 s[36:37], s29, v32'); e('v_cmp_gt_f32 s[38:39], s29, v33')
    e('s_nop 1')
    e('s_and_b64 s[32:33], s[32:33], s[34:35]'); e('s_and_b64 s[36:37], s[36:37], s[38:39]'); e('s_and_b64 s[32:33], s[32:33], s[36:37]')
    e('s_cmp_eq_u64 s[32:33], -1'); e('s_cbranch_scc1 AT_OK')
    e('s_cmp_lg_u32 s15, 0'); e('s_cbranch_scc1 AT_OK')
    sv = e.save()
    e.wait(lgkm=0)
    e('s_mov_b32 s15, 1')
    e('v_mov_b32 v10, 0xff800000'); e('v_mov_b32 v11, 0xff800000')
    for i in range(16):
        for a in range(2):
            for kt in range(2): e(sco(i, kt, a, 0))
        b = 32+16*(i & 1)
        for a in range(2):
            for k in range(4): e(f'v_max3_f32 v{10+a}, v{10+a}, v{b+8*a+2*k}, v{b+8*a+2*k+1}')
    allred(e, 'v_max_f32', 10, 12); allred(e, 'v_max_f32', 11, 12)
    e('ds_write_b64 v7, v[10:11] offset:16384')
    e.barrier()
    e('ds_read_b64 v[10:11], v8 offset:16384')
    allred(e, 'v_max_f32', 10, 12); allred(e, 'v_max_f32', 11, 12)
    for a in range(2):
        for k in range(4): e(f'v_sub_f32 v{24+4*a+k}, 0, v{10+a}')
    e('s_nop 1'); e('s_branch AT_M')
    e.label('AT_OK'); e.restore(sv)
    zero(e, 24, 8)
    e('s_cmp_ge_u32 s9, 2'); e('s_cbranch_scc1 AT_F')
    e('s_cmp_eq_u32 s9, 1'); e('s_cselect_b64 vcc, -1, 0'); e('v_cndmask_b32 v32, v32, v33, vcc')
    e('v_rcp_f32 v32, v32')
    for ww in range(1, 4):
        for k in range(8): e(f'v_add_f32 v{40+k}, v{40+k}, v{40+8*ww+k}')
    for k in range(8): e(f'v_mul_f32 v{40+k}, v{40+k}, v32')
    for k in range(4): e(f'v_cvt_pk_bf16_f32 v{36+k}, v{40+k}, v{44+k}')
    e('s_lshl_b32 s19, s9, 10'); e('s_add_u32 s18, s18, s19'); e(f's_add_u32 s18, s18, {OA}')
    e(f'buffer_store_dwordx4 v[36:39], v0, {WS}, s18 offen sc1')
    e.label('AT_F')
    e.wait(vm=0, lgkm=0); e('s_barrier')
    set_flag(e, 's13', 's16', 9)
    e('s_add_u32 s10, s10, 2'); e('s_sub_u32 s19, s10, s11'); e('s_cmp_lt_u32 s19, 64'); e('s_cbranch_scc1 AT_U')
    e('s_add_u32 s11, s11, 64'); e('s_cmp_lt_u32 s11, 128'); e('s_cbranch_scc1 AT_LAY')
    e.wait(vm=0); e('s_endpgm')

def role_batt(e):
    LQ, LM = 131072, 139264
    lanes(e)
    srd(e, 24, B_WQ, 640*8192)
    e('v_lshlrev_b32 v4, 16, v2'); e('v_lshl_add_u32 v4, v1, 2, v4')
    e('s_lshl_b32 s17, s8, 8'); e('s_lshl_b32 s19, s9, 6'); e('s_add_u32 s17, s17, s19')
    load_w(e, 20, 8192, 32*8192, 4, 4)
    xn_setup(e)
    e('s_lshl_b32 s12, s8, 7'); e(f's_add_u32 s14, s12, {F_CH}'); e(f's_add_u32 s12, s12, {F_KV}')
    e('s_lshl_b32 s13, s8, 2'); e(f's_add_u32 s13, s13, {F_BA}')
    e('s_mov_b32 s25, 0'); e('s_mov_b32 s26, 0')
    e('s_lshr_b32 s30, s9, 1'); e('s_and_b32 s31, s9, 1')
    e('s_lshl_b32 s19, s9, 10'); e(f's_add_u32 s19, s19, {LQ}'); e('v_add_u32 v7, s19, v0')
    e('s_lshl_b32 s19, s30, 12'); e(f's_add_u32 s19, s19, {LQ}'); e('v_add_u32 v8, s19, v0')
    e('v_lshrrev_b32 v10, 2, v1'); e('v_lshlrev_b32 v10, 8, v10'); e('v_lshl_add_u32 v10, v2, 6, v10')
    e('v_and_b32 v11, 1, v1'); e('v_lshl_add_u32 v10, v11, 2, v10'); e(f'v_add_u32 v10, {LM}, v10')
    e('s_lshl_b32 s19, s31, 11'); e(f's_add_u32 s19, s19, {LM+8}'); e('v_add_u32 v11, s19, v0')
    e('v_mov_b32 v12, v0')
    e('s_lshl_b32 s19, s31, 12'); e('v_add_u32 v13, s19, v0')
    e('s_lshl_b32 s19, s30, 4'); e('v_add_u32 v14, s19, v1'); e('v_lshlrev_b32 v15, 2, v2'); e('v_sub_u32 v14, v14, v15')
    for k in range(8): e(f'v_cmp_gt_i32 s[{40+2*k}:{41+2*k}], {16*(k>>2)+(k&3)}, v14')
    e(f's_mov_b32 s21, {fbits(128**-0.5*math.log2(math.e))}')
    e('s_lshl_b32 s11, s9, 10')
    def loads(gs):
        e(f's_add_u32 s16, {gs}, 1')
        need_prog(e, 's25', 's12', 's16', 14, True)
        e(f's_mul_i32 s18, {gs}, 40960'); e(f's_add_u32 s18, s18, {XNB}')
        xn_dma(e, 's18', 's11')
        e(f's_lshl_b32 s18, {gs}, 5'); e('s_add_u32 s18, s18, s8'); e('s_lshl_b32 s18, s18, 13'); e('s_lshl_b32 s19, s9, 10'); e('s_add_u32 s18, s18, s19')
        for base, lo in ((KX, 40960), (KX+4096, 45056), (VX, 49152), (VX+4096, 53248)):
            e(f's_add_u32 m0, s11, {lo}'); e(f's_add_u32 s19, s18, {base}')
            e(f'buffer_load_dwordx4 v0, {WS}, s19 offen sc1 lds')
        e('s_xor_b32 s11, s11, 0x10000')
    e('s_mov_b32 s10, 0')
    e.label('BA_LAY')
    loads('s10')
    e.wait(vm=0)
    e.label('BA_L')
    e.wait(lgkm=0); e('s_barrier')
    e('s_add_u32 s28, s10, 1'); e('s_and_b32 s29, s28, 63')
    e('s_cmp_eq_u32 s29, 0'); e('s_cbranch_scc1 BA_Q')
    loads('s28')
    e.label('BA_Q'); e.reset()
    gemm(e, 20, False, False); epi_k(e)
    e('ds_write_b128 v7, v[32:35]'); e('ds_write_b128 v7, v[36:39] offset:4096')
    e.wait(vm=0, lgkm=0); e('s_barrier')
    set_flag(e, 's13', 's10', 9)
    for ks in range(4):
        e(f'ds_read_b128 {R(64+4*ks,4)}, v8 offset:{1024*ks}')
        for b in range(2): e(f'ds_read_b128 {R(80+16*b+4*ks,4)}, v12 offset:{40960+(4*b+ks)*1024}')
    S = 16
    for ks in range(4):
        for b in range(2): e(f'{mf} {R(S+4*b,4)}, {R(80+16*b+4*ks,4)}, {R(64+4*ks,4)}, {R(S+4*b,4) if ks else 0}')
    for k in range(4): e(f'ds_read_b128 {R(80+4*k,4)}, v13 offset:{49152+1024*k}')
    need_prog(e, 's26', 's14', 's28', 14)
    e('s_lshl_b32 s18, s10, 5'); e('s_add_u32 s18, s18, s8'); e('s_lshl_b32 s19, s18, 12'); e('s_lshl_b32 s16, s9, 10'); e('s_add_u32 s19, s19, s16'); e(f's_add_u32 s19, s19, {KVM}')
    e(f's_add_u32 m0, s16, {LM}')
    e(f'buffer_load_dwordx4 v0, {WS}, s19 offen sc1 lds')
    e('v_mov_b32 v15, 0xff800000')
    for k in range(8): e(f'v_cndmask_b32 v{S+k}, v{S+k}, v15, s[{40+2*k}:{41+2*k}]')
    for k in range(4): e(f'v_mov_b32 v{28+k}, 0x3f803f80')
    e.wait(vm=0, lgkm=0); e('s_barrier')
    for ks in range(4):
        e(f'v_add_u32 v14, {1024*ks}, v10')
        e(f'ds_read2_b32 {R(96+4*ks,2)}, v14 offset0:0 offset1:4'); e(f'ds_read2_b32 {R(98+4*ks,2)}, v14 offset0:8 offset1:12')
    e('ds_read_b64 v[112:113], v11'); e('ds_read_b64 v[114:115], v11 offset:1024')
    Sm = 24
    for ks in range(4): e(f'{mf} {R(Sm,4)}, {R(96+4*ks,4)}, {R(64+4*ks,4)}, {R(Sm,4) if ks else 0}')
    sc = [S+k for k in range(10)]
    e(f'v_max3_f32 v14, v{sc[0]}, v{sc[1]}, v{sc[2]}')
    for k in (3, 5, 7): e(f'v_max3_f32 v14, v14, v{sc[k]}, v{sc[k+1]}')
    e(f'v_max_f32 v14, v14, v{sc[9]}')
    allred(e, 'v_max_f32', 14, 15)
    e('v_mul_f32 v14, s21, v14')
    for r in sc: e(f'v_fma_f32 v{r}, v{r}, s21, -v14')
    for r in sc: e(f'v_exp_f32 v{r}, v{r}')
    P = 32
    for k in range(5): e(f'v_cvt_pk_bf16_f32 v{P+k}, v{S+2*k}, v{S+2*k+1}')
    e(f'v_mov_b32 v{P+5}, 0'); e(f'v_mov_b32 v{P+6}, 0'); e(f'v_mov_b32 v{P+7}, v{P+4}')
    e(f'{mf} v[16:19], v[28:31], {R(P,4)}, 0')
    for k in range(4): e(f'{mf} {R(40+4*k,4)}, {R(80+4*k,4)}, {R(P,4)}, 0')
    e(f'{m16} v[16:19], v[28:29], {R(P+4,2)}, v[16:19]')
    for k in range(4):
        e(f'{m16} {R(40+4*k,4)}, {R(112+2*(k>>1),2)}, {R(P+4+2*(k&1),2)}, {R(40+4*k,4)}')
    e('v_rcp_f32 v14, v16')
    e('s_lshl_b32 s18, s18, 13'); e('s_lshl_b32 s19, s31, 12'); e('s_add_u32 s18, s18, s19'); e('s_lshl_b32 s19, s30, 10'); e('s_add_u32 s18, s18, s19'); e(f's_add_u32 s18, s18, {OB}')
    for sl in range(2):
        for k in range(8): e(f'v_mul_f32 v{40+8*sl+k}, v{40+8*sl+k}, v14')
        for k in range(4): e(f'v_cvt_pk_bf16_f32 v{56+4*sl+k}, v{40+8*sl+k}, v{44+8*sl+k}')
        e(f'buffer_store_dwordx4 {R(56+4*sl,4)}, v0, {WS}, s18 offen offset:{2048*sl} sc1')
    for r in (5, 6, 12, 13): e(f'v_xor_b32 v{r}, 0x10000, v{r}')
    e('s_mov_b32 s10, s28')
    e('s_cmp_lg_u32 s29, 0'); e('s_cbranch_scc1 BA_L')
    e.wait(vm=0, lgkm=0); e('s_barrier')
    set_flag(e, 's13', 's10', 9)
    e('s_cmp_lt_u32 s10, 128'); e('s_cbranch_scc1 BA_LAY')
    e.wait(vm=0); e('s_endpgm')

def kernel0(e):
    e('s_cmp_ge_u32 s2, 64'); e('s_cbranch_scc1 K0_END')
    e(f's_load_dwordx2 s[4:5], s[0:1], {D_WS}'); e(f's_mov_b32 s6, {WS_BYTES}'); e('s_mov_b32 s7, 0x20000')
    e('v_lshrrev_b32 v1, 6, v0'); e('v_readfirstlane_b32 s9, v1')
    e('v_lshlrev_b32 v10, 4, v0')
    lanes(e)
    srd(e, 28, A_X, 2048*1280)
    e('v_lshrrev_b32 v11, 2, v0')
    e('s_lshl_b32 s14, s2, 5'); e('s_lshl_b32 s19, s9, 3'); e('s_add_u32 s14, s14, s19'); e('s_mul_i32 s14, s14, 1280')
    for tk in range(8):
        e(f's_add_u32 s19, s14, {tk*1280}')
        for k in range(5): e(f'buffer_load_dword v{128+5*tk+k}, v11, s[28:31], s19 offen offset:{256*k}')
    zero(e, 12, 4, -1)
    e('s_and_b32 s18, s2, 31'); e('s_mul_i32 s18, s18, 10240'); e('s_lshr_b32 s19, s2, 5'); e('s_lshl_b32 s19, s19, 19'); e('s_add_u32 s18, s18, s19'); e(f's_add_u32 s18, s18, {PART}')
    for k in (0, 4096, 6144):
        e(f's_add_u32 s19, s18, {k}'); e(f'buffer_store_dwordx4 v[12:15], v10, {WS}, s19 offen')
    e('s_lshl_b32 s19, s2, 10'); e(f's_add_u32 s19, s19, {MEMR}'); e(f'buffer_store_dwordx4 v[12:15], v0, {WS}, s19 offen')
    e('s_cmp_ge_u32 s2, 3'); e('s_cbranch_scc1 K0_NF')
    sv = e.save()
    e('s_lshl_b32 s19, s2, 12'); e('v_add_u32 v16, s19, v10'); e('v_and_b32 v16, 0xfdff, v16'); e('v_lshrrev_b32 v16, 8, v16')
    e(f'v_cmp_eq_u32 vcc, {F_XA>>8}, v16'); e('v_cndmask_b32 v16, 0, 64, vcc')
    for k in range(1, 4): e(f'v_mov_b32 v{16+k}, v16')
    e(f'buffer_store_dwordx4 v[16:19], v10, {WS}, s19 offen')
    e.wait(vm=0)
    e.label('K0_NF'); e.restore(sv)
    aqkv_weights(e, True)
    xn_setup(e)
    e(f's_add_u32 s14, s14, {XNA}')
    e('v_lshrrev_b32 v12, 9, v0'); e('v_lshlrev_b32 v12, 12, v12'); e('s_lshl_b32 s19, s9, 10'); e('v_add_u32 v12, s19, v12')
    e('v_and_b32 v13, 12, v11'); e('v_add_u32 v12, v12, v13'); e('v_and_b32 v13, 0x70, v11')
    for tk in range(8):
        for k in range(5): unpack(e, 32+2*k, 128+5*tk+k)
        ln_token(e, 32)
        e(f's_add_u32 s19, s14, {tk*1280}')
        e(f'v_xor_b32 v14, {tk*16}, v13'); e('v_add_u32 v14, v14, v12')
        for k in range(5):
            e(f'buffer_store_dword v{42+k}, v11, {WS}, s19 offen offset:{256*k}')
            e(f'ds_write_b32 v14, v{42+k} offset:{8192*k + tk*128}')
    e.barrier()
    e('s_mov_b32 s10, s2')
    akv_body(e, 'K0B', '')
    e.wait(vm=0)
    e.label('K0_END')
    e('s_endpgm')
```

```python
import sys, json, re
from em import Em
from layout import *
import chain, workers as W
cfg = json.loads(sys.argv[2]) if len(sys.argv) > 2 else {}
NAME = 'interleave_layers__grouped_kv_mqa__memory_aug_recurrent_mem_tr__prompt_kernel'
e = Em()
e.raw('.text\n.p2align 8\nprep_kernel:')
W.kernel0(e)
e.raw(f'.p2align 8\n{NAME}:')
e.reset()
e('s_cmp_ge_u32 s2, 256'); e('s_cbranch_scc1 L_end')
e(f's_load_dwordx2 s[4:5], s[0:1], {D_WS}'); e(f's_load_dwordx2 s[36:37], s[0:1], {D_DBG}')
e(f's_mov_b32 s6, {WS_BYTES}'); e('s_mov_b32 s7, 0x20000')
e('s_getreg_b32 s38, hwreg(HW_REG_XCC_ID)'); e('s_and_b32 s38, s38, 15')
if cfg.get('fakexcc'): e(f's_cmp_lt_u32 s2, {cfg["fakexcc"]}'); e('s_cselect_b32 s38, s38, 9')
e('v_lshrrev_b32 v1, 6, v0'); e('v_readfirstlane_b32 s9, v1')
e.wait(lgkm=0)
e('s_cmp_lg_u32 s9, 0'); e('s_cbranch_scc1 L_el')
e('v_mov_b32 v3, 1'); e('v_mov_b32 v4, 0'); e('v_mov_b32 v5, 64')
e('s_mov_b64 exec, 1')
e('s_cmp_lg_u32 s38, 0'); e('s_cbranch_scc1 L_tk')
e('global_atomic_add v5, v4, v3, s[36:37] sc0')
e('v_readfirstlane_b32 s8, v5'); e('s_cmp_lt_u32 s8, 32'); e('s_cbranch_scc1 L_pub')
e.label('L_tk')
e('global_atomic_add v5, v4, v3, s[36:37] offset:64 sc0')
e('v_add_u32 v5, 32, v5')
e.label('L_pub')
e('ds_write_b32 v4, v5'); e.wait(lgkm=0)
e('s_mov_b64 exec, -1')
e.label('L_el')
e('s_barrier'); e('v_mov_b32 v4, 0'); e('ds_read_b32 v5, v4'); e('v_readfirstlane_b32 s8, v5'); e('s_barrier')
roles = [('CH', 32), ('AT', 64), ('AQ', 8), ('KV', 64), ('AO', 5), ('RA', 8), ('BA', 32), ('BO', 20), ('RB', 8), ('AK', 1)]
tot = sum(n for _, n in roles)
e('s_cmp_lt_u32 s8, 256'); e('s_cbranch_scc1 L_r0'); e('s_sub_u32 s8, 287, s8'); e.label('L_r0')
def far(lbl):
    e.raw(f'    s_getpc_b64 s[34:35]\n    s_add_u32 s34, s34, {lbl}-.\n    s_addc_u32 s35, s35, 0\n    s_setpc_b64 s[34:35]')
for nm, n in roles:
    e(f's_cmp_ge_u32 s8, {n}'); e(f's_cbranch_scc1 N_{nm}')
    far(f'R_{nm}')
    e.label(f'N_{nm}')
    e(f's_sub_u32 s8, s8, {n}')
e.label('L_end')
e('s_endpgm')
for nm, f in (('AT', W.role_att), ('AQ', W.role_aq), ('KV', W.role_kv), ('AO', lambda e: W.role_out(e, True)), ('RA', lambda e: W.role_red(e, True)),
              ('BA', W.role_batt), ('BO', lambda e: W.role_out(e, False)), ('RB', lambda e: W.role_red(e, False)), ('AK', W.role_akv)):
    e.label(f'R_{nm}'); e.reset(); f(e)
e.label('R_CH')
stamp = cfg.get('stamp', 0)
if stamp: e('s_memrealtime s[80:81]'); e('s_mov_b32 s86, 0'); e('s_mov_b32 s87, 0'); e.wait(lgkm=0)
for w in range(1, 4):
    e(f's_cmp_lg_u32 s9, {w}'); e(f's_cbranch_scc1 L_nw{w}'); far(f'L_w{w}'); e.label(f'L_nw{w}')
for w in range(4):
    e.label(f'L_w{w}'); e.reset()
    P = chain.plan(w)
    chain.prologue(e, w, P[5])
    lp = f'L_md{w}'
    e('v_mov_b32 v12, 0')
    e.label(lp)
    e('global_load_dword v13, v12, s[36:37] sc1'); e('global_load_dword v14, v12, s[36:37] offset:64 sc1')
    e('v_readfirstlane_b32 s22, v13'); e('v_readfirstlane_b32 s23, v14')
    e('s_cmp_gt_u32 s23, 224'); e(f's_cbranch_scc1 L_sl{w}')
    e('s_cmp_ge_u32 s22, 32'); e(f's_cbranch_scc1 L_fa{w}')
    e('s_sleep 2'); e('s_sub_u32 s20, s20, 1'); e('s_cmp_gt_i32 s20, 0'); e(f's_cbranch_scc1 {lp}')
    e.label(f'L_sl{w}')
    chain.steps(e, w, P, st='sc1', cfg=cfg); e('s_endpgm')
    e.raw('.p2align 6')
    e.label(f'L_fa{w}'); e.reset()
    if stamp: e('s_memrealtime s[82:83]'); e.wait(lgkm=0)
    chain.steps(e, w, P, cfg=cfg, stamp=stamp)
    if stamp:
        for i, r in enumerate((82, 84, 85, 86, 87)): e(f's_sub_u32 s{r}, s{r}, s80'); e(f'v_mov_b32 v{16+i}, s{r}')
        e('v_mov_b32 v21, s20')
        for i in range(8): e(f'v_mov_b32 v{22+i}, s{70+i}')
        e(f's_lshl_b32 s22, s8, 8'); e(f's_add_u32 s22, s22, {DUMMY+0x10000+64*w}')
        for i in range(4): e(f'buffer_store_dwordx4 v[{16+4*i}:{19+4*i}], off, s[4:7], s22 offset:{16*i}')
        e.wait(vm=0)
    e('s_endpgm')
body = e.text()
cnt = {}
for l in body.split('\n'):
    m = re.match(r'    ([a-z_0-9]+) ', l)
    if m: cnt[m.group(1)] = cnt.get(m.group(1), 0) + 1
al = {}
for i, (op, c) in enumerate(sorted(cnt.items(), key=lambda x: -x[1]*len(x[0]))[:26]): al[op] = 'Z' + chr(97+i)
out = []
for l in body.split('\n'):
    m = re.match(r'    ([a-z_0-9]+) (.*)', l)
    if m and m.group(1) in al and not cfg.get('nocomp'): out.append(al[m.group(1)] + ' ' + m.group(2).replace(', ', ','))
    else: out.append(l.strip() if l.startswith('    ') else l)
hdr = f'''; memory-augmented recurrent transformer / MQA stack: prep kernel + persistent role-specialised kernel
; @launch kernel=prep_kernel grid=(64,1,1) block=(256,1,1) lds=65536
; @launch kernel={NAME} grid=(256,1,1) block=(256,1,1) lds=163840
.amdgcn_target "amdgcn-amd-amdhsa--gfx950"
'''
mac = ''.join(f'.macro {a} x:vararg\n{op} \\x\n.endm\n' for op, a in al.items())
def kd(n, sg): return f''' .amdhsa_kernel {n}
  .amdhsa_next_free_vgpr 512
  .amdhsa_next_free_sgpr {sg}
  .amdhsa_accum_offset 256
  .amdhsa_group_segment_fixed_size 0
  .amdhsa_kernarg_size 120
  .amdhsa_user_sgpr_count 2
  .amdhsa_user_sgpr_kernarg_segment_ptr 1
  .amdhsa_system_sgpr_workgroup_id_x 1
.end_amdhsa_kernel
'''[1:]
tail = '.section .rodata,"a"\n.p2align 6\n' + kd('prep_kernel', 96) + '.p2align 6\n' + kd(NAME, 96)
open(sys.argv[1], 'w').write(hdr + mac + '\n'.join(out) + tail)
```

```python
from em import Em, R
from layout import *
import math, struct

def fbits(x): return struct.unpack('<I', struct.pack('<f', x))[0]

L_MEM = 0; L_O = 0; L_KX = 10240; L_QK = 18432; L_SEL = 23040; L_MISC = 24064; L_W = 24576
QS = 288; L_K = L_QK + 8*QS
Q0, Q1, VA = 16, 24, 32
ABUF = [12, 40, 44]
X = [48, 56, 64, 72]
OWN = [[0,1,2],[3,4,5],[6,7],[8,9]]
WS = 's[4:7]'
NSCR = 10
BLK = SEG

def plan(w):
    own = OWN[w]
    order = own + [c % 10 for c in range(own[-1]+1, own[-1]+1+10-len(own))]
    qk = []
    for j, c in enumerate(order):
        if j < 8: qk += [(m, t, c) for (m, t) in (('q',0),('q',1),('k',0),('k',1))]
        if j < 7: qk += [('v',0,c),('v',1,c)]
    qk += [(m, t, order[j]) for m in 'qk' for j in (8, 9) for t in (0, 1)]
    for j in (9, 8, 7): qk += [('v',0,order[j]),('v',1,order[j])]
    o = [('o', t, c) for t in (8,9,0,1,2,3,4,5,6,7) for c in (0,1)]
    qs = [[(0,'S'),(26,'S'),(32,'L'),(59,'S')],
          [(1,'S'),(7,'L'),(35,'S'),(41,'L'),(47,'L'),(53,'L')],
          [(2,'L'),(8,'L'),(13,'L'),(19,'L'),(45,'S'),(51,'L')],
          [(3,'L'),(9,'L'),(15,'L'),(21,'L'),(27,'L'),(52,'S')]]
    os_ = [[(0,'S'),(7,'L')], [(1,'S'),(8,'L')]]
    def mk(sl):
        u = []
        for k, l in enumerate(sl):
            for i, (p, ty) in enumerate(l): u.append((p, ty, k, l[i-1][0] if i else None))
        return u
    qu, ou = mk(qs), mk(os_)
    loc = {}; nl = ns = 0
    for lst, us in ((qk, qu), (o, ou)):
        for (p, ty, sl, ia) in us:
            if ty == 'L': loc[lst[p]] = ('L', nl*2048); nl += 1
            else: loc[lst[p]] = ('S', ns); ns += 1
    assert nl == 17 and ns == 9, (nl, ns)
    res = [f for f in o if f not in loc] + [f for f in qk if f not in loc]
    assert len(res) == 54, len(res)
    for i, f in enumerate(res):
        loc[f] = ('R', 'a', 8*i) if i < 32 else ('R', 'v', 80 + 8*(i-32))
    return order, qk, o, qu, ou, loc

def srd(e, base, koff, nbytes):
    e(f's_load_dwordx2 s[{base}:{base+1}], s[0:1], {koff}')
    e(f's_mov_b32 s{base+2}, {nbytes}')
    e(f's_mov_b32 s{base+3}, 0x20000')

def put_frag(e, loc, f, srcs):
    L = loc[f]
    put_frag.k ^= 1
    tmp = 64 + 8*put_frag.k
    for j, (r1, r0, sel) in enumerate(srcs):
        d = L[2]+j if (L[0] == 'R' and L[1] == 'v') else tmp+j
        e(f'v_perm_b32 v{d}, v{r1}, v{r0}, {sel}')
    if L[0] == 'R' and L[1] == 'a':
        for j in range(8): e(f'v_accvgpr_write_b32 a{L[2]+j}, v{tmp+j}')
    elif L[0] == 'L':
        e(f'ds_write_b128 v5, {R(tmp,4)} offset:{L[1]}')
        e(f'ds_write_b128 v5, {R(tmp+4,4)} offset:{L[1]+1024}')
    elif L[0] == 'S':
        e(f's_add_u32 s19, s18, {L[1]*2048}')
        e(f'buffer_store_dwordx4 {R(tmp,4)}, v0, {WS}, s19 offen')
        e(f'buffer_store_dwordx4 {R(tmp+4,4)}, v0, {WS}, s19 offen offset:1024')
put_frag.k = 0

def krow(j, b): return 32*(j>>2) + 2*((j>>1)&1) + 8*(j&1) + b

def prologue(e, w, loc):
    e('v_and_b32 v0, 63, v0')
    e('v_and_b32 v12, 15, v0')
    e('v_lshrrev_b32 v13, 4, v0')
    e('v_lshlrev_b32 v0, 4, v0')
    e('s_mov_b32 s22, 0x05040100')
    e('s_mov_b32 s23, 0x07060302')
    e(f'v_add_u32 v5, {L_W + w*17*2048}, v0')
    e(f's_mul_i32 s18, s8, {4*NSCR*2048}')
    e(f's_add_u32 s18, s18, {SCR + w*NSCR*2048}')
    e('v_lshrrev_b32 v14, 1, v13')
    e('v_lshlrev_b32 v14, 4, v14')
    e('v_and_b32 v1, 1, v13')
    e('v_lshl_add_u32 v14, v1, 2, v14')
    srd(e, 24, B_WO, 32*128*640*2)
    e('v_mul_u32_u24 v2, 1280, v14')
    e('v_lshl_add_u32 v3, v12, 2, v2')
    e('v_lshl_add_u32 v2, v12, 4, v2')
    e(f'v_add_u32 v2, {256*w}, v2')
    e(f'v_add_u32 v3, {1024+64*w}, v3')
    e('s_mul_i32 s17, s8, 163840')
    for c in range(2):
        for j in range(8):
            for b in range(2):
                e(f's_add_u32 s19, s17, {(64*c+krow(j,b))*1280}')
                e(f'buffer_load_dwordx4 {R(80+c*64+(2*j+b)*4,4)}, v2, s[24:27], s19 offen')
                e(f'buffer_load_dword v{208+c*16+2*j+b}, v3, s[24:27], s19 offen')
    for c in range(2):
        for t in range(8):
            put_frag(e, loc, ('o',t,c), [(80+c*64+(2*j+1)*4+(t>>1), 80+c*64+(2*j)*4+(t>>1), 's23' if t&1 else 's22') for j in range(8)])
        for t in (8,9):
            put_frag(e, loc, ('o',t,c), [(208+c*16+2*j+1, 208+c*16+2*j, 's23' if t&1 else 's22') for j in range(8)])
    srd(e, 24, B_WQ, 640*4096*2); srd(e, 28, B_WK, 640*4096*2); srd(e, 32, B_WV, 640*4096*2)
    e('v_lshlrev_b32 v2, 13, v14')
    e('v_lshl_add_u32 v2, v12, 2, v2')
    e(f'v_add_u32 v2, {64*w}, v2')
    e('s_lshl_b32 s17, s8, 8')
    units = [(m, c) for m in 'qkv' for c in range(10)]
    def issue(u):
        m, c = units[u]; sb = {'q':24,'k':28,'v':32}[m]
        for j in range(8):
            for b in range(2):
                e(f's_add_u32 s19, s17, {(64*c+krow(j,b))*8192}')
                e(f'buffer_load_dword v{16+(u%3)*16+2*j+b}, v2, s[{sb}:{sb+3}], s19 offen')
    for u in range(3): issue(u)
    for u, (m, c) in enumerate(units):
        bb = 16+(u%3)*16
        for t in range(2):
            put_frag(e, loc, (m,t,c), [(bb+2*j+1, bb+2*j, 's23' if t else 's22') for j in range(8)])
        if u+3 < len(units): issue(u+3)
    e('v_lshrrev_b32 v14, 1, v12'); e('v_and_b32 v14, 1, v14')
    e('v_mov_b32 v1, 0x4444'); e('v_mov_b32 v15, 0xeeee')
    e('v_cmp_eq_u32 vcc, 1, v14'); e('v_cndmask_b32 v1, v1, v15, vcc')
    e('v_lshrrev_b32 v15, 2, v12'); e('v_lshlrev_b32 v15, 1, v15'); e('v_and_b32 v16, 1, v12'); e('v_add_u32 v15, v15, v16')
    e('v_mul_u32_u24 v7, 1280, v15'); e('v_lshl_add_u32 v7, v13, 5, v7'); e('v_lshl_add_u32 v7, v14, 4, v7')
    e(f'v_mul_u32_u24 v10, {QS}, v15'); e('v_lshl_add_u32 v10, v13, 4, v10'); e(f'v_add_u32 v10, {L_K}, v10')
    e('v_and_b32 v16, 7, v12')
    e(f'v_mul_u32_u24 v9, {QS}, v16'); e('v_lshl_add_u32 v9, v13, 4, v9'); e(f'v_add_u32 v9, {L_QK}, v9')
    e(f'v_mul_u32_u24 v8, {2*QS}, v13'); e('v_lshl_add_u32 v8, v12, 2, v8'); e(f'v_add_u32 v8, {L_QK+64*w}, v8')
    e('v_lshrrev_b32 v17, 1, v16'); e('v_lshlrev_b32 v17, 2, v17'); e('v_and_b32 v18, 1, v16'); e('v_add_u32 v17, v17, v18')
    e('v_and_b32 v18, 1, v13'); e('v_lshl_add_u32 v17, v18, 1, v17')
    e('v_lshrrev_b32 v18, 1, v13'); e('v_lshl_add_u32 v17, v18, 4, v17')
    e('v_lshlrev_b32 v11, 4, v17'); e(f'v_add_u32 v11, {L_O + (w>>1)*1024 + (w&1)*512}, v11')
    e('s_mul_i32 s19, s8, 10240')
    e('v_mul_u32_u24 v2, 2560, v13'); e('v_add_u32 v2, s19, v2')
    e('v_lshl_add_u32 v3, v12, 2, v2'); e(f'v_add_u32 v3, {1024+64*w}, v3')
    e('v_lshl_add_u32 v2, v12, 4, v2'); e(f'v_add_u32 v2, {256*w}, v2')
    e('v_lshrrev_b32 v16, 3, v12'); e('v_lshl_add_u32 v16, v13, 1, v16')
    e('v_and_b32 v17, 7, v12')
    e(f's_lshl_b32 s19, s8, 7'); e(f's_add_u32 s19, s19, {32*128*w}')
    e('v_mul_u32_u24 v4, 10240, v16'); e('v_lshl_add_u32 v4, v17, 4, v4'); e('v_add_u32 v4, s19, v4')
    e(f'v_mov_b32 v19, {OOB}')
    e('v_lshlrev_b32 v6, 4, v12'); e('v_lshl_add_u32 v6, v13, 3, v6'); e('v_add_u32 v6, s19, v6')
    e('v_cmp_le_u32 vcc, 8, v12'); e('v_cndmask_b32 v6, v6, v19, vcc')
    e('v_cmp_le_u32 vcc, 2, v13'); e('v_cndmask_b32 v6, v6, v19, vcc')
    if w == 0:
        e('v_and_b32 v16, 1, v12'); e('v_mov_b32 v17, 0x3f80'); e('v_mov_b32 v18, 0x3f800000')
        e('v_cmp_eq_u32 vcc, 1, v16'); e('v_cndmask_b32 v17, v17, v18, vcc')
        e('v_lshrrev_b32 v16, 1, v12')
        for i in range(4):
            e(f'v_cmp_eq_u32 vcc, {i}, v16'); e(f'v_cndmask_b32 v{20+i}, 0, v17, vcc')
        e(f'ds_write_b128 v0, v[20:23] offset:{L_SEL}')
    e(f's_mov_b32 s21, {fbits(128**-0.5*math.log2(math.e))}')
    e('s_mov_b32 s20, 400000')
    e(f's_mov_b32 s12, {PART}')
    e(f's_mov_b32 s15, {MEMR}')
    e.wait(vm=0, lgkm=0)

CFG = {}
def load_frag(e, loc, f, slot):
    L = loc[f]; b = X[slot]
    if CFG.get('no'+L[0]): return
    sf = CFG.get('sf', '')
    if L[0] == 'L':
        e(f'ds_read_b128 {R(b,4)}, v5 offset:{L[1]}'); e(f'ds_read_b128 {R(b+4,4)}, v5 offset:{L[1]+1024}')
    else:
        e(f's_add_u32 s19, s18, {L[1]*2048}')
        e(f'buffer_load_dwordx4 {R(b,4)}, v0, {WS}, s19 offen {sf}'); e(f'buffer_load_dwordx4 {R(b+4,4)}, v0, {WS}, s19 offen offset:1024 {sf}')

def bop(loc, f, uses, pos):
    L = loc[f]
    if L[0] == 'R': return R(L[2], 8, L[1])
    for (p, ty, sl, ia) in uses:
        if p == pos: return R(X[sl], 8)
    raise KeyError

def check(e, regs, t0, t1):
    r = list(regs)
    e(f'v_max3_u32 v{t0}, v{r[0]}, v{r[1]}, v{r[2]}')
    r = r[3:]
    while len(r) >= 2:
        e(f'v_max3_u32 v{t0}, v{t0}, v{r[0]}, v{r[1]}'); r = r[2:]
    if r: e(f'v_max_u32 v{t0}, v{t0}, v{r[0]}')
    e(f'v_cmp_eq_u32 vcc, -1, v{t0}')

def spin_flag(e, need_sgpr, t):
    lp = e.newlabel('CF'); dn = e.newlabel('CFD')
    e.label(lp)
    e(f'buffer_load_dwordx2 {R(t,2)}, off, {WS}, s24 sc1')
    e(f'v_min_u32 v{t}, v{t}, v{t+1}')
    e(f'v_readfirstlane_b32 s25, v{t}')
    e(f's_cmp_ge_u32 s25, {need_sgpr}')
    e(f's_cbranch_scc1 {dn}')
    e('s_sleep 2')
    e('s_sub_u32 s20, s20, 1'); e('s_cmp_gt_i32 s20, 0'); e(f's_cbranch_scc1 {lp}')
    e.label(dn)

def kx_dma(e, w, soff):
    for i in range(2):
        f = 2*w+i
        e(f's_mov_b32 m0, {L_KX + f*1024}')
        e(f's_add_u32 s19, {soff}, {f*1024}')
        e(f'buffer_load_dwordx4 v0, {WS}, s19 offen sc1 lds')

def allred(e, op, x, t):
    e(f'v_mov_b32 v{t}, v{x}'); e(f'v_permlane32_swap_b32 v{x}, v{t}'); e(f'{op} v{x}, v{x}, v{t}')
    e(f'v_mov_b32 v{t}, v{x}'); e(f'v_permlane16_swap_b32 v{x}, v{t}'); e(f'{op} v{x}, v{x}, v{t}')

def zero(e, b, n, val=0):
    for k in range(0, n, 2): e(f'v_mov_b64 {R(b+k,2)}, {val}')

NST = 10
def steps(e, w, P, st='', stamp=False, cfg={}):
    order, qk, o, qu, ou, loc = P
    CFG.update(cfg)
    own = OWN[w]; nown = len(own)
    tag = f'w{w}' + ('x' if st else '')
    sm = 'v_smfmac_f32_16x16x64_bf16'; mf = 'v_mfma_f32_16x16x32_bf16'; m16 = 'v_mfma_f32_16x16x16_bf16'
    def T(i):
        if stamp: e.raw(f'    s_memtime s[{40+2*i}:{41+2*i}]')
    e(f's_lshl_b32 s24, s8, 7'); e(f's_add_u32 s26, s24, {F_CH}'); e(f's_add_u32 s24, s24, {F_KV}')
    e('s_mov_b32 s11, 0')
    e(f's_mul_i32 s17, s8, {BLK}'); e(f's_add_u32 s17, s17, {KX}')
    e(f's_add_u32 s27, s17, {KVM - KX + w*1024}')
    srd(e, 28, B_MEM0, 10240)
    lo, hi = (47, 207) if not cfg.get('forcefb') else (126, 128)
    e(f's_mov_b32 s32, {lo << 23}'); e(f's_mov_b32 s33, {(hi-lo) << 23}')
    if w == 3:
        e('v_mov_b64 v[12:13], 0'); e(f'v_mov_b32 v14, {L_MISC+256}'); e('ds_write_b64 v14, v[12:13]')
    if stamp:
        for i in range(NST): e(f's_mov_b32 s{70+i}, 0')
    e.wait(lgkm=0)
    e.label(f'CL_{tag}')
    e('s_mov_b32 s10, 0')
    if w == 3:
        e('s_add_u32 s22, s11, 1')
        spin_flag(e, 's22', 12)
    e.barrier()
    if stamp:
        e('s_mov_b32 s84, s86'); e('s_mov_b32 s85, s87'); e('s_memrealtime s[86:87]'); e.wait(lgkm=0)
    kx_dma(e, w, 's17')
    for i, c in enumerate(own):
        e(f'buffer_load_dwordx4 {R(ABUF[i],4)}, v7, s[28:31], 0 offen offset:{c*128}')
    for (p, ty, sl, ia) in qu:
        if ia is None: load_frag(e, loc, qk[p], sl)
    zero(e, Q0, 24)
    e.wait(vm=0, lgkm=0)
    e.label(f'CS_{tag}')
    T(0)
    for i, c in enumerate(own):
        e(f'ds_write_b128 v0, {R(ABUF[i],4)} offset:{L_MEM + c*1024}')
    barpos = cfg.get('bar3', 6) if nown == 3 else cfg.get('bar2', 4)
    acc = {('q',0):Q0, ('q',1):Q0+4, ('k',0):Q1, ('k',1):Q1+4, ('v',0):VA, ('v',1):VA+4}
    lastpos = {}
    for i, f in enumerate(qk[:54]): lastpos[order.index(f[2])] = i
    nextA = nown
    def M(i):
        f = qk[i]; j = order.index(f[2])
        e(f'{sm} {R(acc[f[:2]],4)}, {R(ABUF[j%3],4)}, {bop(loc,f,qu,i)}, v1')
        for (p, ty, sl, ia) in qu:
            if ia == i: load_frag(e, loc, qk[p], sl)
    qops = []
    for k in (0, 1, 4, 5): qops += [f'v_add_f32 v{Q0+k}, v{Q0+k}, v{Q0+k+2}']
    for k in (0, 1, 4, 5): qops += [f'v_mul_f32 v{Q0+k}, s21, v{Q0+k}']
    qops += [f'v_cvt_pk_bf16_f32 v{Q0+2+r}, v{Q0+r}, v{Q0+4+r}' for r in range(2)]
    qops += [f'ds_write2_b32 v8, v{Q0+2}, v{Q0+3} offset0:0 offset1:{QS//4}']
    def qe(n):
        for _ in range(n):
            if qops: e(qops.pop(0))
    for i in range(54):
        if i == barpos:
            e.wait(lgkm=len(e.lq) - nown if len(e.lq) >= nown and e.lq[0] == set() else 0)
            e('s_barrier')
        if i >= barpos:
            while nextA < 10 and (nextA < 3 or lastpos[nextA-3] < i):
                e(f'ds_read_b128 {R(ABUF[nextA%3],4)}, v0 offset:{L_MEM + order[nextA]*1024}'); nextA += 1
        M(i)
        if i >= 51: qe(1)
        if i == 51:
            e(f's_add_u32 s19, s17, {VX-KX + w*2048}')
            e(f'buffer_load_dwordx4 {R(X[2],4)}, v0, {WS}, s19 offen sc1')
            e(f'buffer_load_dwordx4 {R(X[2]+4,4)}, v0, {WS}, s19 offen offset:1024 sc1')
    T(1)
    def kxrd(tile, ks, b): e(f'ds_read_b128 {R(b,4)}, v0 offset:{L_KX + (tile*4+ks)*1024}')
    M(54); qe(2)
    kxrd(0,0,X[3]); kxrd(1,0,X[3]+4)
    M(55); qe(9)
    kxrd(0,1,X[1]); kxrd(1,1,X[1]+4)
    for k in (0, 1, 4, 5): e(f'v_add_f32 v{Q1+k}, v{Q1+k}, v{Q1+k+2}')
    for r in range(2): e(f'v_cvt_pk_bf16_f32 v{Q1+2+r}, v{Q1+r}, v{Q1+4+r}')
    e(f'ds_write_b32 v8, v{Q1+2} offset:{8*QS}'); e(f'ds_write_b32 v8, v{Q1+3} offset:{9*QS}')
    M(56); zero(e, 12, 2, -1); M(57); zero(e, 14, 2, -1)
    e(f's_xor_b32 s13, s12, 0x80000')
    e.barrier()
    T(2)
    def qrd(ks, b): e(f'ds_read_b128 {R(b,4)}, v9 offset:{ks*64}'); e(f'ds_read_b128 {R(b+4,4)}, v10 offset:{ks*64}')
    qrd(0, Q0); qrd(1, Q1)
    M(58)
    e(f'buffer_store_dwordx4 v[12:15], v2, {WS}, s13 offen {st}')
    e(f'buffer_store_dwordx4 v[12:15], v2, {WS}, s13 offen offset:1280 {st}')
    M(59)
    e(f'buffer_store_dword v12, v3, {WS}, s13 offen {st}')
    e(f'buffer_store_dword v12, v3, {WS}, s13 offen offset:1280 {st}')
    Sm, S0, S1 = 12, 40, 44
    def score(ks, qb, kb, fill=[]):
        z = ks == 0; fill = list(fill)
        for d, a in ((S1, kb+4), (Sm, qb+4), (S0, kb)):
            e(f'{mf} {R(d,4)}, {R(a,4)}, {R(qb,4)}, {0 if z else R(d,4)}')
            for x in fill[:2]: e(x)
            fill = fill[2:]
    ones = VA+4; Pb = Q0
    kxrd(0,2,X[0]); kxrd(1,2,X[0]+4)
    score(0, Q0, X[3]); qrd(2, Q0); kxrd(0,3,X[3]); kxrd(1,3,X[3]+4)
    score(1, Q1, X[1], [f'v_add_f32 v{VA+k}, v{VA+k}, v{VA+k+2}' for k in (0, 1, 4, 5)] +
          [f'v_cvt_pk_bf16_f32 v{VA+2}, v{VA}, v{VA+1}', f'v_cvt_pk_bf16_f32 v{VA+3}, v{VA+4}, v{VA+5}'])
    qrd(3, Q1)
    e(f'ds_read_b32 v{VA}, v8 offset:{8*QS}'); e(f'ds_read_b32 v{VA+1}, v8 offset:{9*QS}')
    load_frag(e, loc, o[1], 1)
    score(2, Q0, X[0], [f'v_mov_b32 v{ones+k}, 0x3f803f80' for k in range(4)])
    load_frag(e, loc, o[0], 0)
    score(3, Q1, X[3], [f'v_mov_b32 v{Pb+5}, 0', f'v_mov_b32 v{Pb+6}, 0'])
    if not cfg.get('nofar'):
        if not cfg.get('nokvm'): e(f'buffer_store_dwordx4 {R(VA,4)}, v0, {WS}, s27 offen sc1')
        t = Pb
        if w == 3:
            e(f'v_mov_b32 v{t}, s11'); e(f'buffer_store_dword v{t}, off, {WS}, s26 sc1')
            e(f'v_lshrrev_b32 v{t+1}, 2, v0'); e(f's_mov_b32 m0, {L_MISC+256}')
            e(f'buffer_load_dword v{t+1}, {WS}, s24 offen sc1 lds')
            e('s_add_u32 s22, s11, 3'); e(f's_add_u32 s19, s17, {2*32*BLK}')
            e('s_cmp_lt_u32 s25, s22'); e(f's_cselect_b32 s19, s17, s19')
            e('s_cmp_gt_u32 s10, 61'); e(f's_cselect_b32 s19, s17, s19')
            e(f'v_lshlrev_b32 v{t+1}, 3, v0'); e(f's_mov_b32 m0, {L_MISC}')
            e(f's_add_u32 s22, s19, {VX-KX}')
            e(f'buffer_load_dword v{t+1}, {WS}, s19 offen sc1 lds')
            e(f'buffer_load_dword v{t+1}, {WS}, s22 offen sc1 lds')
    e('s_mov_b32 s23, 0')
    T(3)
    e.label(f'SX_{tag}')
    E = X[3]; Ls = X[3]
    for k in (4, 5, 6, 7): e(f'v_exp_f32 v{E+k}, v{S0+k}')
    e(f'v_exp_f32 v{Q1}, v{Sm}'); e(f'v_exp_f32 v{Q1+1}, v{Sm+1}')
    for k in (0, 1, 2, 3): e(f'v_exp_f32 v{E+k}, v{S0+k}')
    for k in (2, 3, 0, 1): e(f'v_cvt_pk_bf16_f32 v{Pb+k}, v{E+2*k}, v{E+2*k+1}')
    e(f'v_cvt_pk_bf16_f32 v{Pb+4}, v{Q1}, v{Q1+1}'); e(f'v_cvt_pk_bf16_f32 v{Pb+7}, v{Q1}, v{Q1+1}')
    e(f'{mf} {R(Ls,4)}, {R(ones,4)}, {R(Pb,4)}, 0')
    e(f'{mf} {R(Q1,4)}, {R(X[2],4)}, {R(Pb,4)}, 0')
    e(f'{mf} {R(Q1+4,4)}, {R(X[2]+4,4)}, {R(Pb,4)}, 0')
    e(f'{m16} {R(Ls,4)}, {R(ones,2)}, {R(Pb+4,2)}, {R(Ls,4)}')
    e(f'{m16} {R(Q1,4)}, {R(VA+2,2)}, {R(Pb+4,2)}, {R(Q1,4)}')
    zero(e, X[3]+4, 4)
    e(f'{m16} {R(Q1+4,4)}, {R(VA+2,2)}, {R(Pb+6,2)}, {R(Q1+4,4)}')
    if w == 3:
        e(f'v_mov_b32 v14, {L_MISC+256}'); e('ds_read_b64 v[14:15], v14')
    e(f'v_subrev_u32 v{Ls+1}, s32, v{Ls}'); e(f'v_rcp_f32 v{Ls+2}, v{Ls}')
    e(f'v_cmp_le_u32 vcc, s33, v{Ls+1}')
    e(f'v_mov_b32 v{Ls+3}, v{Ls+2}')
    e(f's_cbranch_vccnz FB_{tag}')
    e.label(f'SO_{tag}')
    for k in range(4): e(f'v_pk_mul_f32 {R(Q1+2*k,2)}, {R(Q1+2*k,2)}, {R(Ls+2,2)}')
    for k in range(4): e(f'v_cvt_pk_bf16_f32 v{Q1+k}, v{Q1+k}, v{Q1+4+k}')
    e(f'ds_write_b128 v11, {R(Q1,4)}')
    zero(e, X[3], 4); zero(e, Q0, 8); zero(e, X[2], 8)
    if w == 3 and not cfg.get('nofar'):
        e('v_min_u32 v14, v14, v15'); e('v_readfirstlane_b32 s22, v14'); e('s_max_u32 s25, s25, s22')
        sk = e.newlabel('CN')
        e('s_add_u32 s22, s11, 2'); e('s_cmp_ge_u32 s25, s22'); e(f's_cbranch_scc1 {sk}')
        e('s_cmp_eq_u32 s10, 63'); e(f's_cbranch_scc1 {sk}')
        sv = e.save(); spin_flag(e, 's22', 14); e.restore(sv)
        e.label(sk)
    e.barrier()
    T(4)
    e(f'ds_read_b128 v[40:43], v0 offset:{L_O}'); e(f'ds_read_b128 v[44:47], v0 offset:{L_O+1024}')
    e('s_cmp_eq_u32 s10, 63'); e(f's_cbranch_scc1 CE_{tag}')
    zero(e, Q1, 8)
    if not cfg.get('samekv'): e(f's_add_u32 s17, s17, {32*BLK}')
    if cfg.get('kxpos', 1) == 0: kx_dma(e, w, 's17')
    tacc = {8: X[3], 9: X[3]+4, 0: Q0, 1: Q0+4, 2: X[2], 3: X[2]+4, 4: Q1, 5: Q1+4, 6: VA, 7: VA+4}
    tl = (8,9,0,1,2,3,4,5,6,7)
    pre = {sl: p for (p, ty, sl, ia) in qu if ia is None}
    def add(k, r): e(f'v_add_f32 v{tacc[tl[k]]+r}, v{tacc[tl[k]]+r}, v{tacc[tl[k]]+r+2}')
    def cv(k, r): e(f'v_cvt_pk_bf16_f32 v{40+4*r+k}, v{tacc[2*k]+r}, v{tacc[2*k+1]+r}')
    for i, f in enumerate(o):
        e(f'{sm} {R(tacc[f[1]],4)}, {R(40+4*f[2],4)}, {bop(loc,f,ou,i)}, v1')
        if i < 4: zero(e, VA+2*i, 2)
        else: add((i-4)//2, i & 1)
        for (p, ty, sl, ia) in ou:
            if ia == i: load_frag(e, loc, o[p], sl)
        if i in (7, 8) and cfg.get('spre', 1) == 0: load_frag(e, loc, qk[pre[i-7]], i-7)
        if i in (9, 10):
            r = i-9
            e(f'v_cvt_pk_bf16_f32 v{12+r}, v{tacc[8]+r}, v{tacc[9]+r}')
            e(f'buffer_store_dword v{12+r}, v3, {WS}, s12 offen offset:{1280*r} {st}')
    add(8, 0); add(8, 1)
    for k in range(3): cv(k, 0)
    for k in range(3): cv(k, 1)
    add(9, 0); cv(3, 0)
    e(f'buffer_store_dwordx4 v[40:43], v2, {WS}, s12 offen {st}')
    add(9, 1); cv(3, 1)
    e(f'buffer_store_dwordx4 v[44:47], v2, {WS}, s12 offen offset:1280 {st}')
    T(5)
    if cfg.get('spre', 1) == 1: load_frag(e, loc, qk[pre[0]], 0); load_frag(e, loc, qk[pre[1]], 1)
    if cfg.get('spre', 1) == 2: load_frag(e, loc, qk[pre[0]], 0)
    load_frag(e, loc, qk[pre[2]], 2); load_frag(e, loc, qk[pre[3]], 3)
    e('s_xor_b32 s16, s15, 0x4000')
    e('s_add_u32 s10, s10, 1'); e('s_add_u32 s11, s11, 1'); e(f's_add_u32 s27, s27, {32*BLK}')
    if w < 3:
        sk = f'P1S_{tag}'
        if w == 2:
            e('s_cmp_ge_u32 s8, 16'); e(f's_cbranch_scc1 {sk}')
        sv = e.save()
        e(f'ds_read_b128 v[12:15], v0 offset:{L_SEL}')
        for i, r in enumerate((13, 14, 22)): e(f's_add_u32 s{r}, s12, {(i+1)*8*10240}')
        zero(e, VA+6, 2, -1)
        if cfg.get('d1'): e.nop(cfg['d1'])
        e.wait(lgkm=0)
        lp = f'P1_{tag}'; dn = f'P1D_{tag}'
        e.label(lp)
        for i, r in enumerate((12, 13, 14, 22)): e(f'buffer_load_dwordx4 {R(Q0+4*i,4)}, v4, {WS}, s{r} offen sc1')
        for i in range(4):
            e(f'{mf} {R(VA,4)}, v[12:15], {R(Q0+4*i,4)}, {R(VA,4) if i else 0}')
            b = Q0+4*i
            if i == 0: e(f'v_max3_u32 v{VA+4}, v{b}, v{b+1}, v{b+2}'); e(f'v_max_u32 v{VA+4}, v{VA+4}, v{b+3}')
            else: e(f'v_max3_u32 v{VA+4}, v{VA+4}, v{b}, v{b+1}'); e(f'v_max3_u32 v{VA+4}, v{VA+4}, v{b+2}, v{b+3}')
        e(f'v_cmp_eq_u32 vcc, -1, v{VA+4}')
        e(f's_cbranch_vccz {dn}')
        e('s_sub_u32 s20, s20, 1'); e('s_cmp_gt_i32 s20, 0'); e(f's_cbranch_scc1 {lp}')
        e.n -= 3
        e.label(dn)
        T(6)
        dp = 'row_mask:0xf bank_mask:0xf bound_ctrl:1'
        for k in range(4): e(f'v_add_f32_dpp v{Q0+k}, v{VA+k}, v{VA+k} row_shl:8 {dp}')
        e(f'v_cvt_pk_bf16_f32 v{VA+4}, v{Q0}, v{Q0+1}'); e(f'v_cvt_pk_bf16_f32 v{VA+5}, v{Q0+2}, v{Q0+3}')
        e(f'buffer_store_dwordx2 {R(VA+4,2)}, v6, {WS}, s15 offen {st}')
        e(f'buffer_store_dwordx2 {R(VA+6,2)}, v6, {WS}, s16 offen {st}')
        if w == 2:
            e.label(sk); e.restore(sv)
    else: T(6)
    e('s_barrier')
    T(7)
    if cfg.get('kxpos', 1) == 1: kx_dma(e, w, 's17')
    if cfg.get('spre', 1) == 2: load_frag(e, loc, qk[pre[1]], 1)
    zero(e, Q0+2, 22)
    e('s_xor_b32 s12, s12, 0x80000')
    if cfg.get('d2'): e.nop(cfg['d2'])
    e.wait(lgkm=0)
    lp = f'P2_{tag}'; dn = f'P2D_{tag}'
    e.label(lp)
    for i, c in enumerate(own):
        e(f'buffer_load_dwordx4 {R(ABUF[i],4)}, v7, {WS}, s15 offen offset:{c*128} sc1')
    check(e, [ABUF[i]+k for i in range(nown) for k in range(4)], Q0, Q0+1)
    zero(e, Q0, 2)
    e(f's_cbranch_vccz {dn}')
    e('s_sub_u32 s20, s20, 1'); e('s_cmp_gt_i32 s20, 0'); e(f's_cbranch_scc1 {lp}')
    e.label(dn)
    e('s_mov_b32 s15, s16')
    if stamp:
        T(8)
        e.raw('    s_waitcnt lgkmcnt(0)')
        for i in range(8):
            e(f's_sub_u32 s22, s{42+2*i}, s{40+2*i}'); e(f's_add_u32 s{70+i}, s{70+i}, s22')
    assert not e.vq and not e.lq, (e.vq, e.lq)
    e(f's_branch CS_{tag}')
    e.label(f'FB_{tag}')
    e('s_cmp_lg_u32 s23, 0'); e(f's_cbranch_scc1 SO_{tag}')
    e('s_mov_b32 s23, 1'); e.nop(12)
    sc = [S0+i for i in range(8)] + [Sm, Sm+1]
    mx, tt = Q1, Q1+1
    e(f'v_max3_f32 v{mx}, v{sc[0]}, v{sc[1]}, v{sc[2]}')
    for k in (3, 5, 7): e(f'v_max3_f32 v{mx}, v{mx}, v{sc[k]}, v{sc[k+1]}')
    e(f'v_max_f32 v{mx}, v{mx}, v{sc[9]}')
    allred(e, 'v_max_f32', mx, tt)
    for r in sc: e(f'v_sub_f32 v{r}, v{r}, v{mx}')
    e.wait(lgkm=0)
    e(f's_branch SX_{tag}')
    e.label(f'CE_{tag}')
    e.wait(vm=0, lgkm=0)
    e('s_barrier')
    e('s_add_u32 s11, s11, 1'); e(f's_add_u32 s27, s27, {32*BLK}'); e(f's_add_u32 s17, s17, {32*BLK}')
    if w == 3:
        e(f'v_mov_b32 v12, s11')
        e(f'buffer_store_dword v12, off, {WS}, s26 sc1')
    e(f's_mov_b32 s15, {MEMR + 0x8000}')
    if stamp:
        e('s_memrealtime s[88:89]'); e.wait(lgkm=0); e('s_mov_b32 s87, s88')
    e.wait(vm=0)
    e('s_cmp_lt_u32 s11, 128'); e(f's_cbranch_scc1 CL_{tag}')
```

```python
from em import Em, R
from layout import *
from chain import srd, fbits, allred, zero, WS
import math
mf = 'v_mfma_f32_16x16x32_bf16'; m16 = 'v_mfma_f32_16x16x16_bf16'

def lanes(e):
    e('v_and_b32 v0, 63, v0'); e('v_and_b32 v1, 15, v0'); e('v_lshrrev_b32 v2, 4, v0'); e('v_lshlrev_b32 v0, 4, v0')
    e('s_mov_b32 s22, 0x05040100'); e('s_mov_b32 s23, 0x07060302'); e('s_mov_b32 s20, 300000')

def flagaddr(e, v, nwords):
    e(f'v_lshrrev_b32 v{v}, 2, v0'); e(f'v_min_u32 v{v}, {4*(nwords-1)}, v{v}')

def wait_flag(e, v, soff, need, t):
    lp = e.newlabel('WF'); dn = e.newlabel('WD')
    e.label(lp)
    e(f'buffer_load_dword v{t}, v{v}, {WS}, {soff} offen sc1')
    e(f'v_cmp_gt_u32 vcc, {need}, v{t}')
    e(f's_cbranch_vccz {dn}')
    e('s_sleep 3')
    e('s_sub_u32 s20, s20, 1'); e('s_cmp_gt_i32 s20, 0'); e(f's_cbranch_scc1 {lp}')
    e.label(dn)

TRACE = [0]
def trace(e, val, t):
    if not TRACE[0]: return
    e('s_memrealtime s[92:93]'); e(f's_lshl_b32 s91, {val}, 2'); e('s_add_u32 s91, s91, s90')
    e(f'v_mov_b32 v{t}, s92'); e(f'buffer_store_dword v{t}, off, {WS}, s91')

def set_flag(e, soff, val, t):
    sk = e.newlabel('SF')
    e('s_cmp_lg_u32 s9, 0'); e(f's_cbranch_scc1 {sk}')
    sv = e.save()
    e(f'v_mov_b32 v{t}, {val}'); e(f'buffer_store_dword v{t}, off, {WS}, {soff} sc1')
    trace(e, val, t)
    e.label(sk); e.restore(sv)
    e.vq.append(set())

def load_w(e, nks, rowstride, ksstride, vlo, vhi):
    D = 6
    def issue(ks):
        for j in range(8):
            e(f's_add_u32 s19, s17, {ks*ksstride + j*rowstride}')
            e(f'buffer_load_dword v{64+(ks%D)*8+j}, v{vlo if j<4 else vhi}, s[24:27], s19 offen')
    for ks in range(D): issue(ks)
    for ks in range(nks):
        b = 64+(ks % D)*8
        for t in range(2):
            for jj in range(4): e(f'v_perm_b32 v{56+4*t+jj}, v{b+2*jj+1}, v{b+2*jj}, {"s23" if t else "s22"}')
        for k in range(8): e(f'v_accvgpr_write_b32 a{8*ks+k}, v{56+k}')
        if ks+D < nks: issue(ks+D)

def xn_setup(e):
    e('v_lshrrev_b32 v7, 7, v0'); e('v_lshrrev_b32 v8, 4, v0'); e('v_and_b32 v8, 7, v8'); e('v_xor_b32 v8, v8, v7')
    e('s_lshl_b32 s19, s9, 3'); e('v_add_u32 v7, s19, v7'); e('v_mul_u32_u24 v4, 1280, v7'); e('v_lshl_add_u32 v4, v8, 4, v4')
    e('v_and_b32 v7, 7, v1'); e('v_lshrrev_b32 v8, 3, v1'); e('v_lshlrev_b32 v8, 10, v8'); e('v_lshl_add_u32 v8, v7, 7, v8')
    e('v_xor_b32 v7, v2, v7'); e('v_lshl_add_u32 v5, v7, 4, v8'); e('v_xor_b32 v6, 64, v5')

DF = ['sc1']
OPT = {}
def set_rot(e, lin, idx):
    if lin: e(f's_mul_i32 s35, {idx}, 3072'); e('s_and_b32 s35, s35, 0x3fff')
    else:
        e(f's_and_b32 s35, {idx}, 31'); e('s_mul_i32 s34, s35, 26'); e('s_lshr_b32 s34, s34, 8'); e('s_mul_i32 s34, s34, 10')
        e('s_sub_u32 s35, s35, s34'); e('s_lshl_b32 s35, s35, 7')

def xn_dma1(e):
    e('s_lshl_b32 s34, s35, 5'); e(f's_add_u32 m0, s11, s34'); e(f's_add_u32 s37, s36, s35')
    e(f'buffer_load_dwordx4 v4, {WS}, s37 offen {DF[0]} lds')
    e('s_add_u32 s35, s35, 128'); e('s_cmp_eq_u32 s35, 1280'); e('s_cselect_b32 s35, 0, s35')

def lin_dma1(e):
    e(f's_add_u32 m0, s11, s35'); e(f's_add_u32 s37, s36, s35')
    e(f'buffer_load_dwordx4 v0, {WS}, s37 offen {DF[0]} lds')
    e('s_add_u32 s35, s35, 1024'); e('s_and_b32 s35, s35, 0x3fff')

SITES = []
def site(e, k):
    if k >= len(SITES): return
    sk = e.newlabel('ST')
    e('s_cmp_eq_u32 s15, 0'); e(f's_cbranch_scc1 {sk}')
    sv = e.save(); SITES[k](); e.label(sk); e.restore(sv)

ACC = 16
MID = [None]
def gemm(e, nks, lin, vtype):
    NB = 6
    def rd(i):
        ks, a = divmod(i, 2)
        if lin: e(f'ds_read_b128 {R(32+4*(i%NB),4)}, v5 offset:{i*1024}')
        else: e(f'ds_read_b128 {R(32+4*(i%NB),4)}, v{5+(ks&1)} offset:{(ks>>1)*4096+a*2048}')
    for i in range(NB): rd(i)
    for i in range(2*nks):
        ks, a = divmod(i, 2)
        x = R(32+4*(i % NB), 4)
        for t in range(2):
            w = R(8*ks+4*t, 4, 'a'); d = R(ACC+8*a+4*t, 4)
            A, Bo = (x, w) if vtype else (w, x)
            e(f'{mf} {d}, {A}, {Bo}, {d if ks else 0}')
        if i+NB < 2*nks: rd(i+NB)
        step = 3 if lin else 2
        if i % step == 0: site(e, i // step)
        if i == 2*nks-8 and MID[0]: MID[0]()

def epi_k(e, scale=None):
    for a in range(2):
        if scale:
            for k in range(8): e(f'v_mul_f32 v{ACC+8*a+k}, {scale}, v{ACC+8*a+k}')
        for i in range(4): e(f'v_cvt_pk_bf16_f32 v{32+4*a+i}, v{ACC+8*a+i}, v{ACC+8*a+4+i}')
def epi_v(e):
    for t in range(2):
        for a in range(2):
            for i in range(2): e(f'v_cvt_pk_bf16_f32 v{32+4*t+2*a+i}, v{ACC+8*a+4*t+2*i}, v{ACC+8*a+4*t+2*i+1}')

def gemm_loop(e, name, lin, g0, gstep, body, srcbase, srcstride, nst, nwords, flag_off_fn=None):
    wsh = 14 if lin else 10
    nd = (16 if lin else 10) + 1
    LF = 131072
    flagaddr(e, 3, nwords)
    if lin: e('v_mov_b32 v5, v0')
    else: xn_setup(e)
    e(f's_mov_b32 s10, {g0}')
    set_rot(e, lin, 's31' if lin else 's8')
    e(f's_lshl_b32 s11, s9, {wsh}'); e('s_mov_b32 s15, 0'); e('s_mov_b32 s33, 0'); e(f's_mov_b32 s32, {LF}')
    e('v_lshrrev_b32 v11, 2, v0'); e(f'v_add_u32 v11, {LF}, v11')
    if lin: e('s_add_u32 s14, s14, s11')
    def foff(gs):
        if flag_off_fn: flag_off_fn(gs)
        else: e('s_mov_b32 s21, s12')
    def base(gs):
        e(f's_mul_i32 s36, {gs}, {srcstride}'); e(f's_add_u32 s36, s36, {srcbase}'); e('s_add_u32 s36, s36, s14')
        e(f's_add_u32 s16, {gs}, {gstep}'); foff('s16')
    def fin():
        e('s_mov_b32 m0, s32'); e(f'buffer_load_dword v3, {WS}, s21 offen sc1 lds')
        e('s_xor_b32 s11, s11, 0x10000'); e('s_xor_b32 s32, s32, 256')
    pieces = [(lambda: lin_dma1(e)) if lin else (lambda: xn_dma1(e))]*(nd-1) + [fin]
    def issue(gs):
        base(gs)
        for p in pieces: p()
    e.wait(vm=0, lgkm=0)
    e.label(f'{name}_L')
    e('s_cmp_lg_u32 s15, 0'); e(f's_cbranch_scc1 {name}_H')
    e('s_add_u32 s16, s10, 1'); foff('s10')
    wait_flag(e, 3, 's21', 's16', 9)
    issue('s10')
    e.wait(vm=0)
    e.label(f'{name}_H')
    e.wait(vm=nst); e.reset()
    e('s_barrier')
    e('ds_read_b32 v9, v11')
    e(f's_add_u32 s28, s10, {gstep}'); e('s_add_u32 s16, s28, 1')
    e('v_cmp_gt_u32 vcc, s16, v9')
    e('s_cmp_eq_u64 vcc, 0'); e('s_cselect_b32 s15, 1, 0')
    base('s28')
    SITES[:] = pieces
    def mid():
        sk = e.newlabel('MD'); s2 = e.newlabel('ME')
        e('s_cmp_eq_u32 s33, 0'); e(f's_cbranch_scc1 {sk}')
        sv = e.save()
        e.wait(vm=nd)
        e('s_cmp_lg_u32 s15, 0'); e(f's_cbranch_scc1 {s2}')
        e.wait(vm=0)
        e.label(s2)
        e('s_barrier')
        set_flag(e, 's13', 's33', 9)
        e.label(sk); e.restore(sv)
    MID[0] = mid
    body()
    MID[0] = None; SITES[:] = []
    e('s_add_u32 s33, s10, 1')
    e('s_cmp_lg_u32 s15, 0'); e(f's_cbranch_scc1 {name}_N')
    e.wait(vm=0)
    e('s_barrier')
    set_flag(e, 's13', 's33', 9)
    e('s_mov_b32 s33, 0')
    e.label(f'{name}_N')
    e('v_xor_b32 v5, 0x10000, v5'); e('v_xor_b32 v11, 256, v11')
    if not lin: e('v_xor_b32 v6, 0x10000, v6')
    e('s_mov_b32 s10, s28'); e('s_cmp_lt_u32 s10, 128'); e(f's_cbranch_scc1 {name}_L')
    e.wait(vm=0)
    e('s_endpgm')

def par_off(e, base):
    def fo(gs):
        e(f's_and_b32 s21, {gs}, 1'); e('s_lshl_b32 s21, s21, 7'); e(f's_add_u32 s21, s21, {base}')
    return fo

def role_kv(e):
    lanes(e)
    e('s_and_b32 s30, s8, 1'); e('s_lshr_b32 s31, s8, 1')
    e('s_lshl_b32 s19, s30, 3'); e('s_add_u32 s34, s0, s19'); e('s_addc_u32 s35, s1, 0')
    e(f's_load_dwordx2 s[24:25], s[34:35], {B_WK}'); e(f's_mov_b32 s26, {640*8192}'); e('s_mov_b32 s27, 0x20000')
    e('v_lshlrev_b32 v4, 16, v2'); e('v_lshl_add_u32 v4, v1, 2, v4')
    e('s_lshl_b32 s17, s31, 8'); e('s_lshl_b32 s19, s9, 6'); e('s_add_u32 s17, s17, s19')
    load_w(e, 20, 8192, 32*8192, 4, 4)
    e(f's_mov_b32 s12, {F_XB}'); e('s_lshl_b32 s13, s31, 7'); e('s_lshl_b32 s19, s30, 2'); e('s_add_u32 s13, s13, s19')
    e('s_mov_b32 s14, 0')
    def body():
        e('s_lshl_b32 s18, s10, 5'); e('s_add_u32 s18, s18, s31'); e(f's_mul_i32 s18, s18, {SEG}')
        e('s_cmp_lg_u32 s30, 0'); e('s_cbranch_scc1 KV_V')
        gemm(e, 20, False, False); epi_k(e)
        e('s_lshl_b32 s19, s9, 10'); e('s_add_u32 s18, s18, s19'); e(f's_add_u32 s18, s18, {KX}'); e('s_add_u32 s19, s18, 4096')
        e(f'buffer_store_dwordx4 v[32:35], v0, {WS}, s18 offen sc1'); e(f'buffer_store_dwordx4 v[36:39], v0, {WS}, s19 offen sc1')
        e('s_branch KV_E')
        e.label('KV_V'); e.reset()
        gemm(e, 20, False, True); epi_v(e)
        e('s_lshl_b32 s19, s9, 11'); e('s_add_u32 s18, s18, s19'); e(f's_add_u32 s18, s18, {VX}')
        e(f'buffer_store_dwordx4 v[32:35], v0, {WS}, s18 offen sc1'); e(f'buffer_store_dwordx4 v[36:39], v0, {WS}, s18 offen offset:1024 sc1')
        e.label('KV_E')
    gemm_loop(e, 'KV', False, 0, 1, body, XNB, 40960, 2, 4, par_off(e, F_XB))

def aqkv_weights(e, akv):
    e(f'v_mov_b32 v9, {OOB}')
    if akv:
        e('s_and_b32 s19, s9, 1'); e('s_lshl_b32 s19, s19, 3'); e('s_add_u32 s34, s0, s19'); e('s_addc_u32 s35, s1, 0')
        e(f's_load_dwordx2 s[24:25], s[34:35], {A_WK}'); e(f's_mov_b32 s26, {640*40}'); e('s_mov_b32 s27, 0x20000')
        rs = 40; e('s_mov_b32 s17, 0')
    else:
        srd(e, 24, A_WQ, 640*1280); rs = 1280
        e('s_lshl_b32 s17, s8, 2'); e('s_add_u32 s17, s17, s9'); e('s_mul_i32 s17, s17, 40')
    e(f'v_mul_u32_u24 v4, {8*rs}, v2'); e('v_lshl_add_u32 v4, v1, 2, v4')
    e('v_cmp_le_u32 vcc, 10, v1'); e('v_cndmask_b32 v4, v4, v9, vcc')
    load_w(e, 20, rs, 32*rs, 4, 4)

def akv_body(e, tag, sc):
    e('s_lshl_b32 s18, s10, 12'); e(f's_add_u32 s18, s18, {KA}')
    e('s_cmp_lt_u32 s9, 2'); e(f's_cbranch_scc1 {tag}_W')
    for k in range(len(SITES)): site(e, k)
    if MID[0]: MID[0]()
    e(f's_branch {tag}_E'); e.label(f'{tag}_W')
    e('s_cmp_eq_u32 s9, 1'); e(f's_cbranch_scc1 {tag}_V')
    gemm(e, 20, False, False); epi_k(e)
    e(f's_branch {tag}_S')
    e.label(f'{tag}_V'); e.reset()
    gemm(e, 20, False, True); epi_v(e)
    e('v_mov_b32 v40, 0x3f803f80'); e('v_cmp_eq_u32 vcc, 10, v1')
    for k in range(4): e(f'v_cndmask_b32 v{32+k}, v{32+k}, v40, vcc')
    e('s_add_u32 s18, s18, 2048')
    e.label(f'{tag}_S')
    e(f'buffer_store_dwordx4 v[32:35], v0, {WS}, s18 offen {sc}'); e(f'buffer_store_dwordx4 v[36:39], v0, {WS}, s18 offen offset:1024 {sc}')
    e.label(f'{tag}_E')

def role_aq(e):
    lanes(e); aqkv_weights(e, False)
    e(f's_mov_b32 s12, {F_XA}'); e('s_lshl_b32 s13, s8, 2'); e(f's_add_u32 s13, s13, {F_AQ}'); e('s_mov_b32 s14, 0')
    e(f's_mov_b32 s29, {fbits(20**-0.5*math.log2(math.e))}')
    e('s_lshl_b32 s31, s8, 2'); e('s_add_u32 s31, s31, s9')
    def body():
        e('s_lshl_b32 s18, s10, 5'); e('s_add_u32 s18, s18, s31'); e('s_lshl_b32 s18, s18, 11'); e(f's_add_u32 s18, s18, {QA}')
        gemm(e, 20, False, False); epi_k(e, 's29')
        e(f'buffer_store_dwordx4 v[32:35], v0, {WS}, s18 offen sc1'); e(f'buffer_store_dwordx4 v[36:39], v0, {WS}, s18 offen offset:1024 sc1')
    gemm_loop(e, 'AQ', False, 0, 1, body, XNA, 40960, 2, 8, par_off(e, F_XA))

def role_akv(e):
    lanes(e); aqkv_weights(e, True)
    e(f's_mov_b32 s12, {F_XA}'); e(f's_mov_b32 s13, {F_AKV}'); e('s_mov_b32 s14, 0')
    gemm_loop(e, 'AK', False, 64, 1, lambda: akv_body(e, 'AKB', 'sc1'), XNA, 40960, 0, 8, par_off(e, F_XA))

def role_out(e, isA):
    lanes(e)
    if isA:
        srd(e, 24, A_WO, 640*1280); e('s_mov_b32 s30, 0'); e('s_mov_b32 s31, s8')
    else:
        srd(e, 24, B_WO, 4096*1280)
        e('s_mul_i32 s30, s8, 52'); e('s_lshr_b32 s30, s30, 8'); e('s_mul_i32 s19, s30, 5'); e('s_sub_u32 s31, s8, s19')
    e('v_mul_u32_u24 v4, 10240, v2'); e('v_lshl_add_u32 v4, v1, 2, v4'); e('v_mov_b32 v5, v4')
    if isA:
        e(f'v_mov_b32 v9, {OOB}')
        e('v_cmp_le_u32 vcc, 3, v2'); e('v_cndmask_b32 v4, v4, v9, vcc')
        e('v_cmp_le_u32 vcc, 2, v2'); e('v_cndmask_b32 v5, v5, v9, vcc')
    e(f's_mul_i32 s17, s30, {1024*1280}'); e('s_lshl_b32 s19, s31, 8'); e('s_add_u32 s17, s17, s19'); e('s_lshl_b32 s19, s9, 6'); e('s_add_u32 s17, s17, s19')
    load_w(e, 32, 1280, (20 if isA else 32)*1280, 4, 5)
    e('v_mul_u32_u24 v10, 2560, v1'); e('v_lshl_add_u32 v10, v2, 4, v10')
    e('s_lshl_b32 s29, s31, 9'); e('s_lshl_b32 s19, s9, 7'); e('s_add_u32 s29, s29, s19')
    e('s_mul_i32 s19, s30, 81920'); e('s_add_u32 s29, s29, s19'); e(f's_add_u32 s29, s29, {PA if isA else PB}')
    e('s_lshl_b32 s13, s8, 2'); e(f's_add_u32 s13, s13, {F_AO if isA else F_BO}')
    e('s_lshl_b32 s14, s30, 16')
    e('s_lshl_b32 s12, s30, 5'); e(f's_add_u32 s12, s12, {F_BA}')
    def body():
        gemm(e, 32, True, False)
        e(f's_mul_i32 s18, s10, {81920 if isA else 4*81920}'); e('s_add_u32 s18, s18, s29'); e(f's_add_u32 s19, s18, {16*2560}')
        for a in range(2):
            for i in range(4):
                for t in range(2): e(f'v_mov_b32 v{32+8*a+2*i+t}, v{ACC+8*a+4*t+i}')
            for hh in range(2):
                if not OPT.get('nost') or (a+hh == 0): e(f'buffer_store_dwordx4 {R(32+8*a+4*hh,4)}, v10, {WS}, s{18+a} offen offset:{64*hh} sc1')
    gemm_loop(e, 'AO' if isA else 'BO', True, 0, 1, body, OA if isA else OB, 65536 if isA else 262144, 1 if OPT.get('nost') else 4,
              32 if isA else 8, par_off(e, F_AT) if isA else None)

def wave_sum(e, x, t):
    dp = 'row_mask:0xf bank_mask:0xf'
    for sh in (8, 4, 2, 1): e(f'v_add_f32_dpp v{x}, v{x}, v{x} row_ror:{sh} {dp}')
    allred(e, 'v_add_f32', x, t)

def ln_token(e, xb):
    s, t = xb+15, xb+16
    e(f'v_add_f32 v{s}, v{xb}, v{xb+1}')
    for k in range(2, 10): e(f'v_add_f32 v{s}, v{s}, v{xb+k}')
    wave_sum(e, s, t)
    e(f'v_mul_f32 v{s}, {fbits(1/640)}, v{s}')
    for k in range(10): e(f'v_sub_f32 v{xb+k}, v{xb+k}, v{s}')
    e(f'v_mul_f32 v{s}, v{xb}, v{xb}')
    for k in range(1, 10): e(f'v_fmac_f32 v{s}, v{xb+k}, v{xb+k}')
    wave_sum(e, s, t)
    e(f'v_mov_b32 v{t}, {fbits(1e-5)}'); e(f'v_fmac_f32 v{t}, {fbits(1/640)}, v{s}')
    e(f'v_rsq_f32 v{t}, v{t}')
    for k in range(10): e(f'v_mul_f32 v{xb+k}, v{xb+k}, v{t}')
    for k in range(5): e(f'v_cvt_pk_bf16_f32 v{xb+10+k}, v{xb+2*k}, v{xb+2*k+1}')

def unpack(e, d, s):
    e(f'v_and_b32 v{d+1}, 0xffff0000, v{s}'); e(f'v_lshlrev_b32 v{d}, 16, v{s}')

def role_red(e, isA):
    lanes(e); nm = 'RA' if isA else 'RB'; NP = 1 if isA else 4; NT = 2 if isA else 1
    flagaddr(e, 3, 5 if isA else 20)
    e('v_lshrrev_b32 v4, 1, v0')
    e('v_lshrrev_b32 v6, 1, v1'); e('v_and_b32 v6, 3, v6'); e('v_lshlrev_b32 v5, 4, v6')
    e('v_lshrrev_b32 v6, 3, v1'); e('v_lshl_add_u32 v5, v6, 3, v5'); e('v_and_b32 v6, 1, v1'); e('v_lshl_add_u32 v5, v6, 2, v5')
    e('v_lshl_add_u32 v5, v2, 6, v5')
    e('s_lshr_b32 s30, s8, 1'); e('s_and_b32 s10, s8, 1')
    e('s_lshl_b32 s31, s30, 2'); e('s_add_u32 s31, s31, s9')
    if isA: e('s_lshl_b32 s31, s31, 1')
    srd(e, 24, A_X if isA else D_OUT, 2048*1280)
    e('s_lshl_b32 s13, s30, 2'); e('s_lshl_b32 s19, s10, 7'); e('s_add_u32 s13, s13, s19'); e(f's_add_u32 s13, s13, {F_XB if isA else F_XA}')
    e(f's_mov_b32 s12, {F_AO if isA else F_BO}')
    e.wait(lgkm=0)
    XO, XP, XF, PP = 16, 112, 128, 64
    e.label(f'{nm}_L')
    e('s_and_b32 s14, s10, 63'); e('s_lshl_b32 s14, s14, 5'); e('s_add_u32 s14, s14, s31'); e('s_mul_i32 s14, s14, 1280')
    e('s_lshr_b32 s15, s10, 6'); e(f's_mul_i32 s15, s15, {2*2048*1280}'); e('s_add_u32 s15, s15, s14'); e(f's_add_u32 s15, s15, {XR + (0 if isA else 2048*1280)}')
    e('s_add_u32 s16, s10, 1')
    wait_flag(e, 3, 's12', 's16', 9)
    e(f's_mul_i32 s18, s10, {NP*81920}'); e('s_mul_i32 s19, s31, 2560'); e('s_add_u32 s18, s18, s19'); e(f's_add_u32 s18, s18, {PA if isA else PB}')
    for p in range(NP*NT):
        for k in range(5): e(f'buffer_load_dwordx2 {R(PP+10*p+2*k,2)}, v4, {WS}, s18 offen offset:{512*k} sc1')
        if p+1 < NP*NT: e(f's_add_u32 s18, s18, {2560 if isA else 81920}')
    if isA:
        e('s_cmp_ge_u32 s10, 64'); e(f's_cbranch_scc1 {nm}_X')
        sv = e.save()
        for k in range(5*NT): e(f'buffer_load_dword v{XO+k}, v5, s[24:27], s14 offen offset:{256*k}')
        e(f's_branch {nm}_Y'); e.label(f'{nm}_X'); e.restore(sv)
    for k in range(5*NT): e(f'buffer_load_dword v{XO+k}, v5, {WS}, s15 offen offset:{256*k} sc1')
    if isA: e.label(f'{nm}_Y')
    for p in range(1, NP):
        for k in range(10): e(f'v_add_f32 v{PP+k}, v{PP+k}, v{PP+10*p+k}')
    for u in range(NT):
        for k in range(5):
            e(f'v_cvt_pk_bf16_f32 v{XP+5*u+k}, v{PP+10*u+2*k}, v{PP+10*u+2*k+1}')
            unpack(e, PP+10*u+2*k, XP+5*u+k); unpack(e, XF+20*u+2*k, XO+5*u+k)
        for k in range(10): e(f'v_add_f32 v{XF+20*u+k}, v{XF+20*u+k}, v{PP+10*u+k}')
        for k in range(5): e(f'v_cvt_pk_bf16_f32 v{XP+5*u+k}, v{XF+20*u+2*k}, v{XF+20*u+2*k+1}')
    e(f's_add_u32 s15, s15, {2048*1280}')
    if not isA:
        e('s_cmp_lt_u32 s10, 64'); e(f's_cbranch_scc1 {nm}_X')
        for k in range(5): e(f'buffer_store_dword v{XP+k}, v5, s[24:27], s14 offen offset:{256*k}')
        if TRACE[0]: e('s_add_u32 s16, s10, 65'); trace(e, 's16', 9)
        e(f's_branch {nm}_N'); e.label(f'{nm}_X')
    e('s_mul_i32 s18, s10, 40960'); e('s_mul_i32 s19, s31, 1280'); e('s_add_u32 s18, s18, s19'); e(f's_add_u32 s18, s18, {XNB if isA else XNA + 64*40960}')
    for u in range(NT):
        for k in range(5): unpack(e, XF+20*u+2*k, XP+5*u+k)
        ln_token(e, XF+20*u)
        for k in range(5): e(f'buffer_store_dword v{XF+20*u+10+k}, v5, {WS}, s18 offen offset:{1280*u+256*k} sc1')
    for k in range(5*NT): e(f'buffer_store_dword v{XP+k}, v5, {WS}, s15 offen offset:{256*k} sc1')
    e.wait(vm=0); e('s_barrier')
    e(f's_add_u32 s16, s10, {1 if isA else 65}')
    set_flag(e, 's13', 's16', 9)
    if not isA: e.label(f'{nm}_N')
    e('s_add_u32 s10, s10, 2'); e('s_cmp_lt_u32 s10, 128'); e(f's_cbranch_scc1 {nm}_L')
    e.wait(vm=0); e('s_endpgm')

def need_prog(e, sc, soff, need, t, two=False):
    lp = e.newlabel('NP'); dn = e.newlabel('ND')
    e(f's_cmp_ge_u32 {sc}, {need}'); e(f's_cbranch_scc1 {dn}')
    sv = e.save()
    e.label(lp)
    if two:
        e(f'buffer_load_dwordx2 {R(t,2)}, off, {WS}, {soff} sc1'); e(f'v_min_u32 v{t}, v{t}, v{t+1}')
    else: e(f'buffer_load_dword v{t}, off, {WS}, {soff} sc1')
    e(f'v_readfirstlane_b32 {sc}, v{t}')
    e(f's_cmp_ge_u32 {sc}, {need}'); e(f's_cbranch_scc1 {dn}')
    e('s_sleep 2')
    e('s_sub_u32 s20, s20, 1'); e('s_cmp_gt_i32 s20, 0'); e(f's_cbranch_scc1 {lp}')
    e.label(dn); e.restore(sv)

def role_att(e):
    lanes(e)
    e('s_lshr_b32 s31, s8, 1'); e('s_and_b32 s30, s8, 1')
    e('s_lshr_b32 s12, s31, 2'); e('s_lshl_b32 s12, s12, 2'); e(f's_add_u32 s12, s12, {F_AQ}')
    e('s_lshl_b32 s13, s30, 7'); e('s_lshl_b32 s19, s31, 2'); e('s_add_u32 s13, s13, s19'); e(f's_add_u32 s13, s13, {F_AT}')
    e(f's_mov_b32 s14, {F_AKV}'); e('s_mov_b32 s25, 0'); e('s_mov_b32 s26, 0')
    e('s_lshl_b32 s19, s9, 12'); e('v_add_u32 v4, s19, v0')
    e('v_lshlrev_b32 v5, 12, v2'); e('v_lshl_add_u32 v5, v1, 4, v5')
    e('s_lshl_b32 s19, s9, 11'); e('v_add_u32 v6, s19, v0')
    e('s_lshl_b32 s19, s9, 7'); e('v_lshlrev_b32 v7, 3, v1'); e('v_add_u32 v7, s19, v7')
    e('v_lshlrev_b32 v8, 7, v2'); e('v_lshl_add_u32 v8, v1, 3, v8')
    e(f's_mov_b32 s28, {fbits(2.0**-80)}'); e(f's_mov_b32 s29, {fbits(2.0**80)}')
    zero(e, 24, 8)
    e('s_mov_b32 s11, 0')
    e.label('AT_LAY')
    e('s_lshl_b32 s17, s8, 2'); e('s_cmp_eq_u32 s11, 0'); e('s_cselect_b32 s17, s17, 0'); e('s_add_u32 s17, s17, s9')
    for i in range(16):
        e('s_and_b32 s17, s17, 63'); e('s_add_u32 s16, s11, s17'); e('s_lshl_b32 s18, s16, 12'); e(f's_add_u32 s18, s18, {KA}'); e('s_add_u32 s16, s16, 1')
        need_prog(e, 's25', 's14', 's16', 9)
        for k in range(4): e(f'buffer_load_dwordx4 {R(16*i+4*k,4,"a")}, v0, {WS}, s18 offen offset:{1024*k} sc1')
        e('s_add_u32 s17, s17, 4')
        if i == 7: e.wait(vm=0)
    e('s_add_u32 s10, s11, s30')
    e.label('AT_U')
    e('s_add_u32 s16, s10, 1')
    need_prog(e, 's26', 's12', 's16', 9)
    e('s_lshl_b32 s18, s10, 5'); e('s_add_u32 s18, s18, s31'); e('s_lshl_b32 s18, s18, 11'); e(f's_add_u32 s19, s18, {QA}')
    e(f'buffer_load_dwordx4 v[16:19], v0, {WS}, s19 offen sc1'); e(f'buffer_load_dwordx4 v[20:23], v0, {WS}, s19 offen offset:1024 sc1')
    e('s_mov_b32 s15, 0')
    e.wait(vm=0)
    e.label('AT_M')
    def sco(i, kt, a, c=None):
        return f'{mf} {R(32+16*(i&1)+8*a+4*kt,4)}, {R(16*i+4*kt,4,"a")}, {R(16+4*a,4)}, {c if c is not None else R(24+4*a,4)}'
    def pv(i, a, t):
        d = R(72+8*a+4*t, 4)
        return f'{mf} {d}, {R(16*i+8+4*t,4,"a")}, {R(64+4*a,4)}, {d if i else 0}'
    for a in range(2):
        for kt in range(2): e(sco(0, kt, a))
    for i in range(16):
        b = 32+16*(i & 1)
        ms = {}
        if i: ms[1] = pv(i-1, 1, 0); ms[3] = pv(i-1, 1, 1)
        if i < 15:
            ms[5] = sco(i+1, 0, 0); ms[7] = sco(i+1, 1, 0); ms[18] = sco(i+1, 0, 1); ms[20] = sco(i+1, 1, 1)
        ms[14] = pv(i, 0, 0); ms[16] = pv(i, 0, 1)
        V = []
        for a in range(2):
            V += [f'v_exp_f32 v{b+8*a+k}, v{b+8*a+k}' for k in range(8)]
            V += [f'v_cvt_pk_bf16_f32 v{64+4*a+k}, v{b+8*a+2*k}, v{b+8*a+2*k+1}' for k in range(4)]
        for k, x in enumerate(V):
            if k in ms: e(ms[k])
            e(x)
    e(pv(15, 1, 0)); e(pv(15, 1, 1))
    for k in range(4): e(f'ds_write_b128 v4, {R(72+4*k,4)} offset:{1024*k}')
    e.barrier()
    e('ds_read_b32 v32, v5 offset:520'); e('ds_read_b32 v33, v5 offset:2568')
    for ww in range(4):
        for t in range(2): e(f'ds_read_b128 {R(40+8*ww+4*t,4)}, v6 offset:{4096*ww+1024*t}')
    allred(e, 'v_add_f32', 32, 34); allred(e, 'v_add_f32', 33, 34)
    e('v_cmp_lt_f32 s[32:33], s28, v32'); e('v_cmp_lt_f32 s[34:35], s28, v33')
    e('v_cmp_gt_f32 s[36:37], s29, v32'); e('v_cmp_gt_f32 s[38:39], s29, v33')
    e('s_nop 1')
    e('s_and_b64 s[32:33], s[32:33], s[34:35]'); e('s_and_b64 s[36:37], s[36:37], s[38:39]'); e('s_and_b64 s[32:33], s[32:33], s[36:37]')
    e('s_cmp_eq_u64 s[32:33], -1'); e('s_cbranch_scc1 AT_OK')
    e('s_cmp_lg_u32 s15, 0'); e('s_cbranch_scc1 AT_OK')
    sv = e.save()
    e.wait(lgkm=0)
    e('s_mov_b32 s15, 1')
    e('v_mov_b32 v10, 0xff800000'); e('v_mov_b32 v11, 0xff800000')
    for i in range(16):
        for a in range(2):
            for kt in range(2): e(sco(i, kt, a, 0))
        b = 32+16*(i & 1)
        for a in range(2):
            for k in range(4): e(f'v_max3_f32 v{10+a}, v{10+a}, v{b+8*a+2*k}, v{b+8*a+2*k+1}')
    allred(e, 'v_max_f32', 10, 12); allred(e, 'v_max_f32', 11, 12)
    e('ds_write_b64 v7, v[10:11] offset:16384')
    e.barrier()
    e('ds_read_b64 v[10:11], v8 offset:16384')
    allred(e, 'v_max_f32', 10, 12); allred(e, 'v_max_f32', 11, 12)
    for a in range(2):
        for k in range(4): e(f'v_sub_f32 v{24+4*a+k}, 0, v{10+a}')
    e('s_nop 1'); e('s_branch AT_M')
    e.label('AT_OK'); e.restore(sv)
    zero(e, 24, 8)
    e('s_cmp_ge_u32 s9, 2'); e('s_cbranch_scc1 AT_F')
    e('s_cmp_eq_u32 s9, 1'); e('s_cselect_b64 vcc, -1, 0'); e('v_cndmask_b32 v32, v32, v33, vcc')
    e('v_rcp_f32 v32, v32')
    for ww in range(1, 4):
        for k in range(8): e(f'v_add_f32 v{40+k}, v{40+k}, v{40+8*ww+k}')
    for k in range(8): e(f'v_mul_f32 v{40+k}, v{40+k}, v32')
    for k in range(4): e(f'v_cvt_pk_bf16_f32 v{36+k}, v{40+k}, v{44+k}')
    e('s_lshl_b32 s19, s9, 10'); e('s_add_u32 s18, s18, s19'); e(f's_add_u32 s18, s18, {OA}')
    e(f'buffer_store_dwordx4 v[36:39], v0, {WS}, s18 offen sc1')
    e.label('AT_F')
    e.wait(vm=0, lgkm=0); e('s_barrier')
    set_flag(e, 's13', 's16', 9)
    e('s_add_u32 s10, s10, 2'); e('s_sub_u32 s19, s10, s11'); e('s_cmp_lt_u32 s19, 64'); e('s_cbranch_scc1 AT_U')
    e('s_add_u32 s11, s11, 64'); e('s_cmp_lt_u32 s11, 128'); e('s_cbranch_scc1 AT_LAY')
    e.wait(vm=0); e('s_endpgm')

def role_batt(e):
    LQ, LM = 131072, 139264
    lanes(e)
    srd(e, 24, B_WQ, 640*8192)
    e('v_lshlrev_b32 v4, 16, v2'); e('v_lshl_add_u32 v4, v1, 2, v4')
    e('s_lshl_b32 s17, s8, 8'); e('s_lshl_b32 s19, s9, 6'); e('s_add_u32 s17, s17, s19')
    load_w(e, 20, 8192, 32*8192, 4, 4)
    xn_setup(e)
    e('s_lshl_b32 s12, s8, 7'); e(f's_add_u32 s14, s12, {F_CH}'); e(f's_add_u32 s12, s12, {F_KV}')
    e('s_lshl_b32 s13, s8, 2'); e(f's_add_u32 s13, s13, {F_BA}')
    e('s_mov_b32 s25, 0'); e('s_mov_b32 s26, 0')
    e('s_lshr_b32 s30, s9, 1'); e('s_and_b32 s31, s9, 1')
    e('s_lshl_b32 s19, s9, 10'); e(f's_add_u32 s19, s19, {LQ}'); e('v_add_u32 v7, s19, v0')
    e('s_lshl_b32 s19, s30, 12'); e(f's_add_u32 s19, s19, {LQ}'); e('v_add_u32 v8, s19, v0')
    e('v_lshrrev_b32 v10, 2, v1'); e('v_lshlrev_b32 v10, 8, v10'); e('v_lshl_add_u32 v10, v2, 6, v10')
    e('v_and_b32 v11, 1, v1'); e('v_lshl_add_u32 v10, v11, 2, v10'); e(f'v_add_u32 v10, {LM}, v10')
    e('s_lshl_b32 s19, s31, 11'); e(f's_add_u32 s19, s19, {LM+8}'); e('v_add_u32 v11, s19, v0')
    e('v_mov_b32 v12, v0')
    e('s_lshl_b32 s19, s31, 12'); e('v_add_u32 v13, s19, v0')
    e('s_lshl_b32 s19, s30, 4'); e('v_add_u32 v14, s19, v1'); e('v_lshlrev_b32 v15, 2, v2'); e('v_sub_u32 v14, v14, v15')
    for k in range(8): e(f'v_cmp_gt_i32 s[{40+2*k}:{41+2*k}], {16*(k>>2)+(k&3)}, v14')
    e(f's_mov_b32 s21, {fbits(128**-0.5*math.log2(math.e))}')
    e('s_lshl_b32 s11, s9, 10')
    set_rot(e, False, 's8')
    def base(gs):
        e(f's_add_u32 s16, {gs}, 1')
        need_prog(e, 's25', 's12', 's16', 14, True)
        e(f's_mul_i32 s36, {gs}, 40960'); e(f's_add_u32 s36, s36, {XNB}')
        e(f's_lshl_b32 s18, {gs}, 5'); e(f's_add_u32 s18, s18, s8'); e(f's_mul_i32 s18, s18, {SEG}'); e('s_lshl_b32 s19, s9, 10'); e('s_add_u32 s18, s18, s19')
    def kvp(gb, lo, last):
        def f():
            e(f's_add_u32 m0, s11, {lo}'); e(f's_add_u32 s19, s18, {gb}')
            e(f'buffer_load_dwordx4 v0, {WS}, s19 offen sc1 lds')
            if last: e('s_xor_b32 s11, s11, 0x10000')
        return f
    pieces = [lambda: xn_dma1(e)]*10 + [kvp(KX, 40960, 0), kvp(KX+4096, 45056, 0), kvp(VX, 49152, 0), kvp(VX+4096, 53248, 1)]
    e('s_mov_b32 s10, 0')
    e.label('BA_LAY')
    base('s10')
    for p in pieces: p()
    e.wait(vm=0)
    e.label('BA_L')
    e.wait(lgkm=0); e('s_barrier')
    e('s_add_u32 s28, s10, 1'); e('s_and_b32 s29, s28, 63'); e('s_mov_b32 s15, s29')
    e('s_cmp_eq_u32 s29, 0'); e('s_cbranch_scc1 BA_Q')
    base('s28')
    e.label('BA_Q'); e.reset()
    SITES[:] = pieces
    gemm(e, 20, False, False); epi_k(e)
    SITES[:] = []
    e('ds_write_b128 v7, v[32:35]'); e('ds_write_b128 v7, v[36:39] offset:4096')
    e.wait(vm=0, lgkm=0); e('s_barrier')
    set_flag(e, 's13', 's10', 9)
    for ks in range(4):
        e(f'ds_read_b128 {R(64+4*ks,4)}, v8 offset:{1024*ks}')
        for b in range(2): e(f'ds_read_b128 {R(80+16*b+4*ks,4)}, v12 offset:{40960+(4*b+ks)*1024}')
    S = 16
    for ks in range(4):
        for b in range(2): e(f'{mf} {R(S+4*b,4)}, {R(80+16*b+4*ks,4)}, {R(64+4*ks,4)}, {R(S+4*b,4) if ks else 0}')
    for k in range(4): e(f'ds_read_b128 {R(80+4*k,4)}, v13 offset:{49152+1024*k}')
    need_prog(e, 's26', 's14', 's28', 14)
    e('s_lshl_b32 s18, s10, 5'); e('s_add_u32 s18, s18, s8'); e(f's_mul_i32 s19, s18, {SEG}'); e('s_lshl_b32 s16, s9, 10'); e('s_add_u32 s19, s19, s16'); e(f's_add_u32 s19, s19, {KVM}')
    e(f's_add_u32 m0, s16, {LM}')
    e(f'buffer_load_dwordx4 v0, {WS}, s19 offen sc1 lds')
    e('v_mov_b32 v15, 0xff800000')
    for k in range(8): e(f'v_cndmask_b32 v{S+k}, v{S+k}, v15, s[{40+2*k}:{41+2*k}]')
    for k in range(4): e(f'v_mov_b32 v{28+k}, 0x3f803f80')
    e.wait(vm=0, lgkm=0); e('s_barrier')
    for ks in range(4):
        e(f'v_add_u32 v14, {1024*ks}, v10')
        e(f'ds_read2_b32 {R(96+4*ks,2)}, v14 offset0:0 offset1:4'); e(f'ds_read2_b32 {R(98+4*ks,2)}, v14 offset0:8 offset1:12')
    e('ds_read_b64 v[112:113], v11'); e('ds_read_b64 v[114:115], v11 offset:1024')
    Sm = 24
    for ks in range(4): e(f'{mf} {R(Sm,4)}, {R(96+4*ks,4)}, {R(64+4*ks,4)}, {R(Sm,4) if ks else 0}')
    sc = [S+k for k in range(10)]
    e(f'v_max3_f32 v14, v{sc[0]}, v{sc[1]}, v{sc[2]}')
    for k in (3, 5, 7): e(f'v_max3_f32 v14, v14, v{sc[k]}, v{sc[k+1]}')
    e(f'v_max_f32 v14, v14, v{sc[9]}')
    allred(e, 'v_max_f32', 14, 15)
    e('v_mul_f32 v14, s21, v14')
    for r in sc: e(f'v_fma_f32 v{r}, v{r}, s21, -v14')
    for r in sc: e(f'v_exp_f32 v{r}, v{r}')
    P = 32
    for k in range(5): e(f'v_cvt_pk_bf16_f32 v{P+k}, v{S+2*k}, v{S+2*k+1}')
    e(f'v_mov_b32 v{P+5}, 0'); e(f'v_mov_b32 v{P+6}, 0'); e(f'v_mov_b32 v{P+7}, v{P+4}')
    e(f'{mf} v[16:19], v[28:31], {R(P,4)}, 0')
    for k in range(4): e(f'{mf} {R(40+4*k,4)}, {R(80+4*k,4)}, {R(P,4)}, 0')
    e(f'{m16} v[16:19], v[28:29], {R(P+4,2)}, v[16:19]')
    for k in range(4):
        e(f'{m16} {R(40+4*k,4)}, {R(112+2*(k>>1),2)}, {R(P+4+2*(k&1),2)}, {R(40+4*k,4)}')
    e('v_rcp_f32 v14, v16')
    e('s_lshl_b32 s18, s18, 13'); e('s_lshl_b32 s19, s31, 12'); e('s_add_u32 s18, s18, s19'); e('s_lshl_b32 s19, s30, 10'); e('s_add_u32 s18, s18, s19'); e(f's_add_u32 s18, s18, {OB}')
    for sl in range(2):
        for k in range(8): e(f'v_mul_f32 v{40+8*sl+k}, v{40+8*sl+k}, v14')
        for k in range(4): e(f'v_cvt_pk_bf16_f32 v{56+4*sl+k}, v{40+8*sl+k}, v{44+8*sl+k}')
        e(f'buffer_store_dwordx4 {R(56+4*sl,4)}, v0, {WS}, s18 offen offset:{2048*sl} sc1')
    for r in (5, 6, 12, 13): e(f'v_xor_b32 v{r}, 0x10000, v{r}')
    e('s_mov_b32 s10, s28')
    e('s_cmp_lg_u32 s29, 0'); e('s_cbranch_scc1 BA_L')
    e.wait(vm=0, lgkm=0); e('s_barrier')
    set_flag(e, 's13', 's10', 9)
    e('s_cmp_lt_u32 s10, 128'); e('s_cbranch_scc1 BA_LAY')
    e.wait(vm=0); e('s_endpgm')

def kernel0(e):
    e('s_cmp_ge_u32 s2, 64'); e('s_cbranch_scc1 K0_END')
    e(f's_load_dwordx2 s[4:5], s[0:1], {D_WS}'); e(f's_mov_b32 s6, {WS_BYTES}'); e('s_mov_b32 s7, 0x20000')
    e('v_lshrrev_b32 v1, 6, v0'); e('v_readfirstlane_b32 s9, v1')
    e('v_lshlrev_b32 v10, 4, v0')
    lanes(e)
    srd(e, 28, A_X, 2048*1280)
    e('v_lshrrev_b32 v11, 2, v0')
    e('s_lshl_b32 s14, s2, 5'); e('s_lshl_b32 s19, s9, 3'); e('s_add_u32 s14, s14, s19'); e('s_mul_i32 s14, s14, 1280')
    for tk in range(8):
        e(f's_add_u32 s19, s14, {tk*1280}')
        for k in range(5): e(f'buffer_load_dword v{128+5*tk+k}, v11, s[28:31], s19 offen offset:{256*k}')
    zero(e, 12, 4, -1)
    e('s_and_b32 s18, s2, 31'); e('s_mul_i32 s18, s18, 10240'); e('s_lshr_b32 s19, s2, 5'); e('s_lshl_b32 s19, s19, 19'); e('s_add_u32 s18, s18, s19'); e(f's_add_u32 s18, s18, {PART}')
    for k in (0, 4096, 6144):
        e(f's_add_u32 s19, s18, {k}'); e(f'buffer_store_dwordx4 v[12:15], v10, {WS}, s19 offen')
    e('s_lshl_b32 s19, s2, 10'); e(f's_add_u32 s19, s19, {MEMR}'); e(f'buffer_store_dwordx4 v[12:15], v0, {WS}, s19 offen')
    e('s_cmp_ge_u32 s2, 3'); e('s_cbranch_scc1 K0_NF')
    sv = e.save()
    e('s_lshl_b32 s19, s2, 12'); e('v_add_u32 v16, s19, v10'); e('v_and_b32 v16, 0xfdff, v16'); e('v_lshrrev_b32 v16, 8, v16')
    e(f'v_cmp_eq_u32 vcc, {F_XA>>8}, v16'); e('v_cndmask_b32 v16, 0, 64, vcc')
    for k in range(1, 4): e(f'v_mov_b32 v{16+k}, v16')
    e(f'buffer_store_dwordx4 v[16:19], v10, {WS}, s19 offen')
    e.wait(vm=0)
    e.label('K0_NF'); e.restore(sv)
    aqkv_weights(e, True)
    xn_setup(e)
    e(f's_add_u32 s14, s14, {XNA}')
    e('v_lshrrev_b32 v12, 9, v0'); e('v_lshlrev_b32 v12, 12, v12'); e('s_lshl_b32 s19, s9, 10'); e('v_add_u32 v12, s19, v12')
    e('v_and_b32 v13, 12, v11'); e('v_add_u32 v12, v12, v13'); e('v_and_b32 v13, 0x70, v11')
    for tk in range(8):
        for k in range(5): unpack(e, 32+2*k, 128+5*tk+k)
        ln_token(e, 32)
        e(f's_add_u32 s19, s14, {tk*1280}')
        e(f'v_xor_b32 v14, {tk*16}, v13'); e('v_add_u32 v14, v14, v12')
        for k in range(5):
            e(f'buffer_store_dword v{42+k}, v11, {WS}, s19 offen offset:{256*k}')
            e(f'ds_write_b32 v14, v{42+k} offset:{8192*k + tk*128}')
    e.barrier()
    e('s_mov_b32 s10, s2')
    akv_body(e, 'K0B', '')
    e.wait(vm=0)
    e.label('K0_END')
    e('s_endpgm')
```

```python
import sys, json, re
from em import Em
from layout import *
import chain, workers as W
cfg = json.loads(sys.argv[2]) if len(sys.argv) > 2 else {}
NAME = 'interleave_layers__grouped_kv_mqa__memory_aug_recurrent_mem_tr__prompt_kernel'
e = Em()
W.DF[0] = cfg.get('df', 'sc1'); W.OPT.update(cfg)
W.TRACE[0] = cfg.get('stamp', 0)
e.raw('.text\n.p2align 8\nprep_kernel:')
W.kernel0(e)
e.raw(f'.p2align 8\n{NAME}:')
e.reset()
e('s_cmp_ge_u32 s2, 256'); e('s_cbranch_scc1 L_end')
e(f's_load_dwordx2 s[4:5], s[0:1], {D_WS}'); e(f's_load_dwordx2 s[36:37], s[0:1], {D_DBG}')
e(f's_mov_b32 s6, {WS_BYTES}'); e('s_mov_b32 s7, 0x20000')
e('s_getreg_b32 s38, hwreg(HW_REG_XCC_ID)'); e('s_and_b32 s38, s38, 15')
if cfg.get('fakexcc'): e(f's_cmp_lt_u32 s2, {cfg["fakexcc"]}'); e('s_cselect_b32 s38, s38, 9')
e('v_lshrrev_b32 v1, 6, v0'); e('v_readfirstlane_b32 s9, v1')
e.wait(lgkm=0)
e('s_cmp_lg_u32 s9, 0'); e('s_cbranch_scc1 L_el')
e('s_min_u32 s38, s38, 8')
e('v_mov_b32 v3, 1'); e('s_lshl_b32 s22, s38, 2'); e('v_mov_b32 v4, s22')
e('s_mov_b64 exec, 1')
e('global_atomic_add v5, v4, v3, s[36:37] sc0')
e('v_readfirstlane_b32 s8, v5')
e('s_mov_b64 exec, -1')
e('s_cmp_ge_u32 s8, 32'); e('s_cbranch_scc1 L_ov')
e('s_lshl_b32 s22, s38, 5'); e('s_add_u32 s8, s8, s22')
e('s_cmp_lt_u32 s38, 8'); e('s_cbranch_scc1 L_pub')
e.label('L_ov')
e('v_mov_b32 v4, 0'); e('s_mov_b64 exec, 1')
e('global_atomic_add v5, v4, v3, s[36:37] offset:64 sc0')
e('v_readfirstlane_b32 s23, v5')
e('s_mov_b64 exec, -1')
e('v_and_b32 v4, 15, v0'); e('v_lshlrev_b32 v4, 2, v4'); e('s_mov_b32 s20, 400000')
e.label('L_ow')
e('global_load_dword v5, v4, s[36:37] sc1')
e('s_mov_b32 s22, 0')
for i in range(9): e(f'v_readlane_b32 s{40+i}, v5, {i}')
for i in range(9): e(f's_add_u32 s22, s22, s{40+i}')
e('s_cmp_ge_u32 s22, 256'); e('s_cbranch_scc1 L_og')
e('s_sleep 2'); e('s_sub_u32 s20, s20, 1'); e('s_cmp_gt_i32 s20, 0'); e('s_cbranch_scc1 L_ow')
e.label('L_og')
for i in range(8):
    e(f's_min_u32 s22, s{40+i}, 32'); e('s_add_u32 s8, s22, s23')
    e(f's_cmp_lt_u32 s8, 32'); e(f's_cbranch_scc0 L_oh{i}')
    e(f's_add_u32 s8, s8, {32*i}'); e('s_branch L_pub')
    e.label(f'L_oh{i}')
    e('s_sub_u32 s23, s8, 32')
e('s_mov_b32 s8, 1000')
e.label('L_pub')
e('v_mov_b32 v4, 0'); e('v_mov_b32 v5, s8')
e('ds_write_b32 v4, v5'); e.wait(lgkm=0)
e.label('L_el')
e('s_barrier'); e('v_mov_b32 v4, 0'); e('ds_read_b32 v5, v4'); e('v_readfirstlane_b32 s8, v5'); e('s_barrier')
roles = [('CH', 32), ('AT', 64), ('KV', 64), ('BA', 32), ('BO', 20), ('AO', 10), ('AK', 1), ('XX', 1), ('AQ', 8), ('RA', 8), ('RB', 16)]
open('roles.json','w').write(json.dumps(roles))
if cfg.get('stamp'):
    e('s_lshl_b32 s90, s8, 10'); e(f's_add_u32 s90, s90, {DUMMY+0x20000}'); e('s_mov_b32 s16, 255'); W.trace(e, 's16', 9); e.wait(vm=0)
def far(lbl):
    e.raw(f'    s_getpc_b64 s[34:35]\n    s_add_u32 s34, s34, {lbl}-.\n    s_addc_u32 s35, s35, 0\n    s_setpc_b64 s[34:35]')
for nm, n in roles:
    e(f's_cmp_ge_u32 s8, {n}'); e(f's_cbranch_scc1 N_{nm}')
    far(f'R_{nm}') if nm != 'XX' else e('s_endpgm')
    e.label(f'N_{nm}')
    e(f's_sub_u32 s8, s8, {n}')
e.label('L_end')
e('s_endpgm')
for nm, f in (('AT', W.role_att), ('AQ', W.role_aq), ('KV', W.role_kv), ('AO', lambda e: W.role_out(e, True)), ('RA', lambda e: W.role_red(e, True)),
              ('BA', W.role_batt), ('BO', lambda e: W.role_out(e, False)), ('RB', lambda e: W.role_red(e, False)), ('AK', W.role_akv)):
    e.label(f'R_{nm}'); e.reset(); f(e)
e.label('R_CH')
stamp = cfg.get('stamp', 0)
if stamp: e('s_memrealtime s[80:81]'); e('s_mov_b32 s86, 0'); e('s_mov_b32 s87, 0'); e.wait(lgkm=0)
for w in range(1, 4):
    e(f's_cmp_lg_u32 s9, {w}'); e(f's_cbranch_scc1 L_nw{w}'); far(f'L_w{w}'); e.label(f'L_nw{w}')
for w in range(4):
    e.label(f'L_w{w}'); e.reset()
    P = chain.plan(w, cfg)
    chain.prologue(e, w, P[5])
    lp = f'L_md{w}'
    e('v_lshrrev_b32 v12, 2, v0'); e('v_and_b32 v12, 60, v12')
    e.label(lp)
    e('global_load_dword v13, v12, s[36:37] sc1')
    for i in range(9): e(f'v_readlane_b32 s{40+i}, v13, {i}')
    e('s_cmp_ge_u32 s40, 32'); e(f's_cbranch_scc1 L_fa{w}')
    for i in range(1, 9): e(f's_add_u32 s40, s40, s{40+i}')
    e('s_cmp_ge_u32 s40, 256'); e(f's_cbranch_scc1 L_sl{w}')
    e('s_sleep 2'); e('s_sub_u32 s20, s20, 1'); e('s_cmp_gt_i32 s20, 0'); e(f's_cbranch_scc1 {lp}')
    e.label(f'L_sl{w}')
    chain.steps(e, w, P, st='sc1', cfg=cfg); e('s_endpgm')
    e.raw('.p2align 6')
    e.label(f'L_fa{w}'); e.reset()
    if stamp: e('s_memrealtime s[82:83]'); e.wait(lgkm=0)
    chain.steps(e, w, P, cfg=cfg, stamp=stamp)
    if stamp:
        for i, r in enumerate((82, 84, 85, 86, 87)): e(f's_sub_u32 s{r}, s{r}, s80'); e(f'v_mov_b32 v{16+i}, s{r}')
        e('v_mov_b32 v21, s20')
        for i in range(8): e(f'v_mov_b32 v{22+i}, s{70+i}')
        e(f's_lshl_b32 s22, s8, 8'); e(f's_add_u32 s22, s22, {DUMMY+0x10000+64*w}')
        for i in range(4): e(f'buffer_store_dwordx4 v[{16+4*i}:{19+4*i}], off, s[4:7], s22 offset:{16*i}')
        e.wait(vm=0)
    e('s_endpgm')
body = e.text()
cnt = {}
for l in body.split('\n'):
    m = re.match(r'    ([a-z_0-9]+) ', l)
    if m: cnt[m.group(1)] = cnt.get(m.group(1), 0) + 1
al = {}
for i, (op, c) in enumerate(sorted(cnt.items(), key=lambda x: -x[1]*len(x[0]))[:26]): al[op] = 'Z' + chr(97+i)
out = []
for l in body.split('\n'):
    m = re.match(r'    ([a-z_0-9]+) (.*)', l)
    if m and m.group(1) in al and not cfg.get('nocomp'): out.append(al[m.group(1)] + ' ' + m.group(2).replace(', ', ','))
    else: out.append(l.strip() if l.startswith('    ') else l)
hdr = f'''; memory-augmented recurrent transformer / MQA stack: prep kernel + persistent role-specialised kernel
; @launch kernel=prep_kernel grid=(64,1,1) block=(256,1,1) lds=0
; @launch kernel={NAME} grid=(256,1,1) block=(256,1,1) lds=163840
.amdgcn_target "amdgcn-amd-amdhsa--gfx950"
'''
mac = ''.join(f'.macro {a} x:vararg\n{op} \\x\n.endm\n' for op, a in al.items())
def kd(n, sg): return f''' .amdhsa_kernel {n}
  .amdhsa_next_free_vgpr 512
  .amdhsa_next_free_sgpr {sg}
  .amdhsa_accum_offset 256
  .amdhsa_group_segment_fixed_size 0
  .amdhsa_kernarg_size 120
  .amdhsa_user_sgpr_count 2
  .amdhsa_user_sgpr_kernarg_segment_ptr 1
  .amdhsa_system_sgpr_workgroup_id_x 1
.end_amdhsa_kernel
'''[1:]
tail = '.section .rodata,"a"\n.p2align 6\n' + kd('prep_kernel', 96) + '.p2align 6\n' + kd(NAME, 96)
open(sys.argv[1], 'w').write(hdr + mac + '\n'.join(out) + tail)
```

```python
from em import Em, R
from layout import *
import math, struct

def fbits(x): return struct.unpack('<I', struct.pack('<f', x))[0]

L_MEM = 0; L_O = 0; L_KX = 10240; L_QK = 18432; L_SEL = 23040; L_MISC = 24064; L_W = 24576
QS = 288; L_K = L_QK + 8*QS
Q0, Q1, VA = 16, 24, 32
ABUF = [12, 40, 44]
X = [48, 56, 64, 72]
OWN = [[0,1,2],[3,4,5],[6,7],[8,9]]
WS = 's[4:7]'
NSCR = 9
BLK = SEG

def plan(w, cfg={}):
    own = OWN[w]
    order = own + [c % 10 for c in range(own[-1]+1, own[-1]+1+10-len(own))]
    qk = []
    for j, c in enumerate(order):
        if j < 8: qk += [(m, t, c) for (m, t) in (('q',0),('q',1),('k',0),('k',1))]
        if j < 7: qk += [('v',0,c),('v',1,c)]
    qk += [(m, t, order[j]) for m in 'qk' for j in (8, 9) for t in (0, 1)]
    for j in (9, 8, 7): qk += [('v',0,order[j]),('v',1,order[j])]
    o = [('o', t, c) for t in (8,9,0,1,2,3,4,5,6,7) for c in (0,1)]
    qs = [[(0,'S'),(26,'S'),(32,'L'),(59,'S')],
          [(1,'S'),(7,'L'),(35,'S'),(41,'L'),(47,'L'),(53,'L')],
          [(2,'L'),(8,'L'),(13,'L'),(19,'L'),(45,'S'),(51,'L')],
          [(3,'L'),(9,'L'),(15,'L'),(21,'L'),(27,'L'),(52,'S')]]
    os_ = [[(0,'S'),(7,'L')], [(1,'S'),(8,'L')]]
    if cfg.get('early', 1):
        qs[2][0] = (2,'S'); qs[3][0] = (3,'S'); os_ = [[(0,'L'),(7,'L')], [(1,'L'),(8,'L')]]
    if cfg.get('ev', 0):
        qs = [[(0,'S'),(24,'S'),(29,'L'),(34,'L'),(59,'S')],
              [(1,'S'),(7,'L'),(36,'S'),(41,'L'),(46,'L'),(51,'L'),(55,'L')],
              [(2,'S'),(8,'L'),(13,'L'),(18,'L'),(23,'L'),(28,'L'),(33,'L')],
              [(3,'S'),(30,'S'),(54,'S')]]
    def mk(sl):
        u = []
        for k, l in enumerate(sl):
            for i, (p, ty) in enumerate(l): u.append((p, ty, k, l[i-1][0] if i else None))
        return u
    qu, ou = mk(qs), mk(os_)
    loc = {}; nl = ns = 0
    for lst, us in ((qk, qu), (o, ou)):
        for (p, ty, sl, ia) in us:
            if ty == 'L': loc[lst[p]] = ('L', nl*2048); nl += 1
            else: loc[lst[p]] = ('S', ns); ns += 1
    assert nl == 17 and ns == 9, (nl, ns)
    res = [f for f in o if f not in loc] + [f for f in qk if f not in loc]
    assert len(res) == 54, len(res)
    for i, f in enumerate(res):
        loc[f] = ('R', 'a', 8*i) if i < 32 else ('R', 'v', 80 + 8*(i-32))
    return order, qk, o, qu, ou, loc

def srd(e, base, koff, nbytes):
    e(f's_load_dwordx2 s[{base}:{base+1}], s[0:1], {koff}')
    e(f's_mov_b32 s{base+2}, {nbytes}')
    e(f's_mov_b32 s{base+3}, 0x20000')

def put_frag(e, loc, f, srcs):
    L = loc[f]
    put_frag.k ^= 1
    tmp = 64 + 8*put_frag.k
    for j, (r1, r0, sel) in enumerate(srcs):
        d = L[2]+j if (L[0] == 'R' and L[1] == 'v') else tmp+j
        e(f'v_perm_b32 v{d}, v{r1}, v{r0}, {sel}')
    if L[0] == 'R' and L[1] == 'a':
        for j in range(8): e(f'v_accvgpr_write_b32 a{L[2]+j}, v{tmp+j}')
    elif L[0] == 'L':
        e(f'ds_write_b128 v5, {R(tmp,4)} offset:{L[1]}')
        e(f'ds_write_b128 v5, {R(tmp+4,4)} offset:{L[1]+1024}')
    elif L[0] == 'S':
        e(f's_add_u32 s19, s18, {L[1]*2048}')
        e(f'buffer_store_dwordx4 {R(tmp,4)}, v0, {WS}, s19 offen')
        e(f'buffer_store_dwordx4 {R(tmp+4,4)}, v0, {WS}, s19 offen offset:1024')
put_frag.k = 0

def krow(j, b): return 32*(j>>2) + 2*((j>>1)&1) + 8*(j&1) + b

def prologue(e, w, loc):
    e('v_and_b32 v0, 63, v0')
    e('v_and_b32 v12, 15, v0')
    e('v_lshrrev_b32 v13, 4, v0')
    e('v_lshlrev_b32 v0, 4, v0')
    e('s_mov_b32 s22, 0x05040100')
    e('s_mov_b32 s23, 0x07060302')
    e(f'v_add_u32 v5, {L_W + w*17*2048}, v0')
    e(f's_mul_i32 s18, s8, {4*NSCR*2048}')
    e(f's_add_u32 s18, s18, {SCR + w*NSCR*2048}')
    e('v_lshrrev_b32 v14, 1, v13')
    e('v_lshlrev_b32 v14, 4, v14')
    e('v_and_b32 v1, 1, v13')
    e('v_lshl_add_u32 v14, v1, 2, v14')
    srd(e, 24, B_WO, 32*128*640*2)
    e('v_mul_u32_u24 v2, 1280, v14')
    e('v_lshl_add_u32 v3, v12, 2, v2')
    e('v_lshl_add_u32 v2, v12, 4, v2')
    e(f'v_add_u32 v2, {256*w}, v2')
    e(f'v_add_u32 v3, {1024+64*w}, v3')
    e('s_mul_i32 s17, s8, 163840')
    for c in range(2):
        for j in range(8):
            for b in range(2):
                e(f's_add_u32 s19, s17, {(64*c+krow(j,b))*1280}')
                e(f'buffer_load_dwordx4 {R(80+c*64+(2*j+b)*4,4)}, v2, s[24:27], s19 offen')
                e(f'buffer_load_dword v{208+c*16+2*j+b}, v3, s[24:27], s19 offen')
    for c in range(2):
        for t in range(8):
            put_frag(e, loc, ('o',t,c), [(80+c*64+(2*j+1)*4+(t>>1), 80+c*64+(2*j)*4+(t>>1), 's23' if t&1 else 's22') for j in range(8)])
        for t in (8,9):
            put_frag(e, loc, ('o',t,c), [(208+c*16+2*j+1, 208+c*16+2*j, 's23' if t&1 else 's22') for j in range(8)])
    srd(e, 24, B_WQ, 640*4096*2); srd(e, 28, B_WK, 640*4096*2); srd(e, 32, B_WV, 640*4096*2)
    e('v_lshlrev_b32 v2, 13, v14')
    e('v_lshl_add_u32 v2, v12, 2, v2')
    e(f'v_add_u32 v2, {64*w}, v2')
    e('s_lshl_b32 s17, s8, 8')
    units = [(m, c) for m in 'qkv' for c in range(10)]
    def issue(u):
        m, c = units[u]; sb = {'q':24,'k':28,'v':32}[m]
        for j in range(8):
            for b in range(2):
                e(f's_add_u32 s19, s17, {(64*c+krow(j,b))*8192}')
                e(f'buffer_load_dword v{16+(u%3)*16+2*j+b}, v2, s[{sb}:{sb+3}], s19 offen')
    for u in range(3): issue(u)
    for u, (m, c) in enumerate(units):
        bb = 16+(u%3)*16
        for t in range(2):
            put_frag(e, loc, (m,t,c), [(bb+2*j+1, bb+2*j, 's23' if t else 's22') for j in range(8)])
        if u+3 < len(units): issue(u+3)
    e('v_lshrrev_b32 v14, 1, v12'); e('v_and_b32 v14, 1, v14')
    e('v_mov_b32 v1, 0x4444'); e('v_mov_b32 v15, 0xeeee')
    e('v_cmp_eq_u32 vcc, 1, v14'); e('v_cndmask_b32 v1, v1, v15, vcc')
    e('v_lshrrev_b32 v15, 2, v12'); e('v_lshlrev_b32 v15, 1, v15'); e('v_and_b32 v16, 1, v12'); e('v_add_u32 v15, v15, v16')
    e('v_mul_u32_u24 v7, 1280, v15'); e('v_lshl_add_u32 v7, v13, 5, v7'); e('v_lshl_add_u32 v7, v14, 4, v7')
    e(f'v_mul_u32_u24 v10, {QS}, v15'); e('v_lshl_add_u32 v10, v13, 4, v10'); e(f'v_add_u32 v10, {L_K}, v10')
    e('v_and_b32 v16, 7, v12')
    e(f'v_mul_u32_u24 v9, {QS}, v16'); e('v_lshl_add_u32 v9, v13, 4, v9'); e(f'v_add_u32 v9, {L_QK}, v9')
    e(f'v_mul_u32_u24 v8, {2*QS}, v13'); e('v_lshl_add_u32 v8, v12, 2, v8'); e(f'v_add_u32 v8, {L_QK+64*w}, v8')
    e('v_lshrrev_b32 v17, 1, v16'); e('v_lshlrev_b32 v17, 2, v17'); e('v_and_b32 v18, 1, v16'); e('v_add_u32 v17, v17, v18')
    e('v_and_b32 v18, 1, v13'); e('v_lshl_add_u32 v17, v18, 1, v17')
    e('v_lshrrev_b32 v18, 1, v13'); e('v_lshl_add_u32 v17, v18, 4, v17')
    e('v_lshlrev_b32 v11, 4, v17'); e(f'v_add_u32 v11, {L_O + (w>>1)*1024 + (w&1)*512}, v11')
    e('s_mul_i32 s19, s8, 10240')
    e('v_mul_u32_u24 v2, 2560, v13'); e('v_add_u32 v2, s19, v2')
    e('v_lshl_add_u32 v3, v12, 2, v2'); e(f'v_add_u32 v3, {1024+64*w}, v3')
    e('v_lshl_add_u32 v2, v12, 4, v2'); e(f'v_add_u32 v2, {256*w}, v2')
    e('v_lshrrev_b32 v16, 3, v12'); e('v_lshl_add_u32 v16, v13, 1, v16')
    e('v_and_b32 v17, 7, v12')
    e(f's_lshl_b32 s19, s8, 7'); e(f's_add_u32 s19, s19, {32*128*w}')
    e('v_mul_u32_u24 v4, 10240, v16'); e('v_lshl_add_u32 v4, v17, 4, v4'); e('v_add_u32 v4, s19, v4')
    if w == 0:
        e('v_and_b32 v16, 1, v12'); e('v_mov_b32 v17, 0x3f80'); e('v_mov_b32 v18, 0x3f800000')
        e('v_cmp_eq_u32 vcc, 1, v16'); e('v_cndmask_b32 v17, v17, v18, vcc')
        e('v_lshrrev_b32 v16, 1, v12')
        for i in range(4):
            e(f'v_cmp_eq_u32 vcc, {i}, v16'); e(f'v_cndmask_b32 v{20+i}, 0, v17, vcc')
        e(f'ds_write_b128 v0, v[20:23] offset:{L_SEL}')
    e(f's_mov_b32 s21, {fbits(128**-0.5*math.log2(math.e))}')
    e('s_mov_b32 s20, 400000')
    e(f's_mov_b32 s12, {PART}')
    e(f's_mov_b32 s15, {MEMR}')
    e.wait(vm=0, lgkm=0)

CFG = {}
def load_frag(e, loc, f, slot):
    L = loc[f]; b = X[slot]
    if CFG.get('no'+L[0]): return
    sf = CFG.get('sf', '')
    if L[0] == 'L':
        e(f'ds_read_b128 {R(b,4)}, v5 offset:{L[1]}'); e(f'ds_read_b128 {R(b+4,4)}, v5 offset:{L[1]+1024}')
    else:
        e(f's_add_u32 s19, s18, {L[1]*2048}')
        e(f'buffer_load_dwordx4 {R(b,4)}, v0, {WS}, s19 offen {sf}'); e(f'buffer_load_dwordx4 {R(b+4,4)}, v0, {WS}, s19 offen offset:1024 {sf}')

def bop(loc, f, uses, pos):
    L = loc[f]
    if L[0] == 'R': return R(L[2], 8, L[1])
    for (p, ty, sl, ia) in uses:
        if p == pos: return R(X[sl], 8)
    raise KeyError

def check(e, regs, t0, t1):
    r = list(regs)
    e(f'v_max3_u32 v{t0}, v{r[0]}, v{r[1]}, v{r[2]}')
    r = r[3:]
    while len(r) >= 2:
        e(f'v_max3_u32 v{t0}, v{t0}, v{r[0]}, v{r[1]}'); r = r[2:]
    if r: e(f'v_max_u32 v{t0}, v{t0}, v{r[0]}')
    e(f'v_cmp_eq_u32 vcc, -1, v{t0}')

def spin_flag(e, need_sgpr, t):
    lp = e.newlabel('CF'); dn = e.newlabel('CFD')
    e.label(lp)
    e(f'buffer_load_dwordx2 {R(t,2)}, off, {WS}, s24 sc1')
    e(f'v_min_u32 v{t}, v{t}, v{t+1}')
    e(f'v_readfirstlane_b32 s25, v{t}')
    e(f's_cmp_ge_u32 s25, {need_sgpr}')
    e(f's_cbranch_scc1 {dn}')
    e('s_sleep 2')
    e('s_sub_u32 s20, s20, 1'); e('s_cmp_gt_i32 s20, 0'); e(f's_cbranch_scc1 {lp}')
    e.label(dn)

def kx_dma(e, w, soff, which=(0, 1)):
    for i in which:
        f = 2*w+i
        e(f's_add_u32 m0, s37, {2048 + f*1024}')
        e(f's_add_u32 s19, {soff}, {f*1024}')
        e(f'buffer_load_dwordx4 v0, {WS}, s19 offen {CFG.get("kvsc","sc1 nt")} lds')

def allred(e, op, x, t):
    e(f'v_mov_b32 v{t}, v{x}'); e(f'v_permlane32_swap_b32 v{x}, v{t}'); e(f'{op} v{x}, v{x}, v{t}')
    e(f'v_mov_b32 v{t}, v{x}'); e(f'v_permlane16_swap_b32 v{x}, v{t}'); e(f'{op} v{x}, v{x}, v{t}')

def zero(e, b, n, val=0):
    for k in range(0, n, 2): e(f'v_mov_b64 {R(b+k,2)}, {val}')

NST = 10
def steps(e, w, P, st='', stamp=False, cfg={}):
    order, qk, o, qu, ou, loc = P
    CFG.update(cfg)
    own = OWN[w]; nown = len(own)
    tag = f'w{w}' + ('x' if st else '')
    sm = 'v_smfmac_f32_16x16x64_bf16'; mf = 'v_mfma_f32_16x16x32_bf16'; m16 = 'v_mfma_f32_16x16x16_bf16'
    def T(i):
        if stamp: e.raw(f'    s_memtime s[{40+2*i}:{41+2*i}]')
    e(f's_lshl_b32 s24, s8, 7'); e(f's_add_u32 s26, s24, {F_CH}'); e(f's_add_u32 s24, s24, {F_KV}')
    e('s_mov_b32 s11, 0')
    e(f's_mul_i32 s17, s8, {BLK}'); e(f's_add_u32 s17, s17, {KX}')
    e(f's_add_u32 s27, s17, {KVM - KX + w*1024}')
    srd(e, 28, B_MEM0, 10240)
    e('s_mov_b32 s39, 0')
    e(f's_add_u32 s36, s8, {32*w}'); e('s_mul_i32 s22, s36, 205'); e('s_lshr_b32 s22, s22, 11'); e('s_mul_i32 s23, s22, 10'); e('s_sub_u32 s36, s36, s23')
    e('s_lshl_b32 s38, s36, 10'); e('s_lshr_b32 s23, s22, 1'); e('s_lshl_b32 s23, s23, 6'); e('s_add_u32 s38, s38, s23')
    e('s_and_b32 s23, s22, 1'); e('s_lshl_b32 s23, s23, 4'); e('s_add_u32 s38, s38, s23')
    e('s_cmp_ge_u32 s36, 8'); e('s_cselect_b32 s36, 1, 0')
    for i, r in enumerate((13, 14, 59)): e(f's_add_u32 s{r}, s12, {(i+1)*8*10240}')
    if cfg.get('scr1'): e(f's_and_b32 s18, s8, {cfg["scr1"]-1}'); e(f's_mul_i32 s18, s18, {4*NSCR*2048}'); e(f's_add_u32 s18, s18, {SCR + w*NSCR*2048}')
    lo, hi = (47, 207) if not cfg.get('forcefb') else (126, 128)
    e(f's_mov_b32 s32, {lo << 23}'); e(f's_mov_b32 s33, {(hi-lo) << 23}')
    if w == 3:
        e('v_lshlrev_b32 v4, 3, v0')
        e('v_mov_b64 v[12:13], 0'); e(f'v_mov_b32 v14, {L_MISC+256}'); e('ds_write_b64 v14, v[12:13]')
    if stamp:
        for i in range(NST): e(f's_mov_b32 s{70+i}, 0')
    e.wait(lgkm=0)
    e.label(f'CL_{tag}')
    e('s_mov_b32 s10, 0')
    if w == 3:
        e('s_add_u32 s22, s11, 1')
        spin_flag(e, 's22', 12)
    e.barrier()
    if stamp:
        e('s_mov_b32 s84, s86'); e('s_mov_b32 s85, s87'); e('s_memrealtime s[86:87]'); e.wait(lgkm=0)
    e('s_mov_b32 s37, 8192'); e('v_mov_b32 v6, v0')
    kx_dma(e, w, 's17')
    for i, c in enumerate(own):
        e(f'buffer_load_dwordx4 {R(ABUF[i],4)}, v7, s[28:31], 0 offen offset:{c*128}')
    for (p, ty, sl, ia) in qu:
        if ia is None: load_frag(e, loc, qk[p], sl)
    zero(e, Q0, 24)
    e.wait(vm=0, lgkm=0)
    e.label(f'CS_{tag}')
    vq0 = [set(('v', X[k]+4*hf+j) for j in range(4)) for k in range(4) if cfg.get('pp', 'ccbd')[k] == 'd' for hf in range(2)]
    e.vq = list(vq0)
    T(0)
    for i, c in enumerate(own):
        e(f'ds_write_b128 v{6 if c >= 2 else 0}, {R(ABUF[i],4)} offset:{L_MEM + c*1024}')
    barpos = cfg.get('bar3', 6) if nown == 3 else cfg.get('bar2', 4)
    acc = {('q',0):Q0, ('q',1):Q0+4, ('k',0):Q1, ('k',1):Q1+4, ('v',0):VA, ('v',1):VA+4}
    lastpos = {}
    for i, f in enumerate(qk[:54]): lastpos[order.index(f[2])] = i
    nextA = nown
    def M(i):
        f = qk[i]; j = order.index(f[2])
        e(f'{sm} {R(acc[f[:2]],4)}, {R(ABUF[j%3],4)}, {bop(loc,f,qu,i)}, v1')
        for (p, ty, sl, ia) in qu:
            if ia == i: load_frag(e, loc, qk[p], sl)
    qops = []
    for k in (0, 1, 4, 5): qops += [f'v_add_f32 v{Q0+k}, v{Q0+k}, v{Q0+k+2}']
    for k in (0, 1, 4, 5): qops += [f'v_mul_f32 v{Q0+k}, s21, v{Q0+k}']
    qops += [f'v_cvt_pk_bf16_f32 v{Q0+2+r}, v{Q0+r}, v{Q0+4+r}' for r in range(2)]
    qops += [f'ds_write2_b32 v8, v{Q0+2}, v{Q0+3} offset0:0 offset1:{QS//4}']
    pd = cfg.get('pd', 1); pf = cfg.get('pfsc', 'sc1')
    fprep = [f's_add_u32 s34, s17, {32*BLK}', ['s_cmp_eq_u32 s10, 63', 's_cselect_b32 s34, s17, s34'], 's_xor_b32 s37, s37, 8192']
    if cfg.get('samekv'): fprep[0] = 's_mov_b32 s34, s17'
    vpos = max(p for (p, ty, sl, ia) in qu if sl == 2); fpos = cfg.get('fpos', 40); late = w == 3 and not cfg.get('ev', 0) and not cfg.get('nofar')
    if w == 3 and not cfg.get('nofar'):
        fprep += ['s_add_u32 s22, s11, 2', ['s_cmp_lt_u32 s25, s22', 's_cselect_b32 s35, s17, s34'], f's_mov_b32 m0, {L_MISC}',
                  f'buffer_load_dword v4, {WS}, s35 offen {pf} lds', f's_add_u32 s35, s35, {VX-KX}', f'buffer_load_dword v4, {WS}, s35 offen {pf} lds']
        if not cfg.get('kpf', 0): del fprep[-3]
        if late: fprep[-3], fprep[-2] = fprep[-2], fprep[-3]
    def qe(n):
        for _ in range(n):
            if qops: e(qops.pop(0))
    for i in range(54):
        if i == barpos:
            e.wait(lgkm=len(e.lq) - nown if len(e.lq) >= nown and e.lq[0] == set() else 0)
            e('s_barrier')
        if i >= barpos:
            while nextA < 10 and (nextA < 3 or lastpos[nextA-3] < i):
                e(f'ds_read_b128 {R(ABUF[nextA%3],4)}, v{6 if order[nextA] >= 2 else 0} offset:{L_MEM + order[nextA]*1024}'); nextA += 1
        M(i)
        if i >= 51: qe(1)
        if i >= fpos-6 and len(fprep) > (2 if late else 0):
            x = fprep.pop(0)
            for y in ([x] if isinstance(x, str) else x): e(y)
        if i == 50:
            assert nextA == 10
            e('v_xor_b32 v6, 8192, v6')
        if i == vpos and w == 3 and cfg.get('fse'):
            e.nop(2); e(f'v_mov_b32 v{X[2]}, s11'); e(f'buffer_store_dword v{X[2]}, off, {WS}, s26 sc1')
        if i == vpos:
            e(f's_add_u32 s19, s17, {VX-KX + w*2048}')
            e(f'buffer_load_dwordx4 {R(X[2],4)}, v0, {WS}, s19 offen {CFG.get("kvsc","sc1 nt")}')
            e(f'buffer_load_dwordx4 {R(X[2]+4,4)}, v0, {WS}, s19 offen offset:1024 {CFG.get("kvsc","sc1 nt")}')
    T(1)
    def kxrd(tile, ks, b): e(f'ds_read_b128 {R(b,4)}, v6 offset:{2048 + (tile*4+ks)*1024}')
    M(54); qe(2)
    kxrd(0,0,X[3]); kxrd(1,0,X[3]+4)
    M(55); qe(9)
    kxrd(0,1,X[1]); kxrd(1,1,X[1]+4)
    for k in (0, 1, 4, 5): e(f'v_add_f32 v{Q1+k}, v{Q1+k}, v{Q1+k+2}')
    for r in range(2): e(f'v_cvt_pk_bf16_f32 v{12+r}, v{Q1+r}, v{Q1+4+r}')
    e(f'ds_write2_b32 v8, v12, v13 offset0:{8*QS//4-512} offset1:{9*QS//4-512}') if False else None
    e(f'ds_write_b32 v8, v12 offset:{8*QS}'); e(f'ds_write_b32 v8, v13 offset:{9*QS}')
    rs = 1
    M(56); M(57)
    assert len(fprep) == (2 if late else 0)
    if w == 3:
        sk = e.newlabel('CN')
        e('s_add_u32 s22, s11, 2'); e('s_cmp_ge_u32 s25, s22'); e(f's_cbranch_scc1 {sk}')
        e('s_cmp_eq_u32 s10, 63'); e(f's_cbranch_scc1 {sk}')
        sv = e.save(); spin_flag(e, 's22', 14); e.restore(sv)
        e.label(sk)
    e.barrier()
    T(2)
    def qrd(ks, b): e(f'ds_read_b128 {R(b,4)}, v9 offset:{ks*64}'); e(f'ds_read_b128 {R(b+4,4)}, v10 offset:{ks*64}')
    qrd(0, Q0); qrd(1, Q1)
    M(58); M(59)
    for x in fprep: e(x)
    kxrd(0,2,X[0]); kxrd(1,2,X[0]+4)
    for k in (0, 1, 4, 5): e(f'v_add_f32 v{VA+k}, v{VA+k}, v{VA+k+2}')
    e(f'v_cvt_pk_bf16_f32 v14, v{VA}, v{VA+1}'); e(f'v_cvt_pk_bf16_f32 v15, v{VA+4}, v{VA+5}')
    if not cfg.get('nokvm'): e(f'buffer_store_dwordx4 v[12:15], v0, {WS}, s27 offen sc1 {cfg.get("kvmf","nt")}')
    Sm, S0, S1 = VA, 40, 44
    def score(ks, qb, kb, fill=[]):
        z = ks == 0; fill = list(fill)
        for d, a in ((S1, kb+4), (Sm, qb+4), (S0, kb)):
            e(f'{mf} {R(d,4)}, {R(a,4)}, {R(qb,4)}, {0 if z else R(d,4)}')
            for x in fill[:2]: e(x)
            fill = fill[2:]
    ones = VA+4; Pb = Q0
    score(0, Q0, X[3]); qrd(2, Q0); kxrd(0,3,X[3]); kxrd(1,3,X[3]+4)
    if not cfg.get('k4'): kx_dma(e, w, 's34', (0,))
    score(1, Q1, X[1], [f'v_mov_b32 v{ones+k}, 0x3f803f80' for k in range(4)])
    qrd(3, Q1)
    load_frag(e, loc, o[1], 1)
    if not cfg.get('k4'): kx_dma(e, w, 's34', (1,))
    score(2, Q0, X[0])
    load_frag(e, loc, o[0], 0)
    if w == 3 and not cfg.get('nofar'):
        if not cfg.get('fse'): e(f'v_mov_b32 v12, s11'); e(f'buffer_store_dword v12, off, {WS}, s26 sc1')
        if not cfg.get('nofl'):
            e(f's_mov_b32 m0, {L_MISC+256}'); e('v_lshrrev_b32 v13, 2, v0')
            e(f'buffer_load_dword v13, {WS}, s24 offen sc1 lds')
    score(3, Q1, X[3], [f'v_mov_b32 v{Pb+5}, 0', f'v_mov_b32 v{Pb+6}, 0'])
    e('s_mov_b32 s23, 0')
    T(3)
    e.label(f'SX_{tag}')
    E = X[3]; Ls = X[3]
    for k in (4, 5, 6, 7): e(f'v_exp_f32 v{E+k}, v{S0+k}')
    e(f'v_exp_f32 v{Q1}, v{Sm}'); e(f'v_exp_f32 v{Q1+1}, v{Sm+1}')
    for k in (0, 1, 2, 3): e(f'v_exp_f32 v{E+k}, v{S0+k}')
    for k in (2, 3, 0, 1): e(f'v_cvt_pk_bf16_f32 v{Pb+k}, v{E+2*k}, v{E+2*k+1}')
    e(f'v_cvt_pk_bf16_f32 v{Pb+4}, v{Q1}, v{Q1+1}'); e(f'v_cvt_pk_bf16_f32 v{Pb+7}, v{Q1}, v{Q1+1}')
    e(f'{mf} {R(Ls,4)}, {R(ones,4)}, {R(Pb,4)}, 0')
    e(f'{mf} {R(Q1,4)}, {R(X[2],4)}, {R(Pb,4)}, 0')
    e(f'{mf} {R(Q1+4,4)}, {R(X[2]+4,4)}, {R(Pb,4)}, 0')
    e(f'{m16} {R(Ls,4)}, {R(ones,2)}, {R(Pb+4,2)}, {R(Ls,4)}')
    e(f'{m16} {R(Q1,4)}, v[14:15], {R(Pb+4,2)}, {R(Q1,4)}')
    zero(e, X[3]+4, 4)
    e(f'{m16} {R(Q1+4,4)}, v[14:15], {R(Pb+6,2)}, {R(Q1+4,4)}')
    e(f'v_subrev_u32 v{Ls+1}, s32, v{Ls}'); e(f'v_rcp_f32 v{Ls+2}, v{Ls}')
    e(f'v_cmp_le_u32 vcc, s33, v{Ls+1}')
    e(f'v_mov_b32 v{Ls+3}, v{Ls+2}')
    e(f's_cbranch_vccnz FB_{tag}')
    e.label(f'SO_{tag}')
    for k in range(4): e(f'v_pk_mul_f32 {R(Q1+2*k,2)}, {R(Q1+2*k,2)}, {R(Ls+2,2)}')
    for k in range(4): e(f'v_cvt_pk_bf16_f32 v{Q1+k}, v{Q1+k}, v{Q1+4+k}')
    e(f'ds_write_b128 v11, {R(Q1,4)}')
    if cfg.get('k4') == 2: kx_dma(e, w, 's34')
    zero(e, X[3], 4); zero(e, Q0, 8); zero(e, X[2], 8)
    e.barrier()
    T(4)
    e(f'ds_read_b128 v[40:43], v0 offset:{L_O}'); e(f'ds_read_b128 v[44:47], v0 offset:{L_O+1024}')
    e('s_cmp_eq_u32 s10, 63'); e(f's_cbranch_scc1 CE_{tag}')
    if cfg.get('k4') == 1: kx_dma(e, w, 's34')
    zero(e, Q1, 8)
    if not cfg.get('samekv'): e(f's_add_u32 s17, s17, {32*BLK}')
    tacc = {8: X[3], 9: X[3]+4, 0: Q0, 1: Q0+4, 2: X[2], 3: X[2]+4, 4: Q1, 5: Q1+4, 6: VA, 7: VA+4}
    tl = (8,9,0,1,2,3,4,5,6,7)
    pre = {sl: p for (p, ty, sl, ia) in qu if ia is None}
    def add(k, r): e(f'v_add_f32 v{tacc[tl[k]]+r}, v{tacc[tl[k]]+r}, v{tacc[tl[k]]+r+2}')
    def cv(k, r): e(f'v_cvt_pk_bf16_f32 v{40+4*r+k}, v{tacc[2*k]+r}, v{tacc[2*k+1]+r}')
    for i, f in enumerate(o):
        e(f'{sm} {R(tacc[f[1]],4)}, {R(40+4*f[2],4)}, {bop(loc,f,ou,i)}, v1')
        if i < 4: zero(e, VA+2*i, 2)
        else: add((i-4)//2, i & 1)
        for (p, ty, sl, ia) in ou:
            if ia == i: load_frag(e, loc, o[p], sl)
        if i in (7, 8) and cfg.get('pp', 'ccbd')[i-7] == 'o': load_frag(e, loc, qk[pre[i-7]], i-7)
        if i in (9, 10):
            r = i-9
            e(f'v_cvt_pk_bf16_f32 v{12+r}, v{tacc[8]+r}, v{tacc[9]+r}')
            e(f'v_bfi_b32 v{12+r}, 1, s39, v{12+r}')
            e(f'buffer_store_dword v{12+r}, v3, {WS}, s12 offen offset:{1280*r} {st}')
    add(8, 0); add(8, 1)
    for k in range(3): cv(k, 0)
    for k in range(3): cv(k, 1)
    e('v_bfi_b32 v40, 1, s39, v40'); e('v_bfi_b32 v44, 1, s39, v44')
    add(9, 0); cv(3, 0)
    e(f'buffer_store_dwordx4 v[40:43], v2, {WS}, s12 offen {st}')
    add(9, 1); cv(3, 1)
    e(f'buffer_store_dwordx4 v[44:47], v2, {WS}, s12 offen offset:1280 {st}')
    T(5)
    pp = cfg.get('pp', 'ccbd')
    def pl(ch):
        for k in range(4):
            if pp[k] == ch: load_frag(e, loc, qk[pre[k]], k)
    pl('a')
    e('s_xor_b32 s16, s15, 0x4000')
    e('s_add_u32 s10, s10, 1'); e('s_add_u32 s11, s11, 1'); e(f's_add_u32 s27, s27, {32*BLK}')
    def spin(lp): e('s_sub_u32 s20, s20, 1'); e('s_cmp_gt_i32 s20, 0'); e(f's_cbranch_scc1 {lp}')
    def idle():
        if cfg.get('ai', 0): e.wait(vm=0)
        if cfg.get('d1'): e(f's_sleep {cfg["d1"]}')
        pl('c')
    if w < 3:
        sk = f'P1S_{tag}'
        if w == 2:
            e('s_cmp_lt_u32 s8, 16'); e(f's_cbranch_scc1 P1G_{tag}')
            s0 = e.save(); idle(); sv = e.save(); e(f's_branch {sk}'); e.label(f'P1G_{tag}'); e.restore(s0)
        e(f'ds_read_b128 v[12:15], v0 offset:{L_SEL}')
        zero(e, VA+6, 2, -1)
        e('v_and_b32 v40, 0x60, v0'); e('v_lshl_add_u32 v40, v40, 3, s38'); e('v_and_b32 v41, 0x10, v0'); e('v_lshl_add_u32 v40, v41, 1, v40')
        e('v_lshrrev_b32 v41, 5, v0'); e('v_and_b32 v41, 8, v41'); e('v_add_u32 v40, v40, v41')
        e('v_and_b32 v41, 0x280, v0'); e(f'v_mov_b32 v42, {OOB}'); e('v_cmp_ne_u32 vcc, 0, v41'); e('v_cndmask_b32 v40, v40, v42, vcc')
        if cfg.get('a1', 1): e.wait(vm=0)
        if cfg.get('d1'): e(f's_sleep {cfg["d1"]}')
        e.wait(lgkm=0)
        lp = f'P1_{tag}'; dn = f'P1D_{tag}'
        def poll1(first):
            for i, r in enumerate((12, 13, 14, 59)): e(f'buffer_load_dwordx4 {R(Q0+4*i,4)}, v4, {WS}, s{r} offen sc1')
            if first: pl('c')
            for i in range(4):
                e(f'{mf} {R(VA,4)}, v[12:15], {R(Q0+4*i,4)}, {R(VA,4) if i else 0}')
                b = Q0+4*i
                A, Z = VA+4, VA+5
                e(f'v_xor_b32 v{A}, s39, v{b}' if i == 0 else f'v_bitop3_b32 v{A}, v{A}, v{b}, s39 bitop3:0xf6')
                for k in (1, 2, 3):
                    e(f'v_xor_b32 v{Z}, v{b+k}, v{b}' if i+k == 1 else f'v_bitop3_b32 v{Z}, v{Z}, v{b+k}, v{b} bitop3:0xf6')
            e(f'v_and_or_b32 v{A}, v{Z}, s36, v{A}'); e(f'v_and_b32 v{A}, 1, v{A}')
            e(f'v_cmp_ne_u32 vcc, 0, v{A}')
            e(f's_cbranch_vccz {dn}')
        if 'c' in pp: poll1(True); s1 = e.save()
        e.label(lp)
        poll1(False)
        spin(lp)
        e.n -= 3
        e.label(dn)
        if 'c' in pp: e.restore(s1)
        T(6)
        dp = 'row_mask:0xf bank_mask:0xf bound_ctrl:1'
        for k in range(4): e(f'v_add_f32_dpp v{Q0+k}, v{VA+k}, v{VA+k} row_shl:8 {dp}')
        e(f'v_cvt_pk_bf16_f32 v{VA+4}, v{Q0}, v{Q0+1}'); e(f'v_cvt_pk_bf16_f32 v{VA+5}, v{Q0+2}, v{Q0+3}')
        e(f'buffer_store_dwordx2 {R(VA+4,2)}, v40, {WS}, s15 offen {st}')
        e(f'buffer_store_dwordx2 {R(VA+6,2)}, v40, {WS}, s16 offen {st}')
        if cfg.get('a2'): e.wait(vm=1)
        if w == 2:
            e.label(sk); e.restore(sv)
    else:
        idle()
        T(6)
        e.wait(vm=2*(pp.count('a')+pp.count('c')))
        e(f'v_mov_b32 v14, {L_MISC+256}'); e('ds_read_b64 v[14:15], v14')
        e('v_min_u32 v14, v14, v15'); e('v_readfirstlane_b32 s22, v14'); e('s_max_u32 s25, s25, s22')
    e('s_barrier')
    T(7)
    pl('b')
    zero(e, Q0+2, 22)
    e('s_xor_b32 s39, s39, 1'); e(f's_add_u32 s22, s15, {own[0]*1024}')
    if cfg.get('d2'): e(f's_sleep {cfg["d2"]}')
    e.wait(lgkm=0)
    lp = f'P2_{tag}'; dn = f'P2D_{tag}'
    def poll2(first):
        for i, c in enumerate(own):
            e(f'buffer_load_dwordx4 {R(ABUF[i],4)}, v0, {WS}, s22 offen offset:{i*1024} sc1')
        if first: pl('d')
        check(e, [ABUF[i]+k for i in range(nown) for k in range(4)], Q0, Q0+1)
        zero(e, Q0, 2)
        e(f's_cbranch_vccz {dn}')
    if 'd' in pp: poll2(True); s1 = e.save()
    e.label(lp)
    poll2(False)
    spin(lp)
    e.label(dn)
    if 'd' in pp: e.restore(s1)
    e('s_mov_b32 s15, s16')
    if stamp:
        T(8)
        e.raw('    s_waitcnt lgkmcnt(0)')
        for i in range(8):
            e(f's_sub_u32 s22, s{42+2*i}, s{40+2*i}'); e(f's_add_u32 s{70+i}, s{70+i}, s22')
    assert e.vq == vq0 and not e.lq, (e.vq, vq0, e.lq)
    e.reset()
    e(f's_branch CS_{tag}')
    e.label(f'FB_{tag}')
    e('s_cmp_lg_u32 s23, 0'); e(f's_cbranch_scc1 SO_{tag}')
    e('s_mov_b32 s23, 1'); e.nop(12)
    sc = [S0+i for i in range(8)] + [Sm, Sm+1]
    mx, tt = Q1, Q1+1
    e(f'v_max3_f32 v{mx}, v{sc[0]}, v{sc[1]}, v{sc[2]}')
    for k in (3, 5, 7): e(f'v_max3_f32 v{mx}, v{mx}, v{sc[k]}, v{sc[k+1]}')
    e(f'v_max_f32 v{mx}, v{mx}, v{sc[9]}')
    allred(e, 'v_max_f32', mx, tt)
    for r in sc: e(f'v_sub_f32 v{r}, v{r}, v{mx}')
    e.wait(lgkm=0)
    e(f's_branch SX_{tag}')
    e.label(f'CE_{tag}')
    e.wait(vm=0, lgkm=0)
    e('s_barrier')
    e('s_add_u32 s11, s11, 1'); e(f's_add_u32 s27, s27, {32*BLK}'); e(f's_add_u32 s17, s17, {32*BLK}')
    if w == 3:
        e(f'v_mov_b32 v12, s11')
        e(f'buffer_store_dword v12, off, {WS}, s26 sc1')
    e(f's_mov_b32 s15, {MEMR + 0x8000}')
    if stamp:
        e('s_memrealtime s[88:89]'); e.wait(lgkm=0); e('s_mov_b32 s87, s88')
    e.wait(vm=0)
    e('s_cmp_lt_u32 s11, 128'); e(f's_cbranch_scc1 CL_{tag}')
```

```python
F_KV   = 0x0000
F_CH   = 0x1000
F_XA   = 0x2000
F_AQ   = 0x2100
F_AKV  = 0x2200
F_AT   = 0x2300
F_AO   = 0x2400
F_XB   = 0x2500
F_BA   = 0x2600
F_BO   = 0x2700
FLAG_BYTES = 0x3000
PART  = 0x100000
MEMR  = 0x200000
DUMMY = 0x280000
SCR   = 0x300000
KX    = 0x1000000
SEG   = 20480
VX    = KX + 8192
KVM   = KX + 16384
XNA   = 0x6000000
XNB   = 0x6500000
XR    = 0x6A00000
QA    = 0x7400000
KA    = 0x7C00000
OA    = 0x600000
QB    = 0x8000000
OB    = 0xA000000
PA    = 0xC000000
PB    = 0xD000000
WS_BYTES = 0x10000000
OOB = 0x7f000000
A_X, A_WQ, A_WK, A_WV, A_WO, B_X, B_MEM0, B_WQ, B_WK, B_WV, B_WO, B_SEG, D_OUT, D_DBG, D_WS = [8*i for i in range(15)]
```

```python
from em import Em, R
from layout import *
from chain import srd, fbits, allred, zero, WS
import math
mf = 'v_mfma_f32_16x16x32_bf16'; m16 = 'v_mfma_f32_16x16x16_bf16'

def lanes(e):
    e('v_and_b32 v0, 63, v0'); e('v_and_b32 v1, 15, v0'); e('v_lshrrev_b32 v2, 4, v0'); e('v_lshlrev_b32 v0, 4, v0')
    e('s_mov_b32 s22, 0x05040100'); e('s_mov_b32 s23, 0x07060302'); e('s_mov_b32 s20, 300000')

def flagaddr(e, v, nwords):
    e(f'v_lshrrev_b32 v{v}, 2, v0'); e(f'v_min_u32 v{v}, {4*(nwords-1)}, v{v}')

def wait_flag(e, v, soff, need, t):
    lp = e.newlabel('WF'); dn = e.newlabel('WD')
    e.label(lp)
    e(f'buffer_load_dword v{t}, v{v}, {WS}, {soff} offen sc1')
    e(f'v_cmp_gt_u32 vcc, {need}, v{t}')
    e(f's_cbranch_vccz {dn}')
    e('s_sleep 3')
    e('s_sub_u32 s20, s20, 1'); e('s_cmp_gt_i32 s20, 0'); e(f's_cbranch_scc1 {lp}')
    e.label(dn)

TRACE = [0]
def trace(e, val, t):
    if not TRACE[0]: return
    e('s_memrealtime s[92:93]'); e(f's_lshl_b32 s91, {val}, 2'); e('s_add_u32 s91, s91, s90')
    e(f'v_mov_b32 v{t}, s92'); e(f'buffer_store_dword v{t}, off, {WS}, s91')

def set_flag(e, soff, val, t):
    sk = e.newlabel('SF')
    e('s_cmp_lg_u32 s9, 0'); e(f's_cbranch_scc1 {sk}')
    sv = e.save()
    e(f'v_mov_b32 v{t}, {val}'); e(f'buffer_store_dword v{t}, off, {WS}, {soff} sc1')
    trace(e, val, t)
    e.label(sk); e.restore(sv)
    e.vq.append(set())

def load_w(e, nks, rowstride, ksstride, vlo, vhi, vdst=None):
    D = 6; tb = 64 if vdst is None else 16
    def issue(ks):
        for j in range(8):
            e(f's_add_u32 s19, s17, {ks*ksstride + j*rowstride}')
            e(f'buffer_load_dword v{tb+(ks%D)*8+j}, v{vlo if j<4 else vhi}, s[24:27], s19 offen')
    for ks in range(D): issue(ks)
    for ks in range(nks):
        b = tb+(ks % D)*8
        for t in range(2):
            for jj in range(4): e(f'v_perm_b32 v{(56 if vdst is None else vdst+8*ks)+4*t+jj}, v{b+2*jj+1}, v{b+2*jj}, {"s23" if t else "s22"}')
        if vdst is None:
            for k in range(8): e(f'v_accvgpr_write_b32 a{8*ks+k}, v{56+k}')
        if ks+D < nks: issue(ks+D)

def xn_setup(e):
    e('v_lshrrev_b32 v7, 7, v0'); e('v_lshrrev_b32 v8, 4, v0'); e('v_and_b32 v8, 7, v8'); e('v_xor_b32 v8, v8, v7')
    e('s_lshl_b32 s19, s9, 3'); e('v_add_u32 v7, s19, v7'); e('v_mul_u32_u24 v4, 1280, v7'); e('v_lshl_add_u32 v4, v8, 4, v4')
    e('v_and_b32 v7, 7, v1'); e('v_lshrrev_b32 v8, 3, v1'); e('v_lshlrev_b32 v8, 10, v8'); e('v_lshl_add_u32 v8, v7, 7, v8')
    e('v_xor_b32 v7, v2, v7'); e('v_lshl_add_u32 v5, v7, 4, v8'); e('v_xor_b32 v6, 64, v5')

DF = ['sc1']
OPT = {}
def set_rot(e, lin, idx):
    if lin: e(f's_mul_i32 s35, {idx}, 3072'); e('s_and_b32 s35, s35, 0x3fff')
    else:
        e(f's_and_b32 s35, {idx}, 31'); e('s_mul_i32 s34, s35, 26'); e('s_lshr_b32 s34, s34, 8'); e('s_mul_i32 s34, s34, 10')
        e('s_sub_u32 s35, s35, s34'); e('s_lshl_b32 s35, s35, 7')

def xn_dma1(e):
    e('s_lshl_b32 s34, s35, 5'); e(f's_add_u32 m0, s11, s34'); e(f's_add_u32 s37, s36, s35')
    e(f'buffer_load_dwordx4 v4, {WS}, s37 offen {DF[0]} lds')
    e('s_add_u32 s35, s35, 128'); e('s_cmp_eq_u32 s35, 1280'); e('s_cselect_b32 s35, 0, s35')

def lin_dma1(e):
    e(f's_add_u32 m0, s11, s35'); e(f's_add_u32 s37, s36, s35')
    e(f'buffer_load_dwordx4 v0, {WS}, s37 offen {DF[0]} lds')
    e('s_add_u32 s35, s35, 1024'); e('s_and_b32 s35, s35, 0x3fff')

SITES = []
def site(e, k):
    if k >= len(SITES): return
    sk = e.newlabel('ST')
    e('s_cmp_eq_u32 s15, 0'); e(f's_cbranch_scc1 {sk}')
    sv = e.save(); SITES[k](); e.label(sk); e.restore(sv)

ACC = 16
MID = [None]
SPOS = []
def gemm(e, nks, lin, vtype, q=False):
    NB = 6
    def rd(i):
        ks, a = divmod(i, 2)
        if lin: e(f'ds_read_b128 {R(32+4*(i%NB),4)}, v5 offset:{i*1024}')
        elif q: e(f'ds_read_b128 {R(32+4*(i%NB),4)}, v{12+2*a+(ks&1)} offset:{(ks>>1)*4096}')
        else: e(f'ds_read_b128 {R(32+4*(i%NB),4)}, v{5+(ks&1)} offset:{(ks>>1)*4096+a*2048}')
    for i in range(NB): rd(i)
    for i in range(2*nks):
        ks, a = divmod(i, 2)
        x = R(32+4*(i % NB), 4)
        for t in range(2):
            w = R(8*ks+4*t, 4, 'a'); d = R(ACC+8*a+4*t, 4)
            A, Bo = (x, w) if vtype else (w, x)
            e(f'{mf} {d}, {A}, {Bo}, {d if ks else 0}')
        if q and a == 0:
            for t in range(2):
                d = R(56+4*t, 4); e(f'{mf} {d}, {R(96+8*ks+4*t,4)}, {x}, {d if ks else 0}')
        if i+NB < 2*nks: rd(i+NB)
        step = 3 if lin else 2
        if SPOS:
            if i in SPOS: site(e, SPOS.index(i))
        elif i % step == 0: site(e, i // step)
        if i == 2*nks-8 and MID[0]: MID[0]()
    if q:
        sk = e.newlabel('SW')
        e.nop(16)
        e('s_bitcmp0_b32 s9, 0'); e(f's_cbranch_scc1 {sk}')
        for k in range(8): e(f'v_swap_b32 v{ACC+k}, v{ACC+8+k}')
        e.label(sk)

def epi_k(e, scale=None):
    for a in range(2):
        if scale:
            for k in range(8): e(f'v_mul_f32 v{ACC+8*a+k}, {scale}, v{ACC+8*a+k}')
        for i in range(4): e(f'v_cvt_pk_bf16_f32 v{32+4*a+i}, v{ACC+8*a+i}, v{ACC+8*a+4+i}')
def epi_v(e):
    for t in range(2):
        for a in range(2):
            for i in range(2): e(f'v_cvt_pk_bf16_f32 v{32+4*t+2*a+i}, v{ACC+8*a+4*t+2*i}, v{ACC+8*a+4*t+2*i+1}')

def gemm_loop(e, name, lin, g0, gstep, body, srcbase, srcstride, nst, nwords, flag_off_fn=None):
    wsh = 14 if lin else 10
    nd = (16 if lin else 10) + 1
    LF = 131072
    flagaddr(e, 3, nwords)
    if lin: e('v_mov_b32 v5, v0')
    else: xn_setup(e)
    e(f's_mov_b32 s10, {g0}')
    set_rot(e, lin, 's31' if lin else 's8')
    e(f's_lshl_b32 s11, s9, {wsh}'); e('s_mov_b32 s15, 0'); e('s_mov_b32 s33, 0'); e(f's_mov_b32 s32, {LF}')
    e('v_lshrrev_b32 v11, 2, v0'); e(f'v_add_u32 v11, {LF}, v11')
    if lin: e('s_add_u32 s14, s14, s11')
    def foff(gs):
        if flag_off_fn: flag_off_fn(gs)
        else: e('s_mov_b32 s21, s12')
    def base(gs):
        e(f's_mul_i32 s36, {gs}, {srcstride}'); e(f's_add_u32 s36, s36, {srcbase}'); e('s_add_u32 s36, s36, s14')
        e(f's_add_u32 s16, {gs}, {gstep}'); foff('s16')
    def fin():
        e('s_mov_b32 m0, s32'); e(f'buffer_load_dword v3, {WS}, s21 offen sc1 lds')
        e('s_xor_b32 s11, s11, 0x10000'); e('s_xor_b32 s32, s32, 256')
    pieces = [(lambda: lin_dma1(e)) if lin else (lambda: xn_dma1(e))]*(nd-1) + [fin]
    def issue(gs):
        base(gs)
        for p in pieces: p()
    e.wait(vm=0, lgkm=0)
    e.label(f'{name}_L')
    e('s_cmp_lg_u32 s15, 0'); e(f's_cbranch_scc1 {name}_H')
    e('s_add_u32 s16, s10, 1'); foff('s10')
    wait_flag(e, 3, 's21', 's16', 9)
    issue('s10')
    e.wait(vm=0)
    e.label(f'{name}_H')
    e.wait(vm=nst); e.reset()
    e('s_barrier')
    e('ds_read_b32 v9, v11')
    e(f's_add_u32 s28, s10, {gstep}'); e('s_add_u32 s16, s28, 1')
    e('v_cmp_gt_u32 vcc, s16, v9')
    e('s_cmp_eq_u64 vcc, 0'); e('s_cselect_b32 s15, 1, 0')
    base('s28')
    SITES[:] = pieces
    def mid():
        sk = e.newlabel('MD'); s2 = e.newlabel('ME')
        e('s_cmp_eq_u32 s33, 0'); e(f's_cbranch_scc1 {sk}')
        sv = e.save()
        e.wait(vm=nd)
        e('s_cmp_lg_u32 s15, 0'); e(f's_cbranch_scc1 {s2}')
        e.wait(vm=0)
        e.label(s2)
        e('s_barrier')
        set_flag(e, 's13', 's33', 9)
        e.label(sk); e.restore(sv)
    MID[0] = mid
    body()
    MID[0] = None; SITES[:] = []
    e('s_add_u32 s33, s10, 1')
    e('s_cmp_lg_u32 s15, 0'); e(f's_cbranch_scc1 {name}_N')
    e.wait(vm=0)
    e('s_barrier')
    set_flag(e, 's13', 's33', 9)
    e('s_mov_b32 s33, 0')
    e.label(f'{name}_N')
    e('v_xor_b32 v5, 0x10000, v5'); e('v_xor_b32 v11, 256, v11')
    if not lin: e('v_xor_b32 v6, 0x10000, v6')
    e('s_mov_b32 s10, s28'); e('s_cmp_lt_u32 s10, 128'); e(f's_cbranch_scc1 {name}_L')
    e.wait(vm=0)
    e('s_endpgm')

def par_off(e, base):
    def fo(gs):
        e(f's_and_b32 s21, {gs}, 1'); e('s_lshl_b32 s21, s21, 7'); e(f's_add_u32 s21, s21, {base}')
    return fo

def role_kv(e):
    lanes(e)
    e('s_and_b32 s30, s8, 1'); e('s_lshr_b32 s31, s8, 1')
    e('s_lshl_b32 s19, s30, 3'); e('s_add_u32 s34, s0, s19'); e('s_addc_u32 s35, s1, 0')
    e(f's_load_dwordx2 s[24:25], s[34:35], {B_WK}'); e(f's_mov_b32 s26, {640*8192}'); e('s_mov_b32 s27, 0x20000')
    e('v_lshlrev_b32 v4, 16, v2'); e('v_lshl_add_u32 v4, v1, 2, v4')
    e('s_lshl_b32 s17, s31, 8'); e('s_lshl_b32 s19, s9, 6'); e('s_add_u32 s17, s17, s19')
    load_w(e, 20, 8192, 32*8192, 4, 4)
    srd(e, 24, B_WQ, 640*8192)
    e('s_lshl_b32 s29, s30, 1'); e('s_lshr_b32 s19, s9, 1'); e('s_add_u32 s29, s29, s19')
    e('s_lshl_b32 s17, s31, 8'); e('s_lshl_b32 s19, s29, 6'); e('s_add_u32 s17, s17, s19')
    load_w(e, 20, 8192, 32*8192, 4, 4, 96)
    e('s_and_b32 s19, s9, 1'); e('s_lshl_b32 s38, s19, 11'); e('s_xor_b32 s39, s38, 2048')
    e('s_lshl_b32 s19, s19, 12'); e('s_lshl_b32 s29, s29, 10'); e('s_add_u32 s29, s29, s19'); e(f's_add_u32 s29, s29, {QB}')
    e(f's_mov_b32 s12, {F_XB}'); e('s_lshl_b32 s13, s31, 7'); e('s_lshl_b32 s19, s30, 2'); e('s_add_u32 s13, s13, s19')
    e('s_mov_b32 s14, 0')
    def body():
        e('v_add_u32 v12, s38, v5'); e('v_add_u32 v14, s39, v5'); e('v_add_u32 v13, s38, v6'); e('v_add_u32 v15, s39, v6')
        e('s_lshl_b32 s18, s10, 5'); e('s_add_u32 s18, s18, s31'); e('s_lshl_b32 s17, s18, 13'); e('s_add_u32 s17, s17, s29'); e(f's_mul_i32 s18, s18, {SEG}')
        e('s_cmp_lg_u32 s30, 0'); e('s_cbranch_scc1 KV_V')
        gemm(e, 20, False, False, True); epi_k(e)
        e('s_lshl_b32 s19, s9, 10'); e('s_add_u32 s18, s18, s19'); e(f's_add_u32 s18, s18, {KX}'); e('s_add_u32 s19, s18, 4096')
        e(f'buffer_store_dwordx4 v[32:35], v0, {WS}, s18 offen sc1'); e(f'buffer_store_dwordx4 v[36:39], v0, {WS}, s19 offen sc1')
        e('s_branch KV_E')
        e.label('KV_V'); e.reset()
        gemm(e, 20, False, True, True); epi_v(e)
        e('s_lshl_b32 s19, s9, 11'); e('s_add_u32 s18, s18, s19'); e(f's_add_u32 s18, s18, {VX}')
        e(f'buffer_store_dwordx4 v[32:35], v0, {WS}, s18 offen sc1'); e(f'buffer_store_dwordx4 v[36:39], v0, {WS}, s18 offen offset:1024 sc1')
        e.label('KV_E')
        for i in range(4): e(f'v_cvt_pk_bf16_f32 v{40+i}, v{56+i}, v{60+i}')
        e(f'buffer_store_dwordx4 v[40:43], v0, {WS}, s17 offen sc1')
    gemm_loop(e, 'KV', False, 0, 1, body, XNB, 40960, 3, 4, par_off(e, F_XB))

def aqkv_weights(e, akv):
    e(f'v_mov_b32 v9, {OOB}')
    if akv:
        e('s_and_b32 s19, s9, 1'); e('s_lshl_b32 s19, s19, 3'); e('s_add_u32 s34, s0, s19'); e('s_addc_u32 s35, s1, 0')
        e(f's_load_dwordx2 s[24:25], s[34:35], {A_WK}'); e(f's_mov_b32 s26, {640*40}'); e('s_mov_b32 s27, 0x20000')
        rs = 40; e('s_mov_b32 s17, 0')
    else:
        srd(e, 24, A_WQ, 640*1280); rs = 1280
        e('s_lshl_b32 s17, s8, 2'); e('s_add_u32 s17, s17, s9'); e('s_mul_i32 s17, s17, 40')
    e(f'v_mul_u32_u24 v4, {8*rs}, v2'); e('v_lshl_add_u32 v4, v1, 2, v4')
    e('v_cmp_le_u32 vcc, 10, v1'); e('v_cndmask_b32 v4, v4, v9, vcc')
    load_w(e, 20, rs, 32*rs, 4, 4)

def akv_body(e, tag, sc):
    e('s_lshl_b32 s18, s10, 12'); e(f's_add_u32 s18, s18, {KA}')
    e('s_cmp_lt_u32 s9, 2'); e(f's_cbranch_scc1 {tag}_W')
    for k in range(len(SITES)): site(e, k)
    if MID[0]: MID[0]()
    e(f's_branch {tag}_E'); e.label(f'{tag}_W')
    e('s_cmp_eq_u32 s9, 1'); e(f's_cbranch_scc1 {tag}_V')
    gemm(e, 20, False, False); epi_k(e)
    e(f's_branch {tag}_S')
    e.label(f'{tag}_V'); e.reset()
    gemm(e, 20, False, True); epi_v(e)
    e('v_mov_b32 v40, 0x3f803f80'); e('v_cmp_eq_u32 vcc, 10, v1')
    for k in range(4): e(f'v_cndmask_b32 v{32+k}, v{32+k}, v40, vcc')
    e('s_add_u32 s18, s18, 2048')
    e.label(f'{tag}_S')
    e(f'buffer_store_dwordx4 v[32:35], v0, {WS}, s18 offen {sc}'); e(f'buffer_store_dwordx4 v[36:39], v0, {WS}, s18 offen offset:1024 {sc}')
    e.label(f'{tag}_E')

def role_aq(e):
    lanes(e); aqkv_weights(e, False)
    e(f's_mov_b32 s12, {F_XA}'); e('s_lshl_b32 s13, s8, 2'); e(f's_add_u32 s13, s13, {F_AQ}'); e('s_mov_b32 s14, 0')
    e(f's_mov_b32 s29, {fbits(20**-0.5*math.log2(math.e))}')
    e('s_lshl_b32 s31, s8, 2'); e('s_add_u32 s31, s31, s9')
    def body():
        e('s_lshl_b32 s18, s10, 5'); e('s_add_u32 s18, s18, s31'); e('s_lshl_b32 s18, s18, 11'); e(f's_add_u32 s18, s18, {QA}')
        gemm(e, 20, False, False); epi_k(e, 's29')
        e(f'buffer_store_dwordx4 v[32:35], v0, {WS}, s18 offen sc1'); e(f'buffer_store_dwordx4 v[36:39], v0, {WS}, s18 offen offset:1024 sc1')
    gemm_loop(e, 'AQ', False, 0, 1, body, XNA, 40960, 2, 8, par_off(e, F_XA))

def role_akv(e):
    lanes(e); aqkv_weights(e, True)
    e(f's_mov_b32 s12, {F_XA}'); e(f's_mov_b32 s13, {F_AKV}'); e('s_mov_b32 s14, 0')
    gemm_loop(e, 'AK', False, 64, 1, lambda: akv_body(e, 'AKB', 'sc1'), XNA, 40960, 0, 8, par_off(e, F_XA))

def role_out(e, isA):
    lanes(e)
    if isA:
        srd(e, 24, A_WO, 640*1280); e('s_mov_b32 s30, 0'); e('s_mov_b32 s31, s8')
    else:
        srd(e, 24, B_WO, 4096*1280)
        e('s_mul_i32 s30, s8, 52'); e('s_lshr_b32 s30, s30, 8'); e('s_mul_i32 s19, s30, 5'); e('s_sub_u32 s31, s8, s19')
    e('v_mul_u32_u24 v4, 10240, v2'); e('v_lshl_add_u32 v4, v1, 2, v4'); e('v_mov_b32 v5, v4')
    if isA:
        e(f'v_mov_b32 v9, {OOB}')
        e('v_cmp_le_u32 vcc, 3, v2'); e('v_cndmask_b32 v4, v4, v9, vcc')
        e('v_cmp_le_u32 vcc, 2, v2'); e('v_cndmask_b32 v5, v5, v9, vcc')
    e(f's_mul_i32 s17, s30, {1024*1280}'); e('s_lshl_b32 s19, s31, 8'); e('s_add_u32 s17, s17, s19'); e('s_lshl_b32 s19, s9, 6'); e('s_add_u32 s17, s17, s19')
    load_w(e, 32, 1280, (20 if isA else 32)*1280, 4, 5)
    e('v_mul_u32_u24 v10, 2560, v1'); e('v_lshl_add_u32 v10, v2, 4, v10')
    e('s_lshl_b32 s29, s31, 9'); e('s_lshl_b32 s19, s9, 7'); e('s_add_u32 s29, s29, s19')
    e('s_mul_i32 s19, s30, 81920'); e('s_add_u32 s29, s29, s19'); e(f's_add_u32 s29, s29, {PA if isA else PB}')
    e('s_lshl_b32 s13, s8, 2'); e(f's_add_u32 s13, s13, {F_AO if isA else F_BO}')
    e('s_lshl_b32 s14, s30, 16')
    e('s_lshl_b32 s12, s30, 5'); e(f's_add_u32 s12, s12, {F_BA}')
    def body():
        gemm(e, 32, True, False)
        e(f's_mul_i32 s18, s10, {81920 if isA else 4*81920}'); e('s_add_u32 s18, s18, s29'); e(f's_add_u32 s19, s18, {16*2560}')
        for a in range(2):
            for i in range(4):
                for t in range(2): e(f'v_mov_b32 v{32+8*a+2*i+t}, v{ACC+8*a+4*t+i}')
            for hh in range(2):
                if not OPT.get('nost') or (a+hh == 0): e(f'buffer_store_dwordx4 {R(32+8*a+4*hh,4)}, v10, {WS}, s{18+a} offen offset:{64*hh} sc1')
    gemm_loop(e, 'AO' if isA else 'BO', True, 0, 1, body, OA if isA else OB, 65536 if isA else 262144, 1 if OPT.get('nost') else 4,
              32 if isA else 8, par_off(e, F_AT) if isA else None)

def wave_sum(e, x, t):
    dp = 'row_mask:0xf bank_mask:0xf'
    for sh in (8, 4, 2, 1): e(f'v_add_f32_dpp v{x}, v{x}, v{x} row_ror:{sh} {dp}')
    allred(e, 'v_add_f32', x, t)

def ln_token(e, xb):
    s, t = xb+15, xb+16
    e(f'v_add_f32 v{s}, v{xb}, v{xb+1}')
    for k in range(2, 10): e(f'v_add_f32 v{s}, v{s}, v{xb+k}')
    wave_sum(e, s, t)
    e(f'v_mul_f32 v{s}, {fbits(1/640)}, v{s}')
    for k in range(10): e(f'v_sub_f32 v{xb+k}, v{xb+k}, v{s}')
    e(f'v_mul_f32 v{s}, v{xb}, v{xb}')
    for k in range(1, 10): e(f'v_fmac_f32 v{s}, v{xb+k}, v{xb+k}')
    wave_sum(e, s, t)
    e(f'v_mov_b32 v{t}, {fbits(1e-5)}'); e(f'v_fmac_f32 v{t}, {fbits(1/640)}, v{s}')
    e(f'v_rsq_f32 v{t}, v{t}')
    for k in range(10): e(f'v_mul_f32 v{xb+k}, v{xb+k}, v{t}')
    for k in range(5): e(f'v_cvt_pk_bf16_f32 v{xb+10+k}, v{xb+2*k}, v{xb+2*k+1}')

def unpack(e, d, s):
    e(f'v_and_b32 v{d+1}, 0xffff0000, v{s}'); e(f'v_lshlrev_b32 v{d}, 16, v{s}')

def role_red(e, isA):
    lanes(e); nm = 'RA' if isA else 'RB'; NP = 1 if isA else 4; NT = 2 if isA else 1
    flagaddr(e, 3, 5 if isA else 20)
    e('v_lshrrev_b32 v4, 1, v0')
    e('v_lshrrev_b32 v6, 1, v1'); e('v_and_b32 v6, 3, v6'); e('v_lshlrev_b32 v5, 4, v6')
    e('v_lshrrev_b32 v6, 3, v1'); e('v_lshl_add_u32 v5, v6, 3, v5'); e('v_and_b32 v6, 1, v1'); e('v_lshl_add_u32 v5, v6, 2, v5')
    e('v_lshl_add_u32 v5, v2, 6, v5')
    e('s_lshr_b32 s30, s8, 1'); e('s_and_b32 s10, s8, 1')
    e('s_lshl_b32 s31, s30, 2'); e('s_add_u32 s31, s31, s9')
    if isA: e('s_lshl_b32 s31, s31, 1')
    srd(e, 24, A_X if isA else D_OUT, 2048*1280)
    e('s_lshl_b32 s13, s30, 2'); e('s_lshl_b32 s19, s10, 7'); e('s_add_u32 s13, s13, s19'); e(f's_add_u32 s13, s13, {F_XB if isA else F_XA}')
    e(f's_mov_b32 s12, {F_AO if isA else F_BO}')
    e.wait(lgkm=0)
    XO, XP, XF, PP = 16, 112, 128, 64
    e.label(f'{nm}_L')
    e('s_and_b32 s14, s10, 63'); e('s_lshl_b32 s14, s14, 5'); e('s_add_u32 s14, s14, s31'); e('s_mul_i32 s14, s14, 1280')
    e('s_lshr_b32 s15, s10, 6'); e(f's_mul_i32 s15, s15, {2*2048*1280}'); e('s_add_u32 s15, s15, s14'); e(f's_add_u32 s15, s15, {XR + (0 if isA else 2048*1280)}')
    e('s_add_u32 s16, s10, 1')
    wait_flag(e, 3, 's12', 's16', 9)
    e(f's_mul_i32 s18, s10, {NP*81920}'); e('s_mul_i32 s19, s31, 2560'); e('s_add_u32 s18, s18, s19'); e(f's_add_u32 s18, s18, {PA if isA else PB}')
    for p in range(NP*NT):
        for k in range(5): e(f'buffer_load_dwordx2 {R(PP+10*p+2*k,2)}, v4, {WS}, s18 offen offset:{512*k} sc1')
        if p+1 < NP*NT: e(f's_add_u32 s18, s18, {2560 if isA else 81920}')
    if isA:
        e('s_cmp_ge_u32 s10, 64'); e(f's_cbranch_scc1 {nm}_X')
        sv = e.save()
        for k in range(5*NT): e(f'buffer_load_dword v{XO+k}, v5, s[24:27], s14 offen offset:{256*k}')
        e(f's_branch {nm}_Y'); e.label(f'{nm}_X'); e.restore(sv)
    for k in range(5*NT): e(f'buffer_load_dword v{XO+k}, v5, {WS}, s15 offen offset:{256*k} sc1')
    if isA: e.label(f'{nm}_Y')
    for p in range(1, NP):
        for k in range(10): e(f'v_add_f32 v{PP+k}, v{PP+k}, v{PP+10*p+k}')
    for u in range(NT):
        for k in range(5):
            e(f'v_cvt_pk_bf16_f32 v{XP+5*u+k}, v{PP+10*u+2*k}, v{PP+10*u+2*k+1}')
            unpack(e, PP+10*u+2*k, XP+5*u+k); unpack(e, XF+20*u+2*k, XO+5*u+k)
        for k in range(10): e(f'v_add_f32 v{XF+20*u+k}, v{XF+20*u+k}, v{PP+10*u+k}')
        for k in range(5): e(f'v_cvt_pk_bf16_f32 v{XP+5*u+k}, v{XF+20*u+2*k}, v{XF+20*u+2*k+1}')
    e(f's_add_u32 s15, s15, {2048*1280}')
    if not isA:
        e('s_cmp_lt_u32 s10, 64'); e(f's_cbranch_scc1 {nm}_X')
        for k in range(5): e(f'buffer_store_dword v{XP+k}, v5, s[24:27], s14 offen offset:{256*k}')
        if TRACE[0]: e('s_add_u32 s16, s10, 65'); trace(e, 's16', 9)
        e(f's_branch {nm}_N'); e.label(f'{nm}_X')
    e('s_mul_i32 s18, s10, 40960'); e('s_mul_i32 s19, s31, 1280'); e('s_add_u32 s18, s18, s19'); e(f's_add_u32 s18, s18, {XNB if isA else XNA + 64*40960}')
    for u in range(NT):
        for k in range(5): unpack(e, XF+20*u+2*k, XP+5*u+k)
        ln_token(e, XF+20*u)
        for k in range(5): e(f'buffer_store_dword v{XF+20*u+10+k}, v5, {WS}, s18 offen offset:{1280*u+256*k} sc1')
    for k in range(5*NT): e(f'buffer_store_dword v{XP+k}, v5, {WS}, s15 offen offset:{256*k} sc1')
    e.wait(vm=0); e('s_barrier')
    e(f's_add_u32 s16, s10, {1 if isA else 65}')
    set_flag(e, 's13', 's16', 9)
    if not isA: e.label(f'{nm}_N')
    e('s_add_u32 s10, s10, 2'); e('s_cmp_lt_u32 s10, 128'); e(f's_cbranch_scc1 {nm}_L')
    e.wait(vm=0); e('s_endpgm')

def need_prog(e, sc, soff, need, t, two=False):
    lp = e.newlabel('NP'); dn = e.newlabel('ND')
    e(f's_cmp_ge_u32 {sc}, {need}'); e(f's_cbranch_scc1 {dn}')
    sv = e.save()
    e.label(lp)
    if two:
        e(f'buffer_load_dwordx2 {R(t,2)}, off, {WS}, {soff} sc1'); e(f'v_min_u32 v{t}, v{t}, v{t+1}')
    else: e(f'buffer_load_dword v{t}, off, {WS}, {soff} sc1')
    e(f'v_readfirstlane_b32 {sc}, v{t}')
    e(f's_cmp_ge_u32 {sc}, {need}'); e(f's_cbranch_scc1 {dn}')
    e('s_sleep 2')
    e('s_sub_u32 s20, s20, 1'); e('s_cmp_gt_i32 s20, 0'); e(f's_cbranch_scc1 {lp}')
    e.label(dn); e.restore(sv)

def role_att(e):
    lanes(e)
    e('s_lshr_b32 s31, s8, 1'); e('s_and_b32 s30, s8, 1')
    e('s_lshr_b32 s12, s31, 2'); e('s_lshl_b32 s12, s12, 2'); e(f's_add_u32 s12, s12, {F_AQ}')
    e('s_lshl_b32 s13, s30, 7'); e('s_lshl_b32 s19, s31, 2'); e('s_add_u32 s13, s13, s19'); e(f's_add_u32 s13, s13, {F_AT}')
    e(f's_mov_b32 s14, {F_AKV}'); e('s_mov_b32 s25, 0'); e('s_mov_b32 s26, 0')
    e('s_lshl_b32 s19, s9, 12'); e('v_add_u32 v4, s19, v0')
    e('v_lshlrev_b32 v5, 12, v2'); e('v_lshl_add_u32 v5, v1, 4, v5')
    e('s_lshl_b32 s19, s9, 11'); e('v_add_u32 v6, s19, v0')
    e('s_lshl_b32 s19, s9, 7'); e('v_lshlrev_b32 v7, 3, v1'); e('v_add_u32 v7, s19, v7')
    e('v_lshlrev_b32 v8, 7, v2'); e('v_lshl_add_u32 v8, v1, 3, v8')
    e(f's_mov_b32 s28, {fbits(2.0**-80)}'); e(f's_mov_b32 s29, {fbits(2.0**80)}')
    zero(e, 24, 8)
    e('s_mov_b32 s11, 0')
    e.label('AT_LAY')
    e('s_lshl_b32 s17, s8, 2'); e('s_cmp_eq_u32 s11, 0'); e('s_cselect_b32 s17, s17, 0'); e('s_add_u32 s17, s17, s9')
    for i in range(16):
        e('s_and_b32 s17, s17, 63'); e('s_add_u32 s16, s11, s17'); e('s_lshl_b32 s18, s16, 12'); e(f's_add_u32 s18, s18, {KA}'); e('s_add_u32 s16, s16, 1')
        need_prog(e, 's25', 's14', 's16', 9)
        for k in range(4): e(f'buffer_load_dwordx4 {R(16*i+4*k,4,"a")}, v0, {WS}, s18 offen offset:{1024*k} sc1')
        e('s_add_u32 s17, s17, 4')
        if i == 7: e.wait(vm=0)
    e('s_add_u32 s10, s11, s30')
    e.label('AT_U')
    e('s_add_u32 s16, s10, 1')
    need_prog(e, 's26', 's12', 's16', 9)
    e('s_lshl_b32 s18, s10, 5'); e('s_add_u32 s18, s18, s31'); e('s_lshl_b32 s18, s18, 11'); e(f's_add_u32 s19, s18, {QA}')
    e(f'buffer_load_dwordx4 v[16:19], v0, {WS}, s19 offen sc1'); e(f'buffer_load_dwordx4 v[20:23], v0, {WS}, s19 offen offset:1024 sc1')
    e('s_mov_b32 s15, 0')
    e.wait(vm=0)
    e.label('AT_M')
    def sco(i, kt, a, c=None):
        return f'{mf} {R(32+16*(i&1)+8*a+4*kt,4)}, {R(16*i+4*kt,4,"a")}, {R(16+4*a,4)}, {c if c is not None else R(24+4*a,4)}'
    def pv(i, a, t):
        d = R(72+8*a+4*t, 4)
        return f'{mf} {d}, {R(16*i+8+4*t,4,"a")}, {R(64+4*a,4)}, {d if i else 0}'
    for a in range(2):
        for kt in range(2): e(sco(0, kt, a))
    for i in range(16):
        b = 32+16*(i & 1)
        ms = {}
        if i: ms[1] = pv(i-1, 1, 0); ms[3] = pv(i-1, 1, 1)
        if i < 15:
            ms[5] = sco(i+1, 0, 0); ms[7] = sco(i+1, 1, 0); ms[18] = sco(i+1, 0, 1); ms[20] = sco(i+1, 1, 1)
        ms[14] = pv(i, 0, 0); ms[16] = pv(i, 0, 1)
        V = []
        for a in range(2):
            V += [f'v_exp_f32 v{b+8*a+k}, v{b+8*a+k}' for k in range(8)]
            V += [f'v_cvt_pk_bf16_f32 v{64+4*a+k}, v{b+8*a+2*k}, v{b+8*a+2*k+1}' for k in range(4)]
        for k, x in enumerate(V):
            if k in ms: e(ms[k])
            e(x)
    e(pv(15, 1, 0)); e(pv(15, 1, 1))
    for k in range(4): e(f'ds_write_b128 v4, {R(72+4*k,4)} offset:{1024*k}')
    e.barrier()
    e('ds_read_b32 v32, v5 offset:520'); e('ds_read_b32 v33, v5 offset:2568')
    for ww in range(4):
        for t in range(2): e(f'ds_read_b128 {R(40+8*ww+4*t,4)}, v6 offset:{4096*ww+1024*t}')
    allred(e, 'v_add_f32', 32, 34); allred(e, 'v_add_f32', 33, 34)
    e('v_cmp_lt_f32 s[32:33], s28, v32'); e('v_cmp_lt_f32 s[34:35], s28, v33')
    e('v_cmp_gt_f32 s[36:37], s29, v32'); e('v_cmp_gt_f32 s[38:39], s29, v33')
    e('s_nop 1')
    e('s_and_b64 s[32:33], s[32:33], s[34:35]'); e('s_and_b64 s[36:37], s[36:37], s[38:39]'); e('s_and_b64 s[32:33], s[32:33], s[36:37]')
    e('s_cmp_eq_u64 s[32:33], -1'); e('s_cbranch_scc1 AT_OK')
    e('s_cmp_lg_u32 s15, 0'); e('s_cbranch_scc1 AT_OK')
    sv = e.save()
    e.wait(lgkm=0)
    e('s_mov_b32 s15, 1')
    e('v_mov_b32 v10, 0xff800000'); e('v_mov_b32 v11, 0xff800000')
    for i in range(16):
        for a in range(2):
            for kt in range(2): e(sco(i, kt, a, 0))
        b = 32+16*(i & 1)
        for a in range(2):
            for k in range(4): e(f'v_max3_f32 v{10+a}, v{10+a}, v{b+8*a+2*k}, v{b+8*a+2*k+1}')
    allred(e, 'v_max_f32', 10, 12); allred(e, 'v_max_f32', 11, 12)
    e('ds_write_b64 v7, v[10:11] offset:16384')
    e.barrier()
    e('ds_read_b64 v[10:11], v8 offset:16384')
    allred(e, 'v_max_f32', 10, 12); allred(e, 'v_max_f32', 11, 12)
    for a in range(2):
        for k in range(4): e(f'v_sub_f32 v{24+4*a+k}, 0, v{10+a}')
    e('s_nop 1'); e('s_branch AT_M')
    e.label('AT_OK'); e.restore(sv)
    zero(e, 24, 8)
    e('s_cmp_ge_u32 s9, 2'); e('s_cbranch_scc1 AT_F')
    e('s_cmp_eq_u32 s9, 1'); e('s_cselect_b64 vcc, -1, 0'); e('v_cndmask_b32 v32, v32, v33, vcc')
    e('v_rcp_f32 v32, v32')
    for ww in range(1, 4):
        for k in range(8): e(f'v_add_f32 v{40+k}, v{40+k}, v{40+8*ww+k}')
    for k in range(8): e(f'v_mul_f32 v{40+k}, v{40+k}, v32')
    for k in range(4): e(f'v_cvt_pk_bf16_f32 v{36+k}, v{40+k}, v{44+k}')
    e('s_lshl_b32 s19, s9, 10'); e('s_add_u32 s18, s18, s19'); e(f's_add_u32 s18, s18, {OA}')
    e(f'buffer_store_dwordx4 v[36:39], v0, {WS}, s18 offen sc1')
    e.label('AT_F')
    e.wait(vm=0, lgkm=0); e('s_barrier')
    set_flag(e, 's13', 's16', 9)
    e('s_add_u32 s10, s10, 2'); e('s_sub_u32 s19, s10, s11'); e('s_cmp_lt_u32 s19, 64'); e('s_cbranch_scc1 AT_U')
    e('s_add_u32 s11, s11, 64'); e('s_cmp_lt_u32 s11, 128'); e('s_cbranch_scc1 AT_LAY')
    e.wait(vm=0); e('s_endpgm')

def role_batt(e):
    LM = 139264
    lanes(e)
    e('s_lshl_b32 s12, s8, 7'); e(f's_add_u32 s14, s12, {F_CH}'); e(f's_add_u32 s12, s12, {F_KV}')
    e('s_lshl_b32 s13, s8, 2'); e(f's_add_u32 s13, s13, {F_BA}')
    e('s_mov_b32 s25, 0'); e('s_mov_b32 s26, 0')
    e('s_lshr_b32 s30, s9, 1'); e('s_and_b32 s31, s9, 1')
    e('s_lshl_b32 s19, s30, 12'); e('v_add_u32 v8, s19, v0')
    e('v_lshrrev_b32 v10, 2, v1'); e('v_lshlrev_b32 v10, 8, v10'); e('v_lshl_add_u32 v10, v2, 6, v10')
    e('v_and_b32 v11, 1, v1'); e('v_lshl_add_u32 v10, v11, 2, v10'); e(f'v_add_u32 v10, {LM}, v10')
    e('s_lshl_b32 s19, s31, 11'); e(f's_add_u32 s19, s19, {LM+8}'); e('v_add_u32 v11, s19, v0')
    e('v_mov_b32 v12, v0')
    e('s_lshl_b32 s19, s31, 12'); e('v_add_u32 v13, s19, v0')
    e('s_lshl_b32 s19, s30, 4'); e('v_add_u32 v14, s19, v1'); e('v_lshlrev_b32 v15, 2, v2'); e('v_sub_u32 v14, v14, v15')
    for k in range(8): e(f'v_cmp_gt_i32 s[{40+2*k}:{41+2*k}], {16*(k>>2)+(k&3)}, v14')
    e(f's_mov_b32 s21, {fbits(128**-0.5*math.log2(math.e))}')
    e('s_lshl_b32 s11, s9, 10')
    def fetch(gs):
        e(f's_add_u32 s16, {gs}, 1')
        need_prog(e, 's25', 's12', 's16', 14, True)
        e(f's_lshl_b32 s18, {gs}, 5'); e(f's_add_u32 s18, s18, s8'); e('s_lshl_b32 s36, s18, 13'); e(f's_mul_i32 s18, s18, {SEG}')
        e('s_lshl_b32 s19, s9, 10'); e('s_add_u32 s18, s18, s19'); e('s_add_u32 s36, s36, s19')
        for sb, gb, lo in ((36, QB, 32768), (36, QB+4096, 36864), (18, KX, 40960), (18, KX+4096, 45056), (18, VX, 49152), (18, VX+4096, 53248)):
            e(f's_add_u32 m0, s11, {lo}'); e(f's_add_u32 s19, s{sb}, {gb}')
            e(f'buffer_load_dwordx4 v0, {WS}, s19 offen sc1 lds')
        e('s_xor_b32 s11, s11, 0x10000'); e(f'buffer_load_dword v116, off, {WS}, s14 sc1')
    def kvm():
        e(f's_mul_i32 s19, s38, {SEG}'); e('s_lshl_b32 s16, s9, 10'); e('s_add_u32 s19, s19, s16'); e(f's_add_u32 s19, s19, {KVM}')
        e(f's_add_u32 m0, s16, {LM}')
        e(f'buffer_load_dwordx4 v0, {WS}, s19 offen sc1 lds')
    e('s_mov_b32 s10, 0')
    e.label('BA_LAY')
    fetch('s10')
    e.wait(vm=0)
    e.label('BA_L')
    e.wait(vm=2, lgkm=0); e('s_barrier'); e.reset()
    for ks in range(4):
        e(f'ds_read_b128 {R(64+4*ks,4)}, v8 offset:{32768+1024*ks}')
        for b in range(2): e(f'ds_read_b128 {R(80+16*b+4*ks,4)}, v12 offset:{40960+(4*b+ks)*1024}')
    e('v_readfirstlane_b32 s16, v116'); e('s_max_u32 s26, s26, s16')
    e('s_add_u32 s28, s10, 1'); e('s_and_b32 s29, s28, 63')
    e('s_lshl_b32 s38, s10, 5'); e('s_add_u32 s38, s38, s8')
    e('s_cmp_ge_u32 s26, s28'); e('s_cselect_b32 s27, 1, 0'); e('s_cbranch_scc0 BA_P')
    sv = e.save(); kvm()
    e.label('BA_P'); e.restore(sv)
    S = 16
    for ks in range(4):
        for b in range(2): e(f'{mf} {R(S+4*b,4)}, {R(80+16*b+4*ks,4)}, {R(64+4*ks,4)}, {R(S+4*b,4) if ks else 0}')
    for k in range(4): e(f'ds_read_b128 {R(80+4*k,4)}, v13 offset:{49152+1024*k}')
    e('v_mov_b32 v15, 0xff800000')
    for k in range(8): e(f'v_cndmask_b32 v{S+k}, v{S+k}, v15, s[{40+2*k}:{41+2*k}]')
    for k in range(4): e(f'v_mov_b32 v{28+k}, 0x3f803f80')
    e.wait(vm=0, lgkm=0); e('s_barrier')
    set_flag(e, 's13', 's10', 9)
    e('s_cmp_eq_u32 s29, 0'); e('s_cbranch_scc1 BA_Q')
    fetch('s28')
    e.label('BA_Q'); e.reset()
    e('s_cmp_lg_u32 s27, 0'); e('s_cbranch_scc1 BA_J')
    need_prog(e, 's26', 's14', 's28', 14)
    kvm()
    e.wait(vm=0)
    e.label('BA_J'); e.reset()
    e('s_barrier')
    for ks in range(4):
        e(f'v_add_u32 v14, {1024*ks}, v10')
        e(f'ds_read2_b32 {R(96+4*ks,2)}, v14 offset0:0 offset1:4'); e(f'ds_read2_b32 {R(98+4*ks,2)}, v14 offset0:8 offset1:12')
    e('ds_read_b64 v[112:113], v11'); e('ds_read_b64 v[114:115], v11 offset:1024')
    Sm = 24
    for ks in range(4): e(f'{mf} {R(Sm,4)}, {R(96+4*ks,4)}, {R(64+4*ks,4)}, {R(Sm,4) if ks else 0}')
    sc = [S+k for k in range(10)]
    e(f'v_max3_f32 v14, v{sc[0]}, v{sc[1]}, v{sc[2]}')
    for k in (3, 5, 7): e(f'v_max3_f32 v14, v14, v{sc[k]}, v{sc[k+1]}')
    e(f'v_max_f32 v14, v14, v{sc[9]}')
    allred(e, 'v_max_f32', 14, 15)
    e('v_mul_f32 v14, s21, v14')
    for r in sc: e(f'v_fma_f32 v{r}, v{r}, s21, -v14')
    for r in sc: e(f'v_exp_f32 v{r}, v{r}')
    P = 32
    for k in range(5): e(f'v_cvt_pk_bf16_f32 v{P+k}, v{S+2*k}, v{S+2*k+1}')
    e(f'v_mov_b32 v{P+5}, 0'); e(f'v_mov_b32 v{P+6}, 0'); e(f'v_mov_b32 v{P+7}, v{P+4}')
    e(f'{mf} v[16:19], v[28:31], {R(P,4)}, 0')
    for k in range(4): e(f'{mf} {R(40+4*k,4)}, {R(80+4*k,4)}, {R(P,4)}, 0')
    e(f'{m16} v[16:19], v[28:29], {R(P+4,2)}, v[16:19]')
    for k in range(4):
        e(f'{m16} {R(40+4*k,4)}, {R(112+2*(k>>1),2)}, {R(P+4+2*(k&1),2)}, {R(40+4*k,4)}')
    e('v_rcp_f32 v14, v16')
    e('s_lshl_b32 s18, s38, 13'); e('s_lshl_b32 s19, s31, 12'); e('s_add_u32 s18, s18, s19'); e('s_lshl_b32 s19, s30, 10'); e('s_add_u32 s18, s18, s19'); e(f's_add_u32 s18, s18, {OB}')
    for sl in range(2):
        for k in range(8): e(f'v_mul_f32 v{40+8*sl+k}, v{40+8*sl+k}, v14')
        for k in range(4): e(f'v_cvt_pk_bf16_f32 v{56+4*sl+k}, v{40+8*sl+k}, v{44+8*sl+k}')
        e(f'buffer_store_dwordx4 {R(56+4*sl,4)}, v0, {WS}, s18 offen offset:{2048*sl} sc1')
    for r in (8, 12, 13): e(f'v_xor_b32 v{r}, 0x10000, v{r}')
    e('s_mov_b32 s10, s28')
    e('s_cmp_lg_u32 s29, 0'); e('s_cbranch_scc1 BA_L')
    e.wait(vm=0, lgkm=0); e('s_barrier')
    set_flag(e, 's13', 's10', 9)
    e('s_cmp_lt_u32 s10, 128'); e('s_cbranch_scc1 BA_LAY')
    e.wait(vm=0); e('s_endpgm')

def kernel0(e):
    e('s_cmp_ge_u32 s2, 64'); e('s_cbranch_scc1 K0_END')
    e(f's_load_dwordx2 s[4:5], s[0:1], {D_WS}'); e(f's_mov_b32 s6, {WS_BYTES}'); e('s_mov_b32 s7, 0x20000')
    e('v_lshrrev_b32 v1, 6, v0'); e('v_readfirstlane_b32 s9, v1')
    e('v_lshlrev_b32 v10, 4, v0')
    lanes(e)
    srd(e, 28, A_X, 2048*1280)
    e('v_lshrrev_b32 v11, 2, v0')
    e('s_lshl_b32 s14, s2, 5'); e('s_lshl_b32 s19, s9, 3'); e('s_add_u32 s14, s14, s19'); e('s_mul_i32 s14, s14, 1280')
    for tk in range(8):
        e(f's_add_u32 s19, s14, {tk*1280}')
        for k in range(5): e(f'buffer_load_dword v{128+5*tk+k}, v11, s[28:31], s19 offen offset:{256*k}')
    zero(e, 12, 4, -1)
    e('s_and_b32 s18, s2, 31'); e('s_mul_i32 s18, s18, 10240'); e('s_lshr_b32 s19, s2, 5'); e('s_lshl_b32 s19, s19, 19'); e('s_add_u32 s18, s18, s19'); e(f's_add_u32 s18, s18, {PART}')
    for k in (0, 4096, 6144):
        e(f's_add_u32 s19, s18, {k}'); e(f'buffer_store_dwordx4 v[12:15], v10, {WS}, s19 offen')
    e('s_lshl_b32 s19, s2, 10'); e(f's_add_u32 s19, s19, {MEMR}'); e(f'buffer_store_dwordx4 v[12:15], v0, {WS}, s19 offen')
    e('s_cmp_ge_u32 s2, 3'); e('s_cbranch_scc1 K0_NF')
    sv = e.save()
    e('s_lshl_b32 s19, s2, 12'); e('v_add_u32 v16, s19, v10'); e('v_and_b32 v16, 0xfdff, v16'); e('v_lshrrev_b32 v16, 8, v16')
    e(f'v_cmp_eq_u32 vcc, {F_XA>>8}, v16'); e('v_cndmask_b32 v16, 0, 64, vcc')
    for k in range(1, 4): e(f'v_mov_b32 v{16+k}, v16')
    e(f'buffer_store_dwordx4 v[16:19], v10, {WS}, s19 offen')
    e.wait(vm=0)
    e.label('K0_NF'); e.restore(sv)
    aqkv_weights(e, True)
    xn_setup(e)
    e(f's_add_u32 s14, s14, {XNA}')
    e('v_lshrrev_b32 v12, 9, v0'); e('v_lshlrev_b32 v12, 12, v12'); e('s_lshl_b32 s19, s9, 10'); e('v_add_u32 v12, s19, v12')
    e('v_and_b32 v13, 12, v11'); e('v_add_u32 v12, v12, v13'); e('v_and_b32 v13, 0x70, v11')
    for tk in range(8):
        for k in range(5): unpack(e, 32+2*k, 128+5*tk+k)
        ln_token(e, 32)
        e(f's_add_u32 s19, s14, {tk*1280}')
        e(f'v_xor_b32 v14, {tk*16}, v13'); e('v_add_u32 v14, v14, v12')
        for k in range(5):
            e(f'buffer_store_dword v{42+k}, v11, {WS}, s19 offen offset:{256*k}')
            e(f'ds_write_b32 v14, v{42+k} offset:{8192*k + tk*128}')
    e.barrier()
    e('s_mov_b32 s10, s2')
    akv_body(e, 'K0B', '')
    e.wait(vm=0)
    e.label('K0_END')
    e('s_endpgm')
```

```python
from em import Em, R
from layout import *
import math, struct

def fbits(x): return struct.unpack('<I', struct.pack('<f', x))[0]

L_MEM = 0; L_O = 0; L_KX = 10240; L_QK = 18432; L_SEL = 23040; L_MISC = 24064; L_W = 24576
QS = 288; L_K = L_QK + 8*QS
Q0, Q1, VA = 16, 24, 32
ABUF = [12, 40, 44]
X = [48, 56, 64, 72]
OWN = [[0,1,2],[3,4,5],[6,7],[8,9]]
WS = 's[4:7]'
NSCR = 9
BLK = SEG

def plan(w, cfg={}):
    own = OWN[w]
    order = own + [c % 10 for c in range(own[-1]+1, own[-1]+1+10-len(own))]
    qk = []
    for j, c in enumerate(order):
        if j < 8: qk += [(m, t, c) for (m, t) in (('q',0),('q',1),('k',0),('k',1))]
        if j < 7: qk += [('v',0,c),('v',1,c)]
    qk += [(m, t, order[j]) for m in 'qk' for j in (8, 9) for t in (0, 1)]
    for j in (9, 8, 7): qk += [('v',0,order[j]),('v',1,order[j])]
    o = [('o', t, c) for t in ((0,1,2,3,4,5,6,7,8,9) if cfg.get('oo', 1) else (8,9,0,1,2,3,4,5,6,7)) for c in (0,1)]
    qs = [[(0,'S'),(26,'S'),(32,'L'),(59,'S')],
          [(1,'S'),(7,'L'),(35,'S'),(41,'L'),(47,'L'),(53,'L')],
          [(2,'L'),(8,'L'),(13,'L'),(19,'L'),(45,'S'),(51,'L')],
          [(3,'L'),(9,'L'),(15,'L'),(21,'L'),(27,'L'),(52,'S')]]
    os_ = [[(0,'S'),(7,'L')], [(1,'S'),(8,'L')]]
    if cfg.get('early', 1):
        qs[2][0] = (2,'S'); qs[3][0] = (3,'S'); os_ = [[(0,'L'),(7,'L')], [(1,'L'),(8,'L')]]
    if cfg.get('l3', 0): qs[3] = [(10,'S'),(16,'L'),(22,'L'),(28,'L'),(33,'L'),(54,'S')]
    if cfg.get('l2', 0): qs[2] = [(9,'S'),(14,'L'),(19,'L'),(24,'L'),(46,'S'),(51,'L')]
    if cfg.get('ev', 0):
        qs = [[(0,'S'),(24,'S'),(29,'L'),(34,'L'),(59,'S')],
              [(1,'S'),(7,'L'),(36,'S'),(41,'L'),(46,'L'),(51,'L'),(55,'L')],
              [(2,'S'),(8,'L'),(13,'L'),(18,'L'),(23,'L'),(28,'L'),(33,'L')],
              [(3,'S'),(30,'S'),(54,'S')]]
    def mk(sl):
        u = []
        for k, l in enumerate(sl):
            for i, (p, ty) in enumerate(l): u.append((p, ty, k, l[i-1][0] if i else None))
        return u
    qu, ou = mk(qs), mk(os_)
    loc = {}; nl = ns = 0
    for lst, us in ((qk, qu), (o, ou)):
        for (p, ty, sl, ia) in us:
            if ty == 'L': loc[lst[p]] = ('L', nl*2048); nl += 1
            else: loc[lst[p]] = ('S', ns); ns += 1
    assert nl == 17 and ns == 9, (nl, ns)
    res = [f for f in o if f not in loc] + [f for f in qk if f not in loc]
    assert len(res) == 54, len(res)
    for i, f in enumerate(res):
        loc[f] = ('R', 'a', 8*i) if i < 32 else ('R', 'v', 80 + 8*(i-32))
    return order, qk, o, qu, ou, loc

def srd(e, base, koff, nbytes):
    e(f's_load_dwordx2 s[{base}:{base+1}], s[0:1], {koff}')
    e(f's_mov_b32 s{base+2}, {nbytes}')
    e(f's_mov_b32 s{base+3}, 0x20000')

def put_frag(e, loc, f, srcs):
    L = loc[f]
    put_frag.k ^= 1
    tmp = 64 + 8*put_frag.k
    for j, (r1, r0, sel) in enumerate(srcs):
        d = L[2]+j if (L[0] == 'R' and L[1] == 'v') else tmp+j
        e(f'v_perm_b32 v{d}, v{r1}, v{r0}, {sel}')
    if L[0] == 'R' and L[1] == 'a':
        for j in range(8): e(f'v_accvgpr_write_b32 a{L[2]+j}, v{tmp+j}')
    elif L[0] == 'L':
        e(f'ds_write_b128 v5, {R(tmp,4)} offset:{L[1]}')
        e(f'ds_write_b128 v5, {R(tmp+4,4)} offset:{L[1]+1024}')
    elif L[0] == 'S':
        e(f's_add_u32 s19, s18, {L[1]*2048}')
        e(f'buffer_store_dwordx4 {R(tmp,4)}, v0, {WS}, s19 offen')
        e(f'buffer_store_dwordx4 {R(tmp+4,4)}, v0, {WS}, s19 offen offset:1024')
put_frag.k = 0

def krow(j, b): return 32*(j>>2) + 2*((j>>1)&1) + 8*(j&1) + b

def prologue(e, w, loc):
    e('v_and_b32 v0, 63, v0')
    e('v_and_b32 v12, 15, v0')
    e('v_lshrrev_b32 v13, 4, v0')
    e('v_lshlrev_b32 v0, 4, v0')
    e('s_mov_b32 s22, 0x05040100')
    e('s_mov_b32 s23, 0x07060302')
    e(f'v_add_u32 v5, {L_W + w*17*2048}, v0')
    e(f's_mul_i32 s18, s8, {4*NSCR*2048}')
    e(f's_add_u32 s18, s18, {SCR + w*NSCR*2048}')
    e('v_lshrrev_b32 v14, 1, v13')
    e('v_lshlrev_b32 v14, 4, v14')
    e('v_and_b32 v1, 1, v13')
    e('v_lshl_add_u32 v14, v1, 2, v14')
    srd(e, 24, B_WO, 32*128*640*2)
    e('v_mul_u32_u24 v2, 1280, v14')
    e('v_lshl_add_u32 v3, v12, 2, v2')
    e('v_lshl_add_u32 v2, v12, 4, v2')
    e(f'v_add_u32 v2, {256*w}, v2')
    e(f'v_add_u32 v3, {1024+64*w}, v3')
    e('s_mul_i32 s17, s8, 163840')
    for c in range(2):
        for j in range(8):
            for b in range(2):
                e(f's_add_u32 s19, s17, {(64*c+krow(j,b))*1280}')
                e(f'buffer_load_dwordx4 {R(80+c*64+(2*j+b)*4,4)}, v2, s[24:27], s19 offen')
                e(f'buffer_load_dword v{208+c*16+2*j+b}, v3, s[24:27], s19 offen')
    for c in range(2):
        for t in range(8):
            put_frag(e, loc, ('o',t,c), [(80+c*64+(2*j+1)*4+(t>>1), 80+c*64+(2*j)*4+(t>>1), 's23' if t&1 else 's22') for j in range(8)])
        for t in (8,9):
            put_frag(e, loc, ('o',t,c), [(208+c*16+2*j+1, 208+c*16+2*j, 's23' if t&1 else 's22') for j in range(8)])
    srd(e, 24, B_WQ, 640*4096*2); srd(e, 28, B_WK, 640*4096*2); srd(e, 32, B_WV, 640*4096*2)
    e('v_lshlrev_b32 v2, 13, v14')
    e('v_lshl_add_u32 v2, v12, 2, v2')
    e(f'v_add_u32 v2, {64*w}, v2')
    e('s_lshl_b32 s17, s8, 8')
    units = [(m, c) for m in 'qkv' for c in range(10)]
    def issue(u):
        m, c = units[u]; sb = {'q':24,'k':28,'v':32}[m]
        for j in range(8):
            for b in range(2):
                e(f's_add_u32 s19, s17, {(64*c+krow(j,b))*8192}')
                e(f'buffer_load_dword v{16+(u%3)*16+2*j+b}, v2, s[{sb}:{sb+3}], s19 offen')
    for u in range(3): issue(u)
    for u, (m, c) in enumerate(units):
        bb = 16+(u%3)*16
        for t in range(2):
            put_frag(e, loc, (m,t,c), [(bb+2*j+1, bb+2*j, 's23' if t else 's22') for j in range(8)])
        if u+3 < len(units): issue(u+3)
    e('v_lshrrev_b32 v14, 1, v12'); e('v_and_b32 v14, 1, v14')
    e('v_mov_b32 v1, 0x4444'); e('v_mov_b32 v15, 0xeeee')
    e('v_cmp_eq_u32 vcc, 1, v14'); e('v_cndmask_b32 v1, v1, v15, vcc')
    e('v_lshrrev_b32 v15, 2, v12'); e('v_lshlrev_b32 v15, 1, v15'); e('v_and_b32 v16, 1, v12'); e('v_add_u32 v15, v15, v16')
    e('v_mul_u32_u24 v7, 1280, v15'); e('v_lshl_add_u32 v7, v13, 5, v7'); e('v_lshl_add_u32 v7, v14, 4, v7')
    e(f'v_mul_u32_u24 v10, {QS}, v15'); e('v_lshl_add_u32 v10, v13, 4, v10'); e(f'v_add_u32 v10, {L_K}, v10')
    e('v_and_b32 v16, 7, v12')
    e(f'v_mul_u32_u24 v9, {QS}, v16'); e('v_lshl_add_u32 v9, v13, 4, v9'); e(f'v_add_u32 v9, {L_QK}, v9')
    e(f'v_mul_u32_u24 v8, {2*QS}, v13'); e('v_lshl_add_u32 v8, v12, 2, v8'); e(f'v_add_u32 v8, {L_QK+64*w}, v8')
    e('v_lshrrev_b32 v17, 1, v16'); e('v_lshlrev_b32 v17, 2, v17'); e('v_and_b32 v18, 1, v16'); e('v_add_u32 v17, v17, v18')
    e('v_and_b32 v18, 1, v13'); e('v_lshl_add_u32 v17, v18, 1, v17')
    e('v_lshrrev_b32 v18, 1, v13'); e('v_lshl_add_u32 v17, v18, 4, v17')
    e('v_lshlrev_b32 v11, 4, v17'); e(f'v_add_u32 v11, {L_O + (w>>1)*1024 + (w&1)*512}, v11')
    e('s_mul_i32 s19, s8, 10240')
    e('v_mul_u32_u24 v2, 2560, v13'); e('v_add_u32 v2, s19, v2')
    e('v_lshl_add_u32 v3, v12, 2, v2'); e(f'v_add_u32 v3, {1024+64*w}, v3')
    e('v_lshl_add_u32 v2, v12, 4, v2'); e(f'v_add_u32 v2, {256*w}, v2')
    e('v_lshrrev_b32 v16, 3, v12'); e('v_lshl_add_u32 v16, v13, 1, v16')
    e('v_and_b32 v17, 7, v12')
    e(f's_lshl_b32 s19, s8, 7'); e(f's_add_u32 s19, s19, {32*128*w}')
    e('v_mul_u32_u24 v4, 10240, v16'); e('v_lshl_add_u32 v4, v17, 4, v4'); e('v_add_u32 v4, s19, v4')
    if w == 0:
        e('v_and_b32 v16, 1, v12'); e('v_mov_b32 v17, 0x3f80'); e('v_mov_b32 v18, 0x3f800000')
        e('v_cmp_eq_u32 vcc, 1, v16'); e('v_cndmask_b32 v17, v17, v18, vcc')
        e('v_lshrrev_b32 v16, 1, v12')
        for i in range(4):
            e(f'v_cmp_eq_u32 vcc, {i}, v16'); e(f'v_cndmask_b32 v{20+i}, 0, v17, vcc')
        e(f'ds_write_b128 v0, v[20:23] offset:{L_SEL}')
    e(f's_mov_b32 s21, {fbits(128**-0.5*math.log2(math.e))}')
    e('s_mov_b32 s20, 400000')
    e(f's_mov_b32 s12, {PART}')
    e(f's_mov_b32 s15, {MEMR}')
    e.wait(vm=0, lgkm=0)

CFG = {}
def load_frag(e, loc, f, slot):
    L = loc[f]; b = X[slot]
    if CFG.get('no'+L[0]): return
    sf = CFG.get('sf', '')
    if L[0] == 'L':
        e(f'ds_read_b128 {R(b,4)}, v5 offset:{L[1]}'); e(f'ds_read_b128 {R(b+4,4)}, v5 offset:{L[1]+1024}')
    else:
        sr = 90 + L[1]//2; of = (L[1] & 1)*2048
        e(f'buffer_load_dwordx4 {R(b,4)}, v0, {WS}, s{sr} offen offset:{of} {sf}'); e(f'buffer_load_dwordx4 {R(b+4,4)}, v0, {WS}, s{sr} offen offset:{of+1024} {sf}')

def bop(loc, f, uses, pos):
    L = loc[f]
    if L[0] == 'R': return R(L[2], 8, L[1])
    for (p, ty, sl, ia) in uses:
        if p == pos: return R(X[sl], 8)
    raise KeyError

def check(e, regs, t0, t1):
    r = list(regs)
    e(f'v_max3_u32 v{t0}, v{r[0]}, v{r[1]}, v{r[2]}')
    r = r[3:]
    while len(r) >= 2:
        e(f'v_max3_u32 v{t0}, v{t0}, v{r[0]}, v{r[1]}'); r = r[2:]
    if r: e(f'v_max_u32 v{t0}, v{t0}, v{r[0]}')
    e(f'v_cmp_eq_u32 vcc, -1, v{t0}')

def spin_flag(e, need_sgpr, t):
    lp = e.newlabel('CF'); dn = e.newlabel('CFD')
    e.label(lp)
    e(f'buffer_load_dwordx2 {R(t,2)}, off, {WS}, s24 sc1')
    e(f'v_min_u32 v{t}, v{t}, v{t+1}')
    e(f'v_readfirstlane_b32 s25, v{t}')
    e(f's_cmp_ge_u32 s25, {need_sgpr}')
    e(f's_cbranch_scc1 {dn}')
    e('s_sleep 2')
    e('s_sub_u32 s20, s20, 1'); e('s_cmp_gt_i32 s20, 0'); e(f's_cbranch_scc1 {lp}')
    e.label(dn)

def kx_dma(e, w, soff, which=(0, 1)):
    for i in which:
        f = 2*w+i
        e(f's_add_u32 m0, s37, {2048 + f*1024}')
        e(f's_add_u32 s19, {soff}, {f*1024}')
        e(f'buffer_load_dwordx4 v0, {WS}, s19 offen {CFG.get("kvsc","sc1 nt")} lds')

def allred(e, op, x, t):
    e(f'v_mov_b32 v{t}, v{x}'); e(f'v_permlane32_swap_b32 v{x}, v{t}'); e(f'{op} v{x}, v{x}, v{t}')
    e(f'v_mov_b32 v{t}, v{x}'); e(f'v_permlane16_swap_b32 v{x}, v{t}'); e(f'{op} v{x}, v{x}, v{t}')

def zero(e, b, n, val=0):
    for k in range(0, n, 2): e(f'v_mov_b64 {R(b+k,2)}, {val}')

NST = 10
def steps(e, w, P, st='', stamp=False, cfg={}):
    order, qk, o, qu, ou, loc = P
    CFG.update(cfg)
    own = OWN[w]; nown = len(own)
    tag = f'w{w}' + ('x' if st else '')
    sm = 'v_smfmac_f32_16x16x64_bf16'; mf = 'v_mfma_f32_16x16x32_bf16'; m16 = 'v_mfma_f32_16x16x16_bf16'
    def T(i):
        if stamp: e.raw(f'    s_memtime s[{40+2*i}:{41+2*i}]')
    e(f's_lshl_b32 s24, s8, 7'); e(f's_add_u32 s26, s24, {F_CH}'); e(f's_add_u32 s24, s24, {F_KV}')
    e('s_mov_b32 s11, 0')
    e(f's_mul_i32 s17, s8, {BLK}'); e(f's_add_u32 s17, s17, {KX}')
    e(f's_add_u32 s27, s17, {KVM - KX + w*1024}')
    srd(e, 28, B_MEM0, 10240)
    e('s_mov_b32 s39, 0')
    for k in range(5): e(f's_add_u32 s{90+k}, s18, {4096*k}')
    e(f's_add_u32 s36, s8, {32*w}'); e('s_mul_i32 s22, s36, 205'); e('s_lshr_b32 s22, s22, 11'); e('s_mul_i32 s23, s22, 10'); e('s_sub_u32 s36, s36, s23')
    e('s_lshl_b32 s38, s36, 10'); e('s_lshr_b32 s23, s22, 1'); e('s_lshl_b32 s23, s23, 6'); e('s_add_u32 s38, s38, s23')
    e('s_and_b32 s23, s22, 1'); e('s_lshl_b32 s23, s23, 4'); e('s_add_u32 s38, s38, s23')
    e('s_cmp_ge_u32 s36, 8'); e('s_cselect_b32 s36, 1, 0')
    for i, r in enumerate((13, 14, 59)): e(f's_add_u32 s{r}, s12, {(i+1)*8*10240}')
    if cfg.get('scr1'): e(f's_and_b32 s18, s8, {cfg["scr1"]-1}'); e(f's_mul_i32 s18, s18, {4*NSCR*2048}'); e(f's_add_u32 s18, s18, {SCR + w*NSCR*2048}')
    lo, hi = (47, 207) if not cfg.get('forcefb') else (126, 128)
    e(f's_mov_b32 s32, {lo << 23}'); e(f's_mov_b32 s33, {(hi-lo) << 23}')
    if w == 3:
        e('v_lshlrev_b32 v4, 3, v0')
        e('v_mov_b64 v[12:13], 0'); e(f'v_mov_b32 v14, {L_MISC+256}'); e('ds_write_b64 v14, v[12:13]')
    if stamp:
        for i in range(NST): e(f's_mov_b32 s{70+i}, 0')
    e.wait(lgkm=0)
    e.label(f'CL_{tag}')
    e('s_mov_b32 s10, 0')
    if w == 3:
        e('s_add_u32 s22, s11, 1')
        spin_flag(e, 's22', 12)
    e.barrier()
    if stamp:
        e('s_mov_b32 s84, s86'); e('s_mov_b32 s85, s87'); e('s_memrealtime s[86:87]'); e.wait(lgkm=0)
    e('s_mov_b32 s37, 8192'); e('v_mov_b32 v6, v0')
    kx_dma(e, w, 's17')
    for i, c in enumerate(own):
        e(f'buffer_load_dwordx4 {R(ABUF[i],4)}, v7, s[28:31], 0 offen offset:{c*128}')
    for (p, ty, sl, ia) in qu:
        if ia is None: load_frag(e, loc, qk[p], sl)
    zero(e, Q0, 24)
    e.wait(vm=0, lgkm=0)
    e.label(f'CS_{tag}')
    vq0 = [set(('v', X[k]+4*hf+j) for j in range(4)) for k in range(4) if cfg.get('pp', 'ccbd')[k] == 'd' for hf in range(2)]
    e.vq = list(vq0)
    T(0)
    for i, c in enumerate(own):
        e(f'ds_write_b128 v{6 if c >= 2 else 0}, {R(ABUF[i],4)} offset:{L_MEM + c*1024}')
    barpos = cfg.get('bar3', 6) if nown == 3 else cfg.get('bar2', 4)
    acc = {('q',0):Q0, ('q',1):Q0+4, ('k',0):Q1, ('k',1):Q1+4, ('v',0):VA, ('v',1):VA+4}
    lastpos = {}
    for i, f in enumerate(qk[:54]): lastpos[order.index(f[2])] = i
    nextA = nown
    def M(i):
        f = qk[i]; j = order.index(f[2])
        e(f'{sm} {R(acc[f[:2]],4)}, {R(ABUF[j%3],4)}, {bop(loc,f,qu,i)}, v1')
        for (p, ty, sl, ia) in qu:
            if ia == i: load_frag(aux.append, loc, qk[p], sl)
        n = len(aux) if (i >= 50 or not cfg.get('sch', 0)) else (1 if len(aux) <= cfg.get('bk', 3) else 2)
        for _ in range(min(n, len(aux))):
            x = aux.pop(0)
            for y in ([x] if isinstance(x, str) else x): e(y)
    aux = []
    qops = []
    for k in (0, 1, 4, 5): qops += [f'v_add_f32 v{Q0+k}, v{Q0+k}, v{Q0+k+2}']
    for k in (0, 1, 4, 5): qops += [f'v_mul_f32 v{Q0+k}, s21, v{Q0+k}']
    qops += [f'v_cvt_pk_bf16_f32 v{Q0+2+r}, v{Q0+r}, v{Q0+4+r}' for r in range(2)]
    qops += [f'ds_write2_b32 v8, v{Q0+2}, v{Q0+3} offset0:0 offset1:{QS//4}']
    pd = cfg.get('pd', 1); pf = cfg.get('pfsc', 'sc1')
    fprep = [f's_add_u32 s34, s17, {32*BLK}', ['s_cmp_eq_u32 s10, 63', 's_cselect_b32 s34, s17, s34'], 's_xor_b32 s37, s37, 8192']
    if cfg.get('samekv'): fprep[0] = 's_mov_b32 s34, s17'
    vpos = max(p for (p, ty, sl, ia) in qu if sl == 2); fpos = cfg.get('fpos', 40); late = w == 3 and not cfg.get('ev', 0) and not cfg.get('nofar')
    if w == 3 and not cfg.get('nofar'):
        fprep += ['s_add_u32 s22, s11, 2', ['s_cmp_lt_u32 s25, s22', 's_cselect_b32 s35, s17, s34'], f's_mov_b32 m0, {L_MISC}',
                  f'buffer_load_dword v4, {WS}, s35 offen {pf} lds', f's_add_u32 s35, s35, {VX-KX}', f'buffer_load_dword v4, {WS}, s35 offen {pf} lds']
        if not cfg.get('kpf', 0): del fprep[-3]
        if late: fprep = fprep[:3] + [f's_add_u32 s35, s34, {VX-KX}', fprep[-3], fprep[-1]]
    def qe(n):
        for _ in range(n):
            if qops: e(qops.pop(0))
    for i in range(54):
        if i == barpos:
            e.wait(lgkm=len(e.lq) - nown if len(e.lq) >= nown and e.lq[0] == set() else 0)
            e('s_barrier')
        if i >= barpos:
            while nextA < 10 and (nextA < 3 or lastpos[nextA-3] < i):
                x = f'ds_read_b128 {R(ABUF[nextA%3],4)}, v{6 if order[nextA] >= 2 else 0} offset:{L_MEM + order[nextA]*1024}'; nextA += 1
                e(x) if i == barpos else aux.insert(0, x)
        M(i)
        if i >= 51: qe(1)
        if i >= fpos-6 and len(fprep) > (2 if late else 0):
            if not aux: aux.append(fprep.pop(0))
        if i == 50:
            assert nextA == 10
            e('v_xor_b32 v6, 8192, v6')
        if i == vpos and w == 3 and cfg.get('fse'):
            e.nop(2); e(f'v_mov_b32 v{X[2]}, s11'); e(f'buffer_store_dword v{X[2]}, off, {WS}, s26 sc1')
        if i == vpos:
            e(f's_add_u32 s19, s17, {VX-KX + w*2048}')
            e(f'buffer_load_dwordx4 {R(X[2],4)}, v0, {WS}, s19 offen {CFG.get("kvsc","sc1 nt")}')
            e(f'buffer_load_dwordx4 {R(X[2]+4,4)}, v0, {WS}, s19 offen offset:1024 {CFG.get("kvsc","sc1 nt")}')
    T(1)
    def kxrd(tile, ks, b): e(f'ds_read_b128 {R(b,4)}, v6 offset:{2048 + (tile*4+ks)*1024}')
    M(54); qe(2)
    kxrd(0,0,X[3]); kxrd(1,0,X[3]+4)
    M(55); qe(9)
    kxrd(0,1,X[1]); kxrd(1,1,X[1]+4)
    for k in (0, 1, 4, 5): e(f'v_add_f32 v{Q1+k}, v{Q1+k}, v{Q1+k+2}')
    for r in range(2): e(f'v_cvt_pk_bf16_f32 v{12+r}, v{Q1+r}, v{Q1+4+r}')
    e(f'ds_write2_b32 v8, v12, v13 offset0:{8*QS//4-512} offset1:{9*QS//4-512}') if False else None
    e(f'ds_write_b32 v8, v12 offset:{8*QS}'); e(f'ds_write_b32 v8, v13 offset:{9*QS}')
    rs = 1
    M(56); M(57)
    assert len(fprep) == (2 if late else 0)
    if w == 3:
        sk = e.newlabel('CN')
        e('s_add_u32 s22, s11, 2'); e('s_cmp_ge_u32 s25, s22'); e(f's_cbranch_scc1 {sk}')
        e('s_cmp_eq_u32 s10, 63'); e(f's_cbranch_scc1 {sk}')
        sv = e.save(); spin_flag(e, 's22', 14); e.restore(sv)
        e.label(sk)
    e.barrier()
    T(2)
    def qrd(ks, b): e(f'ds_read_b128 {R(b,4)}, v9 offset:{ks*64}'); e(f'ds_read_b128 {R(b+4,4)}, v10 offset:{ks*64}')
    qrd(0, Q0); qrd(1, Q1)
    M(58); M(59)
    for x in fprep: e(x)
    kxrd(0,2,X[0]); kxrd(1,2,X[0]+4)
    for k in (0, 1, 4, 5): e(f'v_add_f32 v{VA+k}, v{VA+k}, v{VA+k+2}')
    e(f'v_cvt_pk_bf16_f32 v14, v{VA}, v{VA+1}'); e(f'v_cvt_pk_bf16_f32 v15, v{VA+4}, v{VA+5}')
    if not cfg.get('nokvm'): e(f'buffer_store_dwordx4 v[12:15], v0, {WS}, s27 offen sc1 {cfg.get("kvmf","nt")}')
    Sm, S0, S1 = VA, 40, 44
    def score(ks, qb, kb, fill=[]):
        z = ks == 0; fill = list(fill)
        for d, a in ((S1, kb+4), (Sm, qb+4), (S0, kb)):
            e(f'{mf} {R(d,4)}, {R(a,4)}, {R(qb,4)}, {0 if z else R(d,4)}')
            for x in fill[:2]: e(x)
            fill = fill[2:]
    ones = VA+4; Pb = Q0
    score(0, Q0, X[3]); qrd(2, Q0); kxrd(0,3,X[3]); kxrd(1,3,X[3]+4)
    if not cfg.get('k4'): kx_dma(e, w, 's34', (0,))
    score(1, Q1, X[1], [f'v_mov_b32 v{ones+k}, 0x3f803f80' for k in range(4)])
    qrd(3, Q1)
    load_frag(e, loc, o[1], 1)
    if not cfg.get('k4'): kx_dma(e, w, 's34', (1,))
    score(2, Q0, X[0])
    load_frag(e, loc, o[0], 0)
    if w == 3 and not cfg.get('nofar'):
        if not cfg.get('fse'): e(f'v_mov_b32 v12, s11'); e(f'buffer_store_dword v12, off, {WS}, s26 sc1')
        if not cfg.get('nofl'):
            e(f's_mov_b32 m0, {L_MISC+256}'); e('v_lshrrev_b32 v13, 2, v0')
            e(f'buffer_load_dword v13, {WS}, s24 offen sc1 lds')
    score(3, Q1, X[3], [f'v_mov_b32 v{Pb+5}, 0', f'v_mov_b32 v{Pb+6}, 0'])
    e('s_mov_b32 s23, 0')
    T(3)
    e.label(f'SX_{tag}')
    E = X[3]; Ls = X[3]
    for k in (4, 5, 6, 7): e(f'v_exp_f32 v{E+k}, v{S0+k}')
    e(f'v_exp_f32 v{Q1}, v{Sm}'); e(f'v_exp_f32 v{Q1+1}, v{Sm+1}')
    for k in (0, 1, 2, 3): e(f'v_exp_f32 v{E+k}, v{S0+k}')
    for k in (2, 3, 0, 1): e(f'v_cvt_pk_bf16_f32 v{Pb+k}, v{E+2*k}, v{E+2*k+1}')
    e(f'v_cvt_pk_bf16_f32 v{Pb+4}, v{Q1}, v{Q1+1}'); e(f'v_cvt_pk_bf16_f32 v{Pb+7}, v{Q1}, v{Q1+1}')
    e(f'{mf} {R(Ls,4)}, {R(ones,4)}, {R(Pb,4)}, 0')
    e(f'{mf} {R(Q1,4)}, {R(X[2],4)}, {R(Pb,4)}, 0')
    e(f'{mf} {R(Q1+4,4)}, {R(X[2]+4,4)}, {R(Pb,4)}, 0')
    e(f'{m16} {R(Ls,4)}, {R(ones,2)}, {R(Pb+4,2)}, {R(Ls,4)}')
    e(f'{m16} {R(Q1,4)}, v[14:15], {R(Pb+4,2)}, {R(Q1,4)}')
    zero(e, X[3]+4, 4)
    e(f'{m16} {R(Q1+4,4)}, v[14:15], {R(Pb+6,2)}, {R(Q1+4,4)}')
    e(f'v_subrev_u32 v{Ls+1}, s32, v{Ls}'); e(f'v_rcp_f32 v{Ls+2}, v{Ls}')
    e(f'v_cmp_le_u32 vcc, s33, v{Ls+1}')
    e(f'v_mov_b32 v{Ls+3}, v{Ls+2}')
    e(f's_cbranch_vccnz FB_{tag}')
    e.label(f'SO_{tag}')
    for k in range(4): e(f'v_pk_mul_f32 {R(Q1+2*k,2)}, {R(Q1+2*k,2)}, {R(Ls+2,2)}')
    for k in range(4): e(f'v_cvt_pk_bf16_f32 v{Q1+k}, v{Q1+k}, v{Q1+4+k}')
    e(f'ds_write_b128 v11, {R(Q1,4)}')
    if cfg.get('k4') == 2: kx_dma(e, w, 's34')
    zero(e, X[3], 4); zero(e, Q0, 8); zero(e, X[2], 8)
    e.barrier()
    T(4)
    e(f'ds_read_b128 v[40:43], v0 offset:{L_O}'); e(f'ds_read_b128 v[44:47], v0 offset:{L_O+1024}')
    e('s_cmp_eq_u32 s10, 63'); e(f's_cbranch_scc1 CE_{tag}')
    if cfg.get('k4') == 1: kx_dma(e, w, 's34')
    zero(e, Q1, 8)
    if not cfg.get('samekv'): e(f's_add_u32 s17, s17, {32*BLK}')
    pre = {sl: p for (p, ty, sl, ia) in qu if ia is None}
    if cfg.get('oo', 1):
        tacc = {0: X[3], 1: X[3]+4, 2: Q0, 3: Q0+4, 4: X[2], 5: X[2]+4, 6: Q1, 7: Q1+4, 8: VA, 9: VA+4}
        pk = (12, X[0])
        ad = lambda k, r: f'v_add_f32 v{tacc[k]+r}, v{tacc[k]+r}, v{tacc[k]+r+2}'
        cv = lambda k, r: f'v_cvt_pk_bf16_f32 v{pk[r]+k}, v{tacc[2*k]+r}, v{tacc[2*k+1]+r}'
        ex = {10: [cv(0,0)], 11: [cv(0,1)], 12: [cv(1,0)], 13: [cv(1,1)], 14: [f'v_bfi_b32 v{pk[0]}, 1, s39, v{pk[0]}'], 15: [f'v_bfi_b32 v{pk[1]}, 1, s39, v{pk[1]}'],
              16: [cv(2,0)], 17: [cv(2,1)], 18: [cv(3,0), f'buffer_store_dwordx4 {R(pk[0],4)}, v2, {WS}, s12 offen {st}'],
              19: [cv(3,1), f'buffer_store_dwordx4 {R(pk[1],4)}, v2, {WS}, s12 offen offset:1280 {st}']}
        for i, f in enumerate(o):
            e(f'{sm} {R(tacc[f[1]],4)}, {R(40+4*f[2],4)}, {bop(loc,f,ou,i)}, v1')
            if i < 4: zero(e, VA+2*i, 2)
            else: e(ad((i-4)//2, i & 1))
            for (p, ty, sl, ia) in ou:
                if ia == i: load_frag(e, loc, o[p], sl)
            for x in ex.get(i, []): e(x)
        e(ad(8, 0)); e(ad(8, 1))
        for r in range(2):
            e(ad(9, r)); e(f'v_cvt_pk_bf16_f32 v{X[1]+r}, v{tacc[8]+r}, v{tacc[9]+r}'); e(f'v_bfi_b32 v{X[1]+r}, 1, s39, v{X[1]+r}')
            e(f'buffer_store_dword v{X[1]+r}, v3, {WS}, s12 offen offset:{1280*r} {st}')
    else:
        tacc = {8: X[3], 9: X[3]+4, 0: Q0, 1: Q0+4, 2: X[2], 3: X[2]+4, 4: Q1, 5: Q1+4, 6: VA, 7: VA+4}
        tl = (8,9,0,1,2,3,4,5,6,7)
        pre = {sl: p for (p, ty, sl, ia) in qu if ia is None}
        def add(k, r): e(f'v_add_f32 v{tacc[tl[k]]+r}, v{tacc[tl[k]]+r}, v{tacc[tl[k]]+r+2}')
        def cv(k, r): e(f'v_cvt_pk_bf16_f32 v{40+4*r+k}, v{tacc[2*k]+r}, v{tacc[2*k+1]+r}')
        for i, f in enumerate(o):
            e(f'{sm} {R(tacc[f[1]],4)}, {R(40+4*f[2],4)}, {bop(loc,f,ou,i)}, v1')
            if i < 4: zero(e, VA+2*i, 2)
            else: add((i-4)//2, i & 1)
            for (p, ty, sl, ia) in ou:
                if ia == i: load_frag(e, loc, o[p], sl)
            if i in (7, 8) and cfg.get('pp', 'ccbd')[i-7] == 'o': load_frag(e, loc, qk[pre[i-7]], i-7)
            if i in (9, 10):
                r = i-9
                e(f'v_cvt_pk_bf16_f32 v{12+r}, v{tacc[8]+r}, v{tacc[9]+r}')
                e(f'v_bfi_b32 v{12+r}, 1, s39, v{12+r}')
                e(f'buffer_store_dword v{12+r}, v3, {WS}, s12 offen offset:{1280*r} {st}')
        add(8, 0); add(8, 1)
        for k in range(3): cv(k, 0)
        for k in range(3): cv(k, 1)
        e('v_bfi_b32 v40, 1, s39, v40'); e('v_bfi_b32 v44, 1, s39, v44')
        add(9, 0); cv(3, 0)
        e(f'buffer_store_dwordx4 v[40:43], v2, {WS}, s12 offen {st}')
        add(9, 1); cv(3, 1)
        e(f'buffer_store_dwordx4 v[44:47], v2, {WS}, s12 offen offset:1280 {st}')
    T(5)
    pp = cfg.get('pp', 'ccbd')
    def pl(ch):
        for k in range(4):
            if pp[k] == ch: load_frag(e, loc, qk[pre[k]], k)
    pl('a')
    e('s_xor_b32 s16, s15, 0x4000')
    e('s_add_u32 s10, s10, 1'); e('s_add_u32 s11, s11, 1'); e(f's_add_u32 s27, s27, {32*BLK}')
    def spin(lp): e('s_sub_u32 s20, s20, 1'); e('s_cmp_gt_i32 s20, 0'); e(f's_cbranch_scc1 {lp}')
    def idle():
        if cfg.get('ai', 0): e.wait(vm=0)
        if cfg.get('d1'): e(f's_sleep {cfg["d1"]}')
        pl('c')
    if w < 3:
        sk = f'P1S_{tag}'
        if w == 2:
            e('s_cmp_lt_u32 s8, 16'); e(f's_cbranch_scc1 P1G_{tag}')
            s0 = e.save(); idle(); sv = e.save(); e(f's_branch {sk}'); e.label(f'P1G_{tag}'); e.restore(s0)
        e(f'ds_read_b128 v[12:15], v0 offset:{L_SEL}')
        zero(e, VA+6, 2, -1)
        e('v_and_b32 v40, 0x60, v0'); e('v_lshl_add_u32 v40, v40, 3, s38'); e('v_and_b32 v41, 0x10, v0'); e('v_lshl_add_u32 v40, v41, 1, v40')
        e('v_lshrrev_b32 v41, 5, v0'); e('v_and_b32 v41, 8, v41'); e('v_add_u32 v40, v40, v41')
        e('v_and_b32 v41, 0x280, v0'); e(f'v_mov_b32 v42, {OOB}'); e('v_cmp_ne_u32 vcc, 0, v41'); e('v_cndmask_b32 v40, v40, v42, vcc')
        if cfg.get('a1', 1): e.wait(vm=0)
        if cfg.get('d1'): e(f's_sleep {cfg["d1"]}')
        e.wait(lgkm=0)
        lp = f'P1_{tag}'; dn = f'P1D_{tag}'
        def poll1(first):
            for i, r in enumerate((12, 13, 14, 59)): e(f'buffer_load_dwordx4 {R(Q0+4*i,4)}, v4, {WS}, s{r} offen sc1')
            if first: pl('c')
            for i in range(4):
                e(f'{mf} {R(VA,4)}, v[12:15], {R(Q0+4*i,4)}, {R(VA,4) if i else 0}')
                b = Q0+4*i
                A, Z = VA+4, VA+5
                e(f'v_xor_b32 v{A}, s39, v{b}' if i == 0 else f'v_bitop3_b32 v{A}, v{A}, v{b}, s39 bitop3:0xf6')
                for k in (1, 2, 3):
                    e(f'v_xor_b32 v{Z}, v{b+k}, v{b}' if i+k == 1 else f'v_bitop3_b32 v{Z}, v{Z}, v{b+k}, v{b} bitop3:0xf6')
            e(f'v_and_or_b32 v{A}, v{Z}, s36, v{A}'); e(f'v_and_b32 v{A}, 1, v{A}')
            e(f'v_cmp_ne_u32 vcc, 0, v{A}')
            e(f's_cbranch_vccz {dn}')
        if 'c' in pp: poll1(True); s1 = e.save()
        e.label(lp)
        poll1(False)
        spin(lp)
        e.n -= 3
        e.label(dn)
        if 'c' in pp: e.restore(s1)
        T(6)
        dp = 'row_mask:0xf bank_mask:0xf bound_ctrl:1'
        for k in range(4): e(f'v_add_f32_dpp v{Q0+k}, v{VA+k}, v{VA+k} row_shl:8 {dp}')
        e(f'v_cvt_pk_bf16_f32 v{VA+4}, v{Q0}, v{Q0+1}'); e(f'v_cvt_pk_bf16_f32 v{VA+5}, v{Q0+2}, v{Q0+3}')
        e(f'buffer_store_dwordx2 {R(VA+4,2)}, v40, {WS}, s15 offen {st}')
        e(f'buffer_store_dwordx2 {R(VA+6,2)}, v40, {WS}, s16 offen {st}')
        if cfg.get('a2'): e.wait(vm=1)
        if w == 2:
            e.label(sk); e.restore(sv)
    else:
        idle()
        T(6)
        e.wait(vm=2*(pp.count('a')+pp.count('c')))
        e(f'v_mov_b32 v14, {L_MISC+256}'); e('ds_read_b64 v[14:15], v14')
        e('v_min_u32 v14, v14, v15'); e('v_readfirstlane_b32 s22, v14'); e('s_max_u32 s25, s25, s22')
    e('s_barrier')
    T(7)
    pl('b')
    zero(e, Q0+2, 22)
    e('s_xor_b32 s39, s39, 1'); e(f's_add_u32 s22, s15, {own[0]*1024}')
    if cfg.get('d2'): e(f's_sleep {cfg["d2"]}')
    e.wait(lgkm=0)
    lp = f'P2_{tag}'; dn = f'P2D_{tag}'
    def poll2(first):
        for i, c in enumerate(own):
            e(f'buffer_load_dwordx4 {R(ABUF[i],4)}, v0, {WS}, s22 offen offset:{i*1024} sc1')
        if first: pl('d')
        check(e, [ABUF[i]+k for i in range(nown) for k in range(4)], Q0, Q0+1)
        zero(e, Q0, 2)
        e(f's_cbranch_vccz {dn}')
    if 'd' in pp: poll2(True); s1 = e.save()
    e.label(lp)
    poll2(False)
    spin(lp)
    e.label(dn)
    if 'd' in pp: e.restore(s1)
    e('s_mov_b32 s15, s16')
    if stamp:
        T(8)
        e.raw('    s_waitcnt lgkmcnt(0)')
        for i in range(8):
            e(f's_sub_u32 s22, s{42+2*i}, s{40+2*i}'); e(f's_add_u32 s{70+i}, s{70+i}, s22')
    assert e.vq == vq0 and not e.lq, (e.vq, vq0, e.lq)
    e.reset()
    e(f's_branch CS_{tag}')
    e.label(f'FB_{tag}')
    e('s_cmp_lg_u32 s23, 0'); e(f's_cbranch_scc1 SO_{tag}')
    e('s_mov_b32 s23, 1'); e.nop(12)
    sc = [S0+i for i in range(8)] + [Sm, Sm+1]
    mx, tt = Q1, Q1+1
    e(f'v_max3_f32 v{mx}, v{sc[0]}, v{sc[1]}, v{sc[2]}')
    for k in (3, 5, 7): e(f'v_max3_f32 v{mx}, v{mx}, v{sc[k]}, v{sc[k+1]}')
    e(f'v_max_f32 v{mx}, v{mx}, v{sc[9]}')
    allred(e, 'v_max_f32', mx, tt)
    for r in sc: e(f'v_sub_f32 v{r}, v{r}, v{mx}')
    e.wait(lgkm=0)
    e(f's_branch SX_{tag}')
    e.label(f'CE_{tag}')
    e.wait(vm=0, lgkm=0)
    e('s_barrier')
    e('s_add_u32 s11, s11, 1'); e(f's_add_u32 s27, s27, {32*BLK}'); e(f's_add_u32 s17, s17, {32*BLK}')
    if w == 3:
        e(f'v_mov_b32 v12, s11')
        e(f'buffer_store_dword v12, off, {WS}, s26 sc1')
    e(f's_mov_b32 s15, {MEMR + 0x8000}')
    if stamp:
        e('s_memrealtime s[88:89]'); e.wait(lgkm=0); e('s_mov_b32 s87, s88')
    e.wait(vm=0)
    e('s_cmp_lt_u32 s11, 128'); e(f's_cbranch_scc1 CL_{tag}')
```

```python
from em import Em, R
from layout import *
from chain import srd, fbits, allred, zero, WS
import math
mf = 'v_mfma_f32_16x16x32_bf16'; m16 = 'v_mfma_f32_16x16x16_bf16'

def lanes(e):
    e('v_and_b32 v0, 63, v0'); e('v_and_b32 v1, 15, v0'); e('v_lshrrev_b32 v2, 4, v0'); e('v_lshlrev_b32 v0, 4, v0')
    e('s_mov_b32 s22, 0x05040100'); e('s_mov_b32 s23, 0x07060302'); e('s_mov_b32 s20, 300000')

def flagaddr(e, v, nwords):
    e(f'v_lshrrev_b32 v{v}, 2, v0'); e(f'v_min_u32 v{v}, {4*(nwords-1)}, v{v}')

def wait_flag(e, v, soff, need, t):
    lp = e.newlabel('WF'); dn = e.newlabel('WD')
    e.label(lp)
    e(f'buffer_load_dword v{t}, v{v}, {WS}, {soff} offen sc1')
    e(f'v_cmp_gt_u32 vcc, {need}, v{t}')
    e(f's_cbranch_vccz {dn}')
    e('s_sleep 3')
    e('s_sub_u32 s20, s20, 1'); e('s_cmp_gt_i32 s20, 0'); e(f's_cbranch_scc1 {lp}')
    e.label(dn)

TRACE = [0]
def trace(e, val, t):
    if not TRACE[0]: return
    e('s_memrealtime s[92:93]'); e(f's_lshl_b32 s91, {val}, 2'); e('s_add_u32 s91, s91, s90')
    e(f'v_mov_b32 v{t}, s92'); e(f'buffer_store_dword v{t}, off, {WS}, s91')

def set_flag(e, soff, val, t):
    sk = e.newlabel('SF')
    e('s_cmp_lg_u32 s9, 0'); e(f's_cbranch_scc1 {sk}')
    sv = e.save()
    e(f'v_mov_b32 v{t}, {val}'); e(f'buffer_store_dword v{t}, off, {WS}, {soff} sc1')
    trace(e, val, t)
    e.label(sk); e.restore(sv)
    e.vq.append(set())

def load_w(e, nks, rowstride, ksstride, vlo, vhi, vdst=None):
    D = 6; tb = 64 if vdst is None else 16
    def issue(ks):
        for j in range(8):
            e(f's_add_u32 s19, s17, {ks*ksstride + j*rowstride}')
            e(f'buffer_load_dword v{tb+(ks%D)*8+j}, v{vlo if j<4 else vhi}, s[24:27], s19 offen')
    for ks in range(D): issue(ks)
    for ks in range(nks):
        b = tb+(ks % D)*8
        for t in range(2):
            for jj in range(4): e(f'v_perm_b32 v{(56 if vdst is None else vdst+8*ks)+4*t+jj}, v{b+2*jj+1}, v{b+2*jj}, {"s23" if t else "s22"}')
        if vdst is None:
            for k in range(8): e(f'v_accvgpr_write_b32 a{8*ks+k}, v{56+k}')
        if ks+D < nks: issue(ks+D)

def xn_setup(e):
    e('v_lshrrev_b32 v7, 7, v0'); e('v_lshrrev_b32 v8, 4, v0'); e('v_and_b32 v8, 7, v8'); e('v_xor_b32 v8, v8, v7')
    e('s_lshl_b32 s19, s9, 3'); e('v_add_u32 v7, s19, v7'); e('v_mul_u32_u24 v4, 1280, v7'); e('v_lshl_add_u32 v4, v8, 4, v4')
    e('v_and_b32 v7, 7, v1'); e('v_lshrrev_b32 v8, 3, v1'); e('v_lshlrev_b32 v8, 10, v8'); e('v_lshl_add_u32 v8, v7, 7, v8')
    e('v_xor_b32 v7, v2, v7'); e('v_lshl_add_u32 v5, v7, 4, v8'); e('v_xor_b32 v6, 64, v5')

DF = ['sc1']
OPT = {}
def set_rot(e, lin, idx):
    if lin: e(f's_mul_i32 s35, {idx}, 3072'); e('s_and_b32 s35, s35, 0x3fff')
    else:
        e(f's_and_b32 s35, {idx}, 31'); e('s_mul_i32 s34, s35, 26'); e('s_lshr_b32 s34, s34, 8'); e('s_mul_i32 s34, s34, 10')
        e('s_sub_u32 s35, s35, s34'); e('s_lshl_b32 s35, s35, 7')

def xn_dma1(e):
    e('s_lshl_b32 s34, s35, 5'); e(f's_add_u32 m0, s11, s34'); e(f's_add_u32 s37, s36, s35')
    e(f'buffer_load_dwordx4 v4, {WS}, s37 offen {DF[0]} lds')
    e('s_add_u32 s35, s35, 128'); e('s_cmp_eq_u32 s35, 1280'); e('s_cselect_b32 s35, 0, s35')

def lin_dma1(e):
    e(f's_add_u32 m0, s11, s35'); e(f's_add_u32 s37, s36, s35')
    e(f'buffer_load_dwordx4 v0, {WS}, s37 offen {DF[0]} lds')
    e('s_add_u32 s35, s35, 1024'); e('s_and_b32 s35, s35, 0x3fff')

SITES = []
def site(e, k):
    if k >= len(SITES): return
    sk = e.newlabel('ST')
    e('s_cmp_eq_u32 s15, 0'); e(f's_cbranch_scc1 {sk}')
    sv = e.save(); SITES[k](); e.label(sk); e.restore(sv)

ACC = 16
MID = [None]
def MPOS(lin): return OPT.get('ml', 21) if lin else OPT.get('mx', 14)
SPOS = []
def gemm(e, nks, lin, vtype, q=False):
    NB = 6
    def rd(i):
        ks, a = divmod(i, 2)
        if lin: e(f'ds_read_b128 {R(32+4*(i%NB),4)}, v5 offset:{i*1024}')
        elif q: e(f'ds_read_b128 {R(32+4*(i%NB),4)}, v{12+2*a+(ks&1)} offset:{(ks>>1)*4096}')
        else: e(f'ds_read_b128 {R(32+4*(i%NB),4)}, v{5+(ks&1)} offset:{(ks>>1)*4096+a*2048}')
    for i in range(NB): rd(i)
    for i in range(2*nks):
        ks, a = divmod(i, 2)
        x = R(32+4*(i % NB), 4)
        for t in range(2):
            w = R(8*ks+4*t, 4, 'a'); d = R(ACC+8*a+4*t, 4)
            A, Bo = (x, w) if vtype else (w, x)
            e(f'{mf} {d}, {A}, {Bo}, {d if ks else 0}')
        if q and a == 0:
            for t in range(2):
                d = R(56+4*t, 4); e(f'{mf} {d}, {R(96+8*ks+4*t,4)}, {x}, {d if ks else 0}')
        if i+NB < 2*nks: rd(i+NB)
        step = 3 if lin else 2
        if SPOS:
            if i in SPOS: site(e, SPOS.index(i))
        elif i % step == 0: site(e, i // step)
        if i == MPOS(lin) and MID[0]: MID[0]()
    if q:
        sk = e.newlabel('SW')
        e.nop(16)
        e('s_bitcmp0_b32 s9, 0'); e(f's_cbranch_scc1 {sk}')
        for k in range(8): e(f'v_swap_b32 v{ACC+k}, v{ACC+8+k}')
        e.label(sk)

def epi_k(e, scale=None):
    for a in range(2):
        if scale:
            for k in range(8): e(f'v_mul_f32 v{ACC+8*a+k}, {scale}, v{ACC+8*a+k}')
        for i in range(4): e(f'v_cvt_pk_bf16_f32 v{32+4*a+i}, v{ACC+8*a+i}, v{ACC+8*a+4+i}')
def epi_v(e):
    for t in range(2):
        for a in range(2):
            for i in range(2): e(f'v_cvt_pk_bf16_f32 v{32+4*t+2*a+i}, v{ACC+8*a+4*t+2*i}, v{ACC+8*a+4*t+2*i+1}')

def gemm_loop(e, name, lin, g0, gstep, body, srcbase, srcstride, nst, nwords, flag_off_fn=None):
    wsh = 14 if lin else 10
    nd = (16 if lin else 10) + 1
    LF = 131072
    flagaddr(e, 3, nwords)
    if lin: e('v_mov_b32 v5, v0')
    else: xn_setup(e)
    e(f's_mov_b32 s10, {g0}')
    set_rot(e, lin, 's31' if lin else 's8')
    e(f's_lshl_b32 s11, s9, {wsh}'); e('s_mov_b32 s15, 0'); e('s_mov_b32 s33, 0'); e(f's_mov_b32 s32, {LF}')
    e('v_lshrrev_b32 v11, 2, v0'); e(f'v_add_u32 v11, {LF}, v11')
    if lin: e('s_add_u32 s14, s14, s11')
    def foff(gs):
        if flag_off_fn: flag_off_fn(gs)
        else: e('s_mov_b32 s21, s12')
    def base(gs):
        e(f's_mul_i32 s36, {gs}, {srcstride}'); e(f's_add_u32 s36, s36, {srcbase}'); e('s_add_u32 s36, s36, s14')
        e(f's_add_u32 s16, {gs}, {gstep}'); foff('s16')
    def fin():
        e('s_mov_b32 m0, s32'); e(f'buffer_load_dword v3, {WS}, s21 offen sc1 lds')
        e('s_xor_b32 s11, s11, 0x10000'); e('s_xor_b32 s32, s32, 256')
    pieces = [(lambda: lin_dma1(e)) if lin else (lambda: xn_dma1(e))]*(nd-1) + [fin]
    def issue(gs):
        base(gs)
        for p in pieces: p()
    e.wait(vm=0, lgkm=0)
    e.label(f'{name}_L')
    e('s_cmp_lg_u32 s15, 0'); e(f's_cbranch_scc1 {name}_H')
    e('s_add_u32 s16, s10, 1'); foff('s10')
    wait_flag(e, 3, 's21', 's16', 9)
    issue('s10')
    e.wait(vm=0)
    e.label(f'{name}_H')
    e.wait(vm=nst); e.reset()
    e('s_barrier')
    e('ds_read_b32 v9, v11')
    e(f's_add_u32 s28, s10, {gstep}'); e('s_add_u32 s16, s28, 1')
    e('v_cmp_gt_u32 vcc, s16, v9')
    e('s_cmp_eq_u64 vcc, 0'); e('s_cselect_b32 s15, 1, 0')
    base('s28')
    SITES[:] = pieces
    def mid():
        sk = e.newlabel('MD'); s2 = e.newlabel('ME')
        e('s_cmp_eq_u32 s33, 0'); e(f's_cbranch_scc1 {sk}')
        sv = e.save()
        e.wait(vm=min(nd, MPOS(lin)//(3 if lin else 2)+1))
        e('s_cmp_lg_u32 s15, 0'); e(f's_cbranch_scc1 {s2}')
        e.wait(vm=0)
        e.label(s2)
        e('s_barrier')
        set_flag(e, 's13', 's33', 9)
        e.label(sk); e.restore(sv)
    MID[0] = mid
    body()
    MID[0] = None; SITES[:] = []
    e('s_add_u32 s33, s10, 1')
    e('s_and_b32 s16, s10, 63'); e('s_cselect_b32 s16, s15, 0')
    e('s_cmp_lg_u32 s16, 0'); e(f's_cbranch_scc1 {name}_N')
    e.wait(vm=0)
    e('s_barrier')
    set_flag(e, 's13', 's33', 9)
    e('s_mov_b32 s33, 0')
    e.label(f'{name}_N')
    e('v_xor_b32 v5, 0x10000, v5'); e('v_xor_b32 v11, 256, v11')
    if not lin: e('v_xor_b32 v6, 0x10000, v6')
    e('s_mov_b32 s10, s28'); e('s_cmp_lt_u32 s10, 128'); e(f's_cbranch_scc1 {name}_L')
    e.wait(vm=0)
    e('s_endpgm')

def par_off(e, base):
    def fo(gs):
        e(f's_and_b32 s21, {gs}, 1'); e('s_lshl_b32 s21, s21, 7'); e(f's_add_u32 s21, s21, {base}')
    return fo

def role_kv(e):
    lanes(e)
    e('s_and_b32 s30, s8, 1'); e('s_lshr_b32 s31, s8, 1')
    e('s_lshl_b32 s19, s30, 3'); e('s_add_u32 s34, s0, s19'); e('s_addc_u32 s35, s1, 0')
    e(f's_load_dwordx2 s[24:25], s[34:35], {B_WK}'); e(f's_mov_b32 s26, {640*8192}'); e('s_mov_b32 s27, 0x20000')
    e('v_lshlrev_b32 v4, 16, v2'); e('v_lshl_add_u32 v4, v1, 2, v4')
    e('s_lshl_b32 s17, s31, 8'); e('s_lshl_b32 s19, s9, 6'); e('s_add_u32 s17, s17, s19')
    load_w(e, 20, 8192, 32*8192, 4, 4)
    srd(e, 24, B_WQ, 640*8192)
    e('s_lshl_b32 s29, s30, 1'); e('s_lshr_b32 s19, s9, 1'); e('s_add_u32 s29, s29, s19')
    e('s_lshl_b32 s17, s31, 8'); e('s_lshl_b32 s19, s29, 6'); e('s_add_u32 s17, s17, s19')
    load_w(e, 20, 8192, 32*8192, 4, 4, 96)
    e('s_and_b32 s19, s9, 1'); e('s_lshl_b32 s38, s19, 11'); e('s_xor_b32 s39, s38, 2048')
    e('s_lshl_b32 s19, s19, 12'); e('s_lshl_b32 s29, s29, 10'); e('s_add_u32 s29, s29, s19'); e(f's_add_u32 s29, s29, {QB}')
    e(f's_mov_b32 s12, {F_XB}'); e('s_lshl_b32 s13, s31, 7'); e('s_lshl_b32 s19, s30, 2'); e('s_add_u32 s13, s13, s19')
    e('s_mov_b32 s14, 0')
    def body():
        e('v_add_u32 v12, s38, v5'); e('v_add_u32 v14, s39, v5'); e('v_add_u32 v13, s38, v6'); e('v_add_u32 v15, s39, v6')
        e('s_lshl_b32 s18, s10, 5'); e('s_add_u32 s18, s18, s31'); e('s_lshl_b32 s17, s18, 13'); e('s_add_u32 s17, s17, s29'); e(f's_mul_i32 s18, s18, {SEG}')
        e('s_cmp_lg_u32 s30, 0'); e('s_cbranch_scc1 KV_V')
        gemm(e, 20, False, False, True); epi_k(e)
        e('s_lshl_b32 s19, s9, 10'); e('s_add_u32 s18, s18, s19'); e(f's_add_u32 s18, s18, {KX}'); e('s_add_u32 s19, s18, 4096')
        e(f'buffer_store_dwordx4 v[32:35], v0, {WS}, s18 offen sc1'); e(f'buffer_store_dwordx4 v[36:39], v0, {WS}, s19 offen sc1')
        e('s_branch KV_E')
        e.label('KV_V'); e.reset()
        gemm(e, 20, False, True, True); epi_v(e)
        e('s_lshl_b32 s19, s9, 11'); e('s_add_u32 s18, s18, s19'); e(f's_add_u32 s18, s18, {VX}')
        e(f'buffer_store_dwordx4 v[32:35], v0, {WS}, s18 offen sc1'); e(f'buffer_store_dwordx4 v[36:39], v0, {WS}, s18 offen offset:1024 sc1')
        e.label('KV_E')
        for i in range(4): e(f'v_cvt_pk_bf16_f32 v{40+i}, v{56+i}, v{60+i}')
        e(f'buffer_store_dwordx4 v[40:43], v0, {WS}, s17 offen sc1')
    gemm_loop(e, 'KV', False, 0, 1, body, XNB, 40960, 3, 4, par_off(e, F_XB))

def aqkv_weights(e, akv):
    e(f'v_mov_b32 v9, {OOB}')
    if akv:
        e('s_and_b32 s19, s9, 1'); e('s_lshl_b32 s19, s19, 3'); e('s_add_u32 s34, s0, s19'); e('s_addc_u32 s35, s1, 0')
        e(f's_load_dwordx2 s[24:25], s[34:35], {A_WK}'); e(f's_mov_b32 s26, {640*40}'); e('s_mov_b32 s27, 0x20000')
        rs = 40; e('s_mov_b32 s17, 0')
    else:
        srd(e, 24, A_WQ, 640*1280); rs = 1280
        e('s_lshl_b32 s17, s8, 2'); e('s_add_u32 s17, s17, s9'); e('s_mul_i32 s17, s17, 40')
    e(f'v_mul_u32_u24 v4, {8*rs}, v2'); e('v_lshl_add_u32 v4, v1, 2, v4')
    e('v_cmp_le_u32 vcc, 10, v1'); e('v_cndmask_b32 v4, v4, v9, vcc')
    load_w(e, 20, rs, 32*rs, 4, 4)

def akv_body(e, tag, sc):
    e('s_lshl_b32 s18, s10, 12'); e(f's_add_u32 s18, s18, {KA}')
    e('s_cmp_lt_u32 s9, 2'); e(f's_cbranch_scc1 {tag}_W')
    for k in range(len(SITES)):
        site(e, k)
        if k == min(len(SITES)-1, MPOS(False)//2): MID[0]()
    e(f's_branch {tag}_E'); e.label(f'{tag}_W')
    e('s_cmp_eq_u32 s9, 1'); e(f's_cbranch_scc1 {tag}_V')
    gemm(e, 20, False, False); epi_k(e)
    e(f's_branch {tag}_S')
    e.label(f'{tag}_V'); e.reset()
    gemm(e, 20, False, True); epi_v(e)
    e('v_mov_b32 v40, 0x3f803f80'); e('v_cmp_eq_u32 vcc, 10, v1')
    for k in range(4): e(f'v_cndmask_b32 v{32+k}, v{32+k}, v40, vcc')
    e('s_add_u32 s18, s18, 2048')
    e.label(f'{tag}_S')
    e(f'buffer_store_dwordx4 v[32:35], v0, {WS}, s18 offen {sc}'); e(f'buffer_store_dwordx4 v[36:39], v0, {WS}, s18 offen offset:1024 {sc}')
    e.label(f'{tag}_E')

def role_aq(e):
    lanes(e); aqkv_weights(e, False)
    e(f's_mov_b32 s12, {F_XA}'); e('s_lshl_b32 s13, s8, 2'); e(f's_add_u32 s13, s13, {F_AQ}'); e('s_mov_b32 s14, 0')
    e(f's_mov_b32 s29, {fbits(20**-0.5*math.log2(math.e))}')
    e('s_lshl_b32 s31, s8, 2'); e('s_add_u32 s31, s31, s9')
    def body():
        e('s_lshl_b32 s18, s10, 5'); e('s_add_u32 s18, s18, s31'); e('s_lshl_b32 s18, s18, 11'); e(f's_add_u32 s18, s18, {QA}')
        gemm(e, 20, False, False); epi_k(e, 's29')
        e(f'buffer_store_dwordx4 v[32:35], v0, {WS}, s18 offen sc1'); e(f'buffer_store_dwordx4 v[36:39], v0, {WS}, s18 offen offset:1024 sc1')
    gemm_loop(e, 'AQ', False, 0, 1, body, XNA, 40960, 2, 8, par_off(e, F_XA))

def role_akv(e):
    lanes(e); aqkv_weights(e, True)
    e(f's_mov_b32 s12, {F_XA}'); e(f's_mov_b32 s13, {F_AKV}'); e('s_mov_b32 s14, 0')
    gemm_loop(e, 'AK', False, 64, 1, lambda: akv_body(e, 'AKB', 'sc1'), XNA, 40960, 0, 8, par_off(e, F_XA))

def role_out(e, isA):
    lanes(e)
    if isA:
        srd(e, 24, A_WO, 640*1280); e('s_mov_b32 s30, 0')
        e('s_cmp_ge_u32 s8, 5'); e('s_cselect_b32 s39, 1, 0'); e('s_mul_i32 s19, s39, 5'); e('s_sub_u32 s31, s8, s19')
        e('s_mul_i32 s19, s39, 27'); e('s_add_u32 s8, s8, s19')
    else:
        srd(e, 24, B_WO, 4096*1280)
        e('s_mul_i32 s30, s8, 52'); e('s_lshr_b32 s30, s30, 8'); e('s_mul_i32 s19, s30, 5'); e('s_sub_u32 s31, s8, s19')
    e('v_mul_u32_u24 v4, 10240, v2'); e('v_lshl_add_u32 v4, v1, 2, v4'); e('v_mov_b32 v5, v4')
    if isA:
        e(f'v_mov_b32 v9, {OOB}')
        e('v_cmp_le_u32 vcc, 3, v2'); e('v_cndmask_b32 v4, v4, v9, vcc')
        e('v_cmp_le_u32 vcc, 2, v2'); e('v_cndmask_b32 v5, v5, v9, vcc')
    e(f's_mul_i32 s17, s30, {1024*1280}'); e('s_lshl_b32 s19, s31, 8'); e('s_add_u32 s17, s17, s19'); e('s_lshl_b32 s19, s9, 6'); e('s_add_u32 s17, s17, s19')
    load_w(e, 32, 1280, (20 if isA else 32)*1280, 4, 5)
    e('v_mul_u32_u24 v10, 2560, v1'); e('v_lshl_add_u32 v10, v2, 4, v10')
    e('s_lshl_b32 s29, s31, 9'); e('s_lshl_b32 s19, s9, 7'); e('s_add_u32 s29, s29, s19')
    e('s_mul_i32 s19, s30, 81920'); e('s_add_u32 s29, s29, s19'); e(f's_add_u32 s29, s29, {PA if isA else PB}')
    e('s_lshl_b32 s13, s8, 2'); e(f's_add_u32 s13, s13, {F_AO if isA else F_BO}')
    e('s_lshl_b32 s14, s30, 16')
    e('s_lshl_b32 s12, s30, 5'); e(f's_add_u32 s12, s12, {F_BA}')
    def body():
        gemm(e, 32, True, False)
        e(f's_mul_i32 s18, s10, {81920 if isA else 4*81920}'); e('s_add_u32 s18, s18, s29'); e(f's_add_u32 s19, s18, {16*2560}')
        for a in range(2):
            for i in range(4):
                for t in range(2): e(f'v_mov_b32 v{32+8*a+2*i+t}, v{ACC+8*a+4*t+i}')
            for hh in range(2):
                if not OPT.get('nost') or (a+hh == 0): e(f'buffer_store_dwordx4 {R(32+8*a+4*hh,4)}, v10, {WS}, s{18+a} offen offset:{64*hh} sc1')
    gemm_loop(e, 'AO' if isA else 'BO', True, 's39' if isA else 0, 2 if isA else 1, body, OA if isA else OB, 65536 if isA else 262144, 1 if OPT.get('nost') else 4,
              32 if isA else 8, par_off(e, F_AT) if isA else None)

def wave_sum(e, x, t):
    dp = 'row_mask:0xf bank_mask:0xf'
    for sh in (8, 4, 2, 1): e(f'v_add_f32_dpp v{x}, v{x}, v{x} row_ror:{sh} {dp}')
    allred(e, 'v_add_f32', x, t)

def ln_token(e, xb):
    s, t = xb+15, xb+16
    e(f'v_add_f32 v{s}, v{xb}, v{xb+1}')
    for k in range(2, 10): e(f'v_add_f32 v{s}, v{s}, v{xb+k}')
    wave_sum(e, s, t)
    e(f'v_mul_f32 v{s}, {fbits(1/640)}, v{s}')
    for k in range(10): e(f'v_sub_f32 v{xb+k}, v{xb+k}, v{s}')
    e(f'v_mul_f32 v{s}, v{xb}, v{xb}')
    for k in range(1, 10): e(f'v_fmac_f32 v{s}, v{xb+k}, v{xb+k}')
    wave_sum(e, s, t)
    e(f'v_mov_b32 v{t}, {fbits(1e-5)}'); e(f'v_fmac_f32 v{t}, {fbits(1/640)}, v{s}')
    e(f'v_rsq_f32 v{t}, v{t}')
    for k in range(10): e(f'v_mul_f32 v{xb+k}, v{xb+k}, v{t}')
    for k in range(5): e(f'v_cvt_pk_bf16_f32 v{xb+10+k}, v{xb+2*k}, v{xb+2*k+1}')

def unpack(e, d, s):
    e(f'v_and_b32 v{d+1}, 0xffff0000, v{s}'); e(f'v_lshlrev_b32 v{d}, 16, v{s}')

def role_red(e, isA):
    lanes(e); nm = 'RA' if isA else 'RB'; NP = 1 if isA else 4; NT = 2 if isA else 1
    flagaddr(e, 3, 5 if isA else 20)
    e('v_lshrrev_b32 v4, 1, v0')
    e('v_lshrrev_b32 v6, 1, v1'); e('v_and_b32 v6, 3, v6'); e('v_lshlrev_b32 v5, 4, v6')
    e('v_lshrrev_b32 v6, 3, v1'); e('v_lshl_add_u32 v5, v6, 3, v5'); e('v_and_b32 v6, 1, v1'); e('v_lshl_add_u32 v5, v6, 2, v5')
    e('v_lshl_add_u32 v5, v2, 6, v5')
    e('s_lshr_b32 s30, s8, 1'); e('s_and_b32 s10, s8, 1')
    e('s_lshl_b32 s31, s30, 2'); e('s_add_u32 s31, s31, s9')
    if isA: e('s_lshl_b32 s31, s31, 1')
    srd(e, 24, A_X if isA else D_OUT, 2048*1280)
    e('s_lshl_b32 s13, s30, 2'); e('s_lshl_b32 s19, s10, 7'); e('s_add_u32 s13, s13, s19'); e(f's_add_u32 s13, s13, {F_XB if isA else F_XA}')
    e(f's_mov_b32 s12, {F_AO if isA else F_BO}')
    if isA: e('s_add_u32 s12, s12, s19')
    e.wait(lgkm=0)
    XO, XP, XF, PP = 16, 112, 128, 64
    e.label(f'{nm}_L')
    e('s_and_b32 s14, s10, 63'); e('s_lshl_b32 s14, s14, 5'); e('s_add_u32 s14, s14, s31'); e('s_mul_i32 s14, s14, 1280')
    e('s_lshr_b32 s15, s10, 6'); e(f's_mul_i32 s15, s15, {2*2048*1280}'); e('s_add_u32 s15, s15, s14'); e(f's_add_u32 s15, s15, {XR + (0 if isA else 2048*1280)}')
    e('s_add_u32 s16, s10, 1')
    wait_flag(e, 3, 's12', 's16', 9)
    e(f's_mul_i32 s18, s10, {NP*81920}'); e('s_mul_i32 s19, s31, 2560'); e('s_add_u32 s18, s18, s19'); e(f's_add_u32 s18, s18, {PA if isA else PB}')
    for p in range(NP*NT):
        for k in range(5): e(f'buffer_load_dwordx2 {R(PP+10*p+2*k,2)}, v4, {WS}, s18 offen offset:{512*k} sc1')
        if p+1 < NP*NT: e(f's_add_u32 s18, s18, {2560 if isA else 81920}')
    if isA:
        e('s_cmp_ge_u32 s10, 64'); e(f's_cbranch_scc1 {nm}_X')
        sv = e.save()
        for k in range(5*NT): e(f'buffer_load_dword v{XO+k}, v5, s[24:27], s14 offen offset:{256*k}')
        e(f's_branch {nm}_Y'); e.label(f'{nm}_X'); e.restore(sv)
    for k in range(5*NT): e(f'buffer_load_dword v{XO+k}, v5, {WS}, s15 offen offset:{256*k} sc1')
    if isA: e.label(f'{nm}_Y')
    for p in range(1, NP):
        for k in range(10): e(f'v_add_f32 v{PP+k}, v{PP+k}, v{PP+10*p+k}')
    for u in range(NT):
        for k in range(5):
            e(f'v_cvt_pk_bf16_f32 v{XP+5*u+k}, v{PP+10*u+2*k}, v{PP+10*u+2*k+1}')
            unpack(e, PP+10*u+2*k, XP+5*u+k); unpack(e, XF+20*u+2*k, XO+5*u+k)
        for k in range(10): e(f'v_add_f32 v{XF+20*u+k}, v{XF+20*u+k}, v{PP+10*u+k}')
        for k in range(5): e(f'v_cvt_pk_bf16_f32 v{XP+5*u+k}, v{XF+20*u+2*k}, v{XF+20*u+2*k+1}')
    e(f's_add_u32 s15, s15, {2048*1280}')
    if not isA:
        e('s_cmp_lt_u32 s10, 64'); e(f's_cbranch_scc1 {nm}_X')
        for k in range(5): e(f'buffer_store_dword v{XP+k}, v5, s[24:27], s14 offen offset:{256*k}')
        if TRACE[0]: e('s_add_u32 s16, s10, 65'); trace(e, 's16', 9)
        e(f's_branch {nm}_N'); e.label(f'{nm}_X')
    e('s_mul_i32 s18, s10, 40960'); e('s_mul_i32 s19, s31, 1280'); e('s_add_u32 s18, s18, s19'); e(f's_add_u32 s18, s18, {XNB if isA else XNA + 64*40960}')
    for u in range(NT):
        for k in range(5): unpack(e, XF+20*u+2*k, XP+5*u+k)
        ln_token(e, XF+20*u)
        for k in range(5): e(f'buffer_store_dword v{XF+20*u+10+k}, v5, {WS}, s18 offen offset:{1280*u+256*k} sc1')
    for k in range(5*NT): e(f'buffer_store_dword v{XP+k}, v5, {WS}, s15 offen offset:{256*k} sc1')
    e.wait(vm=0); e('s_barrier')
    e(f's_add_u32 s16, s10, {1 if isA else 65}')
    set_flag(e, 's13', 's16', 9)
    if not isA: e.label(f'{nm}_N')
    e('s_add_u32 s10, s10, 2'); e('s_cmp_lt_u32 s10, 128'); e(f's_cbranch_scc1 {nm}_L')
    e.wait(vm=0); e('s_endpgm')

def need_prog(e, sc, soff, need, t, two=False):
    lp = e.newlabel('NP'); dn = e.newlabel('ND')
    e(f's_cmp_ge_u32 {sc}, {need}'); e(f's_cbranch_scc1 {dn}')
    sv = e.save()
    e.label(lp)
    if two:
        e(f'buffer_load_dwordx2 {R(t,2)}, off, {WS}, {soff} sc1'); e(f'v_min_u32 v{t}, v{t}, v{t+1}')
    else: e(f'buffer_load_dword v{t}, off, {WS}, {soff} sc1')
    e(f'v_readfirstlane_b32 {sc}, v{t}')
    e(f's_cmp_ge_u32 {sc}, {need}'); e(f's_cbranch_scc1 {dn}')
    e('s_sleep 2')
    e('s_sub_u32 s20, s20, 1'); e('s_cmp_gt_i32 s20, 0'); e(f's_cbranch_scc1 {lp}')
    e.label(dn); e.restore(sv)

def ln0(e):
    srd(e, 28, A_X, 2048*1280)
    e('v_lshrrev_b32 v11, 2, v0')
    e('s_lshl_b32 s14, s8, 5'); e('s_lshl_b32 s19, s9, 3'); e('s_add_u32 s14, s14, s19'); e('s_mul_i32 s14, s14, 1280')
    for tk in range(8):
        e(f's_add_u32 s19, s14, {tk*1280}')
        for k in range(5): e(f'buffer_load_dword v{128+5*tk+k}, v11, s[28:31], s19 offen offset:{256*k}')
    aqkv_weights(e, True)
    xn_setup(e)
    e(f's_add_u32 s14, s14, {XNA}')
    e('v_lshrrev_b32 v12, 9, v0'); e('v_lshlrev_b32 v12, 12, v12'); e('s_lshl_b32 s19, s9, 10'); e('v_add_u32 v12, s19, v12')
    e('v_and_b32 v13, 12, v11'); e('v_add_u32 v12, v12, v13'); e('v_and_b32 v13, 0x70, v11')
    for tk in range(8):
        for k in range(5): unpack(e, 32+2*k, 128+5*tk+k)
        ln_token(e, 32)
        e(f's_add_u32 s19, s14, {tk*1280}')
        e(f'v_xor_b32 v14, {tk*16}, v13'); e('v_add_u32 v14, v14, v12')
        for k in range(5):
            e(f'buffer_store_dword v{42+k}, v11, {WS}, s19 offen offset:{256*k} sc1')
            e(f'ds_write_b32 v14, v{42+k} offset:{8192*k + tk*128}')
    e.barrier()
    e('s_mov_b32 s10, s8')
    akv_body(e, 'K0B', 'sc1')
    e.wait(vm=0, lgkm=0); e('s_barrier')
    e('s_cmp_lg_u32 s9, 0'); e('s_cbranch_scc1 L0_E')
    e('v_mov_b32 v9, 1'); e(f's_mov_b32 s19, {F_AKV+128}'); e('s_mov_b64 exec, 1')
    e(f'buffer_atomic_add v9, off, {WS}, s19 sc0 sc1')
    e.wait(vm=0)
    e('s_mov_b64 exec, -1'); e('v_readfirstlane_b32 s16, v9')
    e('s_cmp_lg_u32 s16, 63'); e('s_cbranch_scc1 L0_E')
    e('v_mov_b32 v9, 64'); e(f's_mov_b32 s19, {F_XA}'); e(f's_mov_b32 s18, {F_AKV}')
    e(f'buffer_store_dword v9, v11, {WS}, s19 offen sc1'); e(f'buffer_store_dword v9, off, {WS}, s18 sc1')
    e.wait(vm=0)
    e.label('L0_E'); e.reset()

def role_att(e):
    lanes(e); ln0(e)
    e('s_lshr_b32 s31, s8, 1'); e('s_and_b32 s30, s8, 1')
    e('s_lshr_b32 s12, s31, 2'); e('s_lshl_b32 s12, s12, 2'); e(f's_add_u32 s12, s12, {F_AQ}')
    e('s_lshl_b32 s13, s30, 7'); e('s_lshl_b32 s19, s31, 2'); e('s_add_u32 s13, s13, s19'); e(f's_add_u32 s13, s13, {F_AT}')
    e(f's_mov_b32 s14, {F_AKV}'); e('s_mov_b32 s25, 0'); e('s_mov_b32 s26, 0')
    e('s_lshl_b32 s19, s9, 12'); e('v_add_u32 v4, s19, v0')
    e('v_lshlrev_b32 v5, 12, v2'); e('v_lshl_add_u32 v5, v1, 4, v5')
    e('s_lshl_b32 s19, s9, 11'); e('v_add_u32 v6, s19, v0')
    e('s_lshl_b32 s19, s9, 7'); e('v_lshlrev_b32 v7, 3, v1'); e('v_add_u32 v7, s19, v7')
    e('v_lshlrev_b32 v8, 7, v2'); e('v_lshl_add_u32 v8, v1, 3, v8')
    e(f's_mov_b32 s28, {fbits(2.0**-80)}'); e(f's_mov_b32 s29, {fbits(2.0**80)}')
    zero(e, 24, 8)
    e('s_mov_b32 s11, 0')
    e.label('AT_LAY')
    e('s_lshl_b32 s17, s8, 2'); e('s_cmp_eq_u32 s11, 0'); e('s_cselect_b32 s17, s17, 0'); e('s_add_u32 s17, s17, s9')
    def kblk(i, sn, sa):
        e('s_and_b32 s17, s17, 63'); e(f's_add_u32 {sn}, s11, s17'); e(f's_lshl_b32 {sa}, {sn}, 12'); e(f's_add_u32 {sa}, {sa}, {KA}'); e(f's_add_u32 {sn}, {sn}, 1')
        need_prog(e, 's25', 's14', sn, 9)
        for k in range(4): e(f'buffer_load_dwordx4 {R(16*i+4*k,4,"a")}, v0, {WS}, {sa} offen offset:{1024*k} sc1')
        e('s_add_u32 s17, s17, 4')
    for i in range(15):
        kblk(i, 's16', 's18')
        if i == 7: e.wait(vm=0)
    e('s_mov_b32 s27, 1'); e('s_cmp_lg_u32 s11, 0'); e('s_cbranch_scc1 AT_D')
    kblk(15, 's16', 's18'); e('s_mov_b32 s27, 0')
    e.label('AT_D')
    e('s_add_u32 s10, s11, s30')
    e.label('AT_U')
    e('s_add_u32 s16, s10, 1')
    need_prog(e, 's26', 's12', 's16', 9)
    e('s_lshl_b32 s18, s10, 5'); e('s_add_u32 s18, s18, s31'); e('s_lshl_b32 s18, s18, 11'); e(f's_add_u32 s19, s18, {QA}')
    e(f'buffer_load_dwordx4 v[16:19], v0, {WS}, s19 offen sc1'); e(f'buffer_load_dwordx4 v[20:23], v0, {WS}, s19 offen offset:1024 sc1')
    e('s_mov_b32 s15, 0')
    e.wait(vm=0)
    e.label('AT_M')
    def sco(i, kt, a, c=None):
        return f'{mf} {R(32+16*(i&1)+8*a+4*kt,4)}, {R(16*i+4*kt,4,"a")}, {R(16+4*a,4)}, {c if c is not None else R(24+4*a,4)}'
    def pv(i, a, t):
        d = R(72+8*a+4*t, 4)
        return f'{mf} {d}, {R(16*i+8+4*t,4,"a")}, {R(64+4*a,4)}, {d if i else 0}'
    for a in range(2):
        for kt in range(2): e(sco(0, kt, a))
    for i in range(16):
        b = 32+16*(i & 1)
        if i == 14:
            e('s_cmp_eq_u32 s27, 0'); e('s_cbranch_scc1 AT_DN')
            sv = e.save(); kblk(15, 's21', 's19'); e('s_mov_b32 s27, 0'); e.wait(vm=0)
            e.label('AT_DN'); e.restore(sv)
        ms = {}
        if i: ms[1] = pv(i-1, 1, 0); ms[3] = pv(i-1, 1, 1)
        if i < 15:
            ms[5] = sco(i+1, 0, 0); ms[7] = sco(i+1, 1, 0); ms[18] = sco(i+1, 0, 1); ms[20] = sco(i+1, 1, 1)
        ms[14] = pv(i, 0, 0); ms[16] = pv(i, 0, 1)
        V = []
        for a in range(2):
            V += [f'v_exp_f32 v{b+8*a+k}, v{b+8*a+k}' for k in range(8)]
            V += [f'v_cvt_pk_bf16_f32 v{64+4*a+k}, v{b+8*a+2*k}, v{b+8*a+2*k+1}' for k in range(4)]
        for k, x in enumerate(V):
            if k in ms: e(ms[k])
            e(x)
    e(pv(15, 1, 0)); e(pv(15, 1, 1))
    for k in range(4): e(f'ds_write_b128 v4, {R(72+4*k,4)} offset:{1024*k}')
    e.barrier()
    e('ds_read_b32 v32, v5 offset:520'); e('ds_read_b32 v33, v5 offset:2568')
    for ww in range(4):
        for t in range(2): e(f'ds_read_b128 {R(40+8*ww+4*t,4)}, v6 offset:{4096*ww+1024*t}')
    allred(e, 'v_add_f32', 32, 34); allred(e, 'v_add_f32', 33, 34)
    e('v_cmp_lt_f32 s[32:33], s28, v32'); e('v_cmp_lt_f32 s[34:35], s28, v33')
    e('v_cmp_gt_f32 s[36:37], s29, v32'); e('v_cmp_gt_f32 s[38:39], s29, v33')
    e('s_nop 1')
    e('s_and_b64 s[32:33], s[32:33], s[34:35]'); e('s_and_b64 s[36:37], s[36:37], s[38:39]'); e('s_and_b64 s[32:33], s[32:33], s[36:37]')
    e('s_cmp_eq_u64 s[32:33], -1'); e('s_cbranch_scc1 AT_OK')
    e('s_cmp_lg_u32 s15, 0'); e('s_cbranch_scc1 AT_OK')
    sv = e.save()
    e.wait(lgkm=0)
    e('s_mov_b32 s15, 1')
    e('v_mov_b32 v10, 0xff800000'); e('v_mov_b32 v11, 0xff800000')
    for i in range(16):
        for a in range(2):
            for kt in range(2): e(sco(i, kt, a, 0))
        b = 32+16*(i & 1)
        for a in range(2):
            for k in range(4): e(f'v_max3_f32 v{10+a}, v{10+a}, v{b+8*a+2*k}, v{b+8*a+2*k+1}')
    allred(e, 'v_max_f32', 10, 12); allred(e, 'v_max_f32', 11, 12)
    e('ds_write_b64 v7, v[10:11] offset:16384')
    e.barrier()
    e('ds_read_b64 v[10:11], v8 offset:16384')
    allred(e, 'v_max_f32', 10, 12); allred(e, 'v_max_f32', 11, 12)
    for a in range(2):
        for k in range(4): e(f'v_sub_f32 v{24+4*a+k}, 0, v{10+a}')
    e('s_nop 1'); e('s_branch AT_M')
    e.label('AT_OK'); e.restore(sv)
    zero(e, 24, 8)
    e('s_cmp_ge_u32 s9, 2'); e('s_cbranch_scc1 AT_F')
    e('s_cmp_eq_u32 s9, 1'); e('s_cselect_b64 vcc, -1, 0'); e('v_cndmask_b32 v32, v32, v33, vcc')
    e('v_rcp_f32 v32, v32')
    for ww in range(1, 4):
        for k in range(8): e(f'v_add_f32 v{40+k}, v{40+k}, v{40+8*ww+k}')
    for k in range(8): e(f'v_mul_f32 v{40+k}, v{40+k}, v32')
    for k in range(4): e(f'v_cvt_pk_bf16_f32 v{36+k}, v{40+k}, v{44+k}')
    e('s_lshl_b32 s19, s9, 10'); e('s_add_u32 s18, s18, s19'); e(f's_add_u32 s18, s18, {OA}')
    e(f'buffer_store_dwordx4 v[36:39], v0, {WS}, s18 offen sc1')
    e.label('AT_F')
    e.wait(vm=0, lgkm=0); e('s_barrier')
    set_flag(e, 's13', 's16', 9)
    e('s_add_u32 s10, s10, 2'); e('s_sub_u32 s19, s10, s11'); e('s_cmp_lt_u32 s19, 64'); e('s_cbranch_scc1 AT_U')
    e('s_add_u32 s11, s11, 64'); e('s_cmp_lt_u32 s11, 128'); e('s_cbranch_scc1 AT_LAY')
    e.wait(vm=0); e('s_endpgm')

def role_batt(e):
    LM = 139264
    lanes(e)
    e('s_lshl_b32 s12, s8, 7'); e(f's_add_u32 s14, s12, {F_CH}'); e(f's_add_u32 s12, s12, {F_KV}')
    e('s_lshl_b32 s13, s8, 2'); e(f's_add_u32 s13, s13, {F_BA}')
    e('s_mov_b32 s25, 0'); e('s_mov_b32 s26, 0')
    e('s_lshr_b32 s30, s9, 1'); e('s_and_b32 s31, s9, 1')
    e('s_lshl_b32 s19, s30, 12'); e('v_add_u32 v8, s19, v0')
    e('v_lshrrev_b32 v10, 2, v1'); e('v_lshlrev_b32 v10, 8, v10'); e('v_lshl_add_u32 v10, v2, 6, v10')
    e('v_and_b32 v11, 1, v1'); e('v_lshl_add_u32 v10, v11, 2, v10'); e(f'v_add_u32 v10, {LM}, v10')
    e('s_lshl_b32 s19, s31, 11'); e(f's_add_u32 s19, s19, {LM+8}'); e('v_add_u32 v11, s19, v0')
    e('v_mov_b32 v12, v0')
    e('s_lshl_b32 s19, s31, 12'); e('v_add_u32 v13, s19, v0')
    e('s_lshl_b32 s19, s30, 4'); e('v_add_u32 v14, s19, v1'); e('v_lshlrev_b32 v15, 2, v2'); e('v_sub_u32 v14, v14, v15')
    for k in range(8): e(f'v_cmp_gt_i32 s[{40+2*k}:{41+2*k}], {16*(k>>2)+(k&3)}, v14')
    e(f's_mov_b32 s21, {fbits(128**-0.5*math.log2(math.e))}')
    e('s_lshl_b32 s11, s9, 10')
    def fetch(gs):
        e(f's_add_u32 s16, {gs}, 1')
        need_prog(e, 's25', 's12', 's16', 14, True)
        e(f's_lshl_b32 s18, {gs}, 5'); e(f's_add_u32 s18, s18, s8'); e('s_lshl_b32 s36, s18, 13'); e(f's_mul_i32 s18, s18, {SEG}')
        e('s_lshl_b32 s19, s9, 10'); e('s_add_u32 s18, s18, s19'); e('s_add_u32 s36, s36, s19')
        for sb, gb, lo in ((36, QB, 32768), (36, QB+4096, 36864), (18, KX, 40960), (18, KX+4096, 45056), (18, VX, 49152), (18, VX+4096, 53248)):
            e(f's_add_u32 m0, s11, {lo}'); e(f's_add_u32 s19, s{sb}, {gb}')
            e(f'buffer_load_dwordx4 v0, {WS}, s19 offen sc1 lds')
        e('s_xor_b32 s11, s11, 0x10000'); e(f'buffer_load_dword v116, off, {WS}, s14 sc1')
    def kvm():
        e(f's_mul_i32 s19, s38, {SEG}'); e('s_lshl_b32 s16, s9, 10'); e('s_add_u32 s19, s19, s16'); e(f's_add_u32 s19, s19, {KVM}')
        e(f's_add_u32 m0, s16, {LM}')
        e(f'buffer_load_dwordx4 v0, {WS}, s19 offen sc1 lds')
    e('s_mov_b32 s10, 0')
    e.label('BA_LAY')
    fetch('s10')
    e.wait(vm=0)
    e.label('BA_L')
    e.wait(vm=2, lgkm=0); e('s_barrier'); e.reset()
    for ks in range(4):
        e(f'ds_read_b128 {R(64+4*ks,4)}, v8 offset:{32768+1024*ks}')
        for b in range(2): e(f'ds_read_b128 {R(80+16*b+4*ks,4)}, v12 offset:{40960+(4*b+ks)*1024}')
    e('v_readfirstlane_b32 s16, v116'); e('s_max_u32 s26, s26, s16')
    e('s_add_u32 s28, s10, 1'); e('s_and_b32 s29, s28, 63')
    e('s_lshl_b32 s38, s10, 5'); e('s_add_u32 s38, s38, s8')
    e('s_cmp_ge_u32 s26, s28'); e('s_cselect_b32 s27, 1, 0'); e('s_cbranch_scc0 BA_P')
    sv = e.save(); kvm()
    e.label('BA_P'); e.restore(sv)
    S = 16
    for ks in range(4):
        for b in range(2): e(f'{mf} {R(S+4*b,4)}, {R(80+16*b+4*ks,4)}, {R(64+4*ks,4)}, {R(S+4*b,4) if ks else 0}')
    for k in range(4): e(f'ds_read_b128 {R(80+4*k,4)}, v13 offset:{49152+1024*k}')
    e('v_mov_b32 v15, 0xff800000')
    for k in range(8): e(f'v_cndmask_b32 v{S+k}, v{S+k}, v15, s[{40+2*k}:{41+2*k}]')
    for k in range(4): e(f'v_mov_b32 v{28+k}, 0x3f803f80')
    e.wait(vm=0, lgkm=0); e('s_barrier')
    set_flag(e, 's13', 's10', 9)
    e('s_cmp_eq_u32 s29, 0'); e('s_cbranch_scc1 BA_Q')
    fetch('s28')
    e.label('BA_Q'); e.reset()
    e('s_cmp_lg_u32 s27, 0'); e('s_cbranch_scc1 BA_J')
    need_prog(e, 's26', 's14', 's28', 14)
    kvm()
    e.wait(vm=0)
    e.label('BA_J'); e.reset()
    e('s_barrier')
    for ks in range(4):
        e(f'v_add_u32 v14, {1024*ks}, v10')
        e(f'ds_read2_b32 {R(96+4*ks,2)}, v14 offset0:0 offset1:4'); e(f'ds_read2_b32 {R(98+4*ks,2)}, v14 offset0:8 offset1:12')
    e('ds_read_b64 v[112:113], v11'); e('ds_read_b64 v[114:115], v11 offset:1024')
    Sm = 24
    for ks in range(4): e(f'{mf} {R(Sm,4)}, {R(96+4*ks,4)}, {R(64+4*ks,4)}, {R(Sm,4) if ks else 0}')
    sc = [S+k for k in range(10)]
    e(f'v_max3_f32 v14, v{sc[0]}, v{sc[1]}, v{sc[2]}')
    for k in (3, 5, 7): e(f'v_max3_f32 v14, v14, v{sc[k]}, v{sc[k+1]}')
    e(f'v_max_f32 v14, v14, v{sc[9]}')
    allred(e, 'v_max_f32', 14, 15)
    e('v_mul_f32 v14, s21, v14')
    for r in sc: e(f'v_fma_f32 v{r}, v{r}, s21, -v14')
    for r in sc: e(f'v_exp_f32 v{r}, v{r}')
    P = 32
    for k in range(5): e(f'v_cvt_pk_bf16_f32 v{P+k}, v{S+2*k}, v{S+2*k+1}')
    e(f'v_mov_b32 v{P+5}, 0'); e(f'v_mov_b32 v{P+6}, 0'); e(f'v_mov_b32 v{P+7}, v{P+4}')
    e(f'{mf} v[16:19], v[28:31], {R(P,4)}, 0')
    for k in range(4): e(f'{mf} {R(40+4*k,4)}, {R(80+4*k,4)}, {R(P,4)}, 0')
    e(f'{m16} v[16:19], v[28:29], {R(P+4,2)}, v[16:19]')
    for k in range(4):
        e(f'{m16} {R(40+4*k,4)}, {R(112+2*(k>>1),2)}, {R(P+4+2*(k&1),2)}, {R(40+4*k,4)}')
    e('v_rcp_f32 v14, v16')
    e('s_lshl_b32 s18, s38, 13'); e('s_lshl_b32 s19, s31, 12'); e('s_add_u32 s18, s18, s19'); e('s_lshl_b32 s19, s30, 10'); e('s_add_u32 s18, s18, s19'); e(f's_add_u32 s18, s18, {OB}')
    for sl in range(2):
        for k in range(8): e(f'v_mul_f32 v{40+8*sl+k}, v{40+8*sl+k}, v14')
        for k in range(4): e(f'v_cvt_pk_bf16_f32 v{56+4*sl+k}, v{40+8*sl+k}, v{44+8*sl+k}')
        e(f'buffer_store_dwordx4 {R(56+4*sl,4)}, v0, {WS}, s18 offen offset:{2048*sl} sc1')
    for r in (8, 12, 13): e(f'v_xor_b32 v{r}, 0x10000, v{r}')
    e('s_mov_b32 s10, s28')
    e('s_cmp_lg_u32 s29, 0'); e('s_cbranch_scc1 BA_L')
    e.wait(vm=0, lgkm=0); e('s_barrier')
    set_flag(e, 's13', 's10', 9)
    e('s_cmp_lt_u32 s10, 128'); e('s_cbranch_scc1 BA_LAY')
    e.wait(vm=0); e('s_endpgm')

def kernel0(e):
    e('s_cmp_ge_u32 s2, 64'); e('s_cbranch_scc1 K0_END')
    e(f's_load_dwordx2 s[4:5], s[0:1], {D_WS}'); e(f's_mov_b32 s6, {WS_BYTES}'); e('s_mov_b32 s7, 0x20000')
    e('v_lshlrev_b32 v10, 4, v0'); e('v_and_b32 v0, 1023, v10')
    zero(e, 12, 4, -1); zero(e, 16, 4, 0)
    e('s_mul_i32 s18, s2, 5120'); e(f's_add_u32 s18, s18, {PART}')
    e(f'buffer_store_dwordx4 v[12:15], v10, {WS}, s18 offen'); e(f'buffer_store_dwordx4 v[12:15], v10, {WS}, s18 offen offset:1024')
    e('s_lshl_b32 s19, s2, 10'); e(f's_add_u32 s19, s19, {MEMR}'); e(f'buffer_store_dwordx4 v[12:15], v0, {WS}, s19 offen')
    e('s_cmp_ge_u32 s2, 3'); e('s_cbranch_scc1 K0_NF')
    e('s_lshl_b32 s19, s2, 12')
    e(f'buffer_store_dwordx4 v[16:19], v10, {WS}, s19 offen')
    e.label('K0_NF')
    e.wait(vm=0)
    e.label('K0_END')
    e('s_endpgm')
```

```python
from em import Em, R
from layout import *
import math, struct

def fbits(x): return struct.unpack('<I', struct.pack('<f', x))[0]

L_MEM = 0; L_O = 0; L_KX = 10240; L_QK = 18432; L_SEL = 23040; L_MISC = 24064; L_W = 24576
QS = 288; L_K = L_QK + 8*QS
Q0, Q1, VA = 16, 24, 32
ABUF = [12, 40, 44]
X = [48, 56, 64, 72]
OWN = [[0,1,2],[3,4,5],[6,7],[8,9]]
WS = 's[4:7]'
NSCR = 9
SST = int(__import__('os').environ.get('SST', 0))
BLK = SEG
import os
PS = int(os.environ.get('PS', 10368))

def plan(w, cfg={}):
    own = OWN[w]
    order = own + [c % 10 for c in range(own[-1]+1, own[-1]+1+10-len(own))]
    qk = []
    for j, c in enumerate(order):
        if j < 8: qk += [(m, t, c) for (m, t) in (('q',0),('q',1),('k',0),('k',1))]
        if j < 7: qk += [('v',0,c),('v',1,c)]
    qk += [(m, t, order[j]) for m in 'qk' for j in (8, 9) for t in (0, 1)]
    for j in (9, 8, 7): qk += [('v',0,order[j]),('v',1,order[j])]
    o = [('o', t, c) for t in ((0,1,2,3,4,5,6,7,8,9) if cfg.get('oo', 1) else (8,9,0,1,2,3,4,5,6,7)) for c in (0,1)]
    qs = [[(0,'S'),(26,'S'),(32,'L'),(59,'S')],
          [(1,'S'),(7,'L'),(35,'S'),(41,'L'),(47,'L'),(53,'L')],
          [(2,'L'),(8,'L'),(13,'L'),(19,'L'),(45,'S'),(51,'L')],
          [(3,'L'),(9,'L'),(15,'L'),(21,'L'),(27,'L'),(52,'S')]]
    os_ = [[(0,'S'),(7,'L')], [(1,'S'),(8,'L')]]
    if cfg.get('early', 1):
        qs[2][0] = (2,'S'); qs[3][0] = (3,'S'); os_ = [[(0,'L'),(7,'L')], [(1,'L'),(8,'L')]]
    if cfg.get('l3', 0): qs[3] = [(10,'S'),(16,'L'),(22,'L'),(28,'L'),(33,'L'),(54,'S')]
    if cfg.get('l2', 0): qs[2] = [(9,'S'),(14,'L'),(19,'L'),(24,'L'),(46,'S'),(51,'L')]
    if cfg.get('ev', 0):
        qs = [[(0,'S'),(24,'S'),(29,'L'),(34,'L'),(59,'S')],
              [(1,'S'),(7,'L'),(36,'S'),(41,'L'),(46,'L'),(51,'L'),(55,'L')],
              [(2,'S'),(8,'L'),(13,'L'),(18,'L'),(23,'L'),(28,'L'),(33,'L')],
              [(3,'S'),(30,'S'),(54,'S')]]
    def mk(sl):
        u = []
        for k, l in enumerate(sl):
            for i, (p, ty) in enumerate(l): u.append((p, ty, k, l[i-1][0] if i else None))
        return u
    qu, ou = mk(qs), mk(os_)
    loc = {}; nl = ns = 0
    for lst, us in ((qk, qu), (o, ou)):
        for (p, ty, sl, ia) in us:
            if ty == 'L': loc[lst[p]] = ('L', nl*2048); nl += 1
            else: loc[lst[p]] = ('S', ns); ns += 1
    assert nl == 17 and ns == 9, (nl, ns)
    res = [f for f in o if f not in loc] + [f for f in qk if f not in loc]
    assert len(res) == 54, len(res)
    for i, f in enumerate(res):
        loc[f] = ('R', 'a', 8*i) if i < 32 else ('R', 'v', 80 + 8*(i-32))
    return order, qk, o, qu, ou, loc

def srd(e, base, koff, nbytes):
    e(f's_load_dwordx2 s[{base}:{base+1}], s[0:1], {koff}')
    e(f's_mov_b32 s{base+2}, {nbytes}')
    e(f's_mov_b32 s{base+3}, 0x20000')

def put_frag(e, loc, f, srcs):
    L = loc[f]
    put_frag.k ^= 1
    tmp = 64 + 8*put_frag.k
    for j, (r1, r0, sel) in enumerate(srcs):
        d = L[2]+j if (L[0] == 'R' and L[1] == 'v') else tmp+j
        e(f'v_perm_b32 v{d}, v{r1}, v{r0}, {sel}')
    if L[0] == 'R' and L[1] == 'a':
        for j in range(8): e(f'v_accvgpr_write_b32 a{L[2]+j}, v{tmp+j}')
    elif L[0] == 'L':
        e(f'ds_write_b128 v5, {R(tmp,4)} offset:{L[1]}')
        e(f'ds_write_b128 v5, {R(tmp+4,4)} offset:{L[1]+1024}')
    elif L[0] == 'S':
        e(f's_add_u32 s19, s18, {L[1]*2048}')
        e(f'buffer_store_dwordx4 {R(tmp,4)}, v0, {WS}, s19 offen')
        e(f'buffer_store_dwordx4 {R(tmp+4,4)}, v0, {WS}, s19 offen offset:1024')
put_frag.k = 0

def krow(j, b): return 32*(j>>2) + 2*((j>>1)&1) + 8*(j&1) + b

def prologue(e, w, loc):
    e('v_and_b32 v0, 63, v0')
    e('v_and_b32 v12, 15, v0')
    e('v_lshrrev_b32 v13, 4, v0')
    e('v_lshlrev_b32 v0, 4, v0')
    e('s_mov_b32 s22, 0x05040100')
    e('s_mov_b32 s23, 0x07060302')
    e(f'v_add_u32 v5, {L_W + w*17*2048}, v0')
    e(f's_mul_i32 s18, s8, {4*NSCR*2048+SST}')
    e(f's_add_u32 s18, s18, {SCR + w*NSCR*2048}')
    e('v_lshrrev_b32 v14, 1, v13')
    e('v_lshlrev_b32 v14, 4, v14')
    e('v_and_b32 v1, 1, v13')
    e('v_lshl_add_u32 v14, v1, 2, v14')
    srd(e, 24, B_WO, 32*128*640*2)
    e('v_mul_u32_u24 v2, 1280, v14')
    e('v_lshl_add_u32 v3, v12, 2, v2')
    e('v_lshl_add_u32 v2, v12, 4, v2')
    e(f'v_add_u32 v2, {256*w}, v2')
    e(f'v_add_u32 v3, {1024+64*w}, v3')
    e('s_mul_i32 s17, s8, 163840')
    for c in range(2):
        for j in range(8):
            for b in range(2):
                e(f's_add_u32 s19, s17, {(64*c+krow(j,b))*1280}')
                e(f'buffer_load_dwordx4 {R(80+c*64+(2*j+b)*4,4)}, v2, s[24:27], s19 offen')
                e(f'buffer_load_dword v{208+c*16+2*j+b}, v3, s[24:27], s19 offen')
    for c in range(2):
        for t in range(8):
            put_frag(e, loc, ('o',t,c), [(80+c*64+(2*j+1)*4+(t>>1), 80+c*64+(2*j)*4+(t>>1), 's23' if t&1 else 's22') for j in range(8)])
        for t in (8,9):
            put_frag(e, loc, ('o',t,c), [(208+c*16+2*j+1, 208+c*16+2*j, 's23' if t&1 else 's22') for j in range(8)])
    srd(e, 24, B_WQ, 640*4096*2); srd(e, 28, B_WK, 640*4096*2); srd(e, 32, B_WV, 640*4096*2)
    e('v_lshlrev_b32 v2, 13, v14')
    e('v_lshl_add_u32 v2, v12, 2, v2')
    e(f'v_add_u32 v2, {64*w}, v2')
    e('s_lshl_b32 s17, s8, 8')
    units = [(m, c) for m in 'qkv' for c in range(10)]
    def issue(u):
        m, c = units[u]; sb = {'q':24,'k':28,'v':32}[m]
        for j in range(8):
            for b in range(2):
                e(f's_add_u32 s19, s17, {(64*c+krow(j,b))*8192}')
                e(f'buffer_load_dword v{16+(u%3)*16+2*j+b}, v2, s[{sb}:{sb+3}], s19 offen')
    for u in range(3): issue(u)
    for u, (m, c) in enumerate(units):
        bb = 16+(u%3)*16
        for t in range(2):
            put_frag(e, loc, (m,t,c), [(bb+2*j+1, bb+2*j, 's23' if t else 's22') for j in range(8)])
        if u+3 < len(units): issue(u+3)
    e('v_lshrrev_b32 v14, 1, v12'); e('v_and_b32 v14, 1, v14')
    e('v_mov_b32 v1, 0x4444'); e('v_mov_b32 v15, 0xeeee')
    e('v_cmp_eq_u32 vcc, 1, v14'); e('v_cndmask_b32 v1, v1, v15, vcc')
    e('v_lshrrev_b32 v15, 2, v12'); e('v_lshlrev_b32 v15, 1, v15'); e('v_and_b32 v16, 1, v12'); e('v_add_u32 v15, v15, v16')
    e('v_mul_u32_u24 v7, 1280, v15'); e('v_lshl_add_u32 v7, v13, 5, v7'); e('v_lshl_add_u32 v7, v14, 4, v7')
    e(f'v_mul_u32_u24 v10, {QS}, v15'); e('v_lshl_add_u32 v10, v13, 4, v10'); e(f'v_add_u32 v10, {L_K}, v10')
    e('v_and_b32 v16, 7, v12')
    e(f'v_mul_u32_u24 v9, {QS}, v16'); e('v_lshl_add_u32 v9, v13, 4, v9'); e(f'v_add_u32 v9, {L_QK}, v9')
    e(f'v_mul_u32_u24 v8, {2*QS}, v13'); e('v_lshl_add_u32 v8, v12, 2, v8'); e(f'v_add_u32 v8, {L_QK+64*w}, v8')
    e('v_lshrrev_b32 v17, 1, v16'); e('v_lshlrev_b32 v17, 2, v17'); e('v_and_b32 v18, 1, v16'); e('v_add_u32 v17, v17, v18')
    e('v_and_b32 v18, 1, v13'); e('v_lshl_add_u32 v17, v18, 1, v17')
    e('v_lshrrev_b32 v18, 1, v13'); e('v_lshl_add_u32 v17, v18, 4, v17')
    e('v_lshlrev_b32 v11, 4, v17'); e(f'v_add_u32 v11, {L_O + (w>>1)*1024 + (w&1)*512}, v11')
    e(f's_mul_i32 s19, s8, {PS}')
    e('v_mul_u32_u24 v2, 2560, v13'); e('v_add_u32 v2, s19, v2')
    e('v_lshl_add_u32 v3, v12, 2, v2'); e(f'v_add_u32 v3, {1024+64*w}, v3')
    e('v_lshl_add_u32 v2, v12, 4, v2'); e(f'v_add_u32 v2, {256*w}, v2')
    e('v_lshrrev_b32 v16, 3, v12'); e('v_lshl_add_u32 v16, v13, 1, v16')
    e('v_and_b32 v17, 7, v12')
    e(f's_lshl_b32 s19, s8, 7'); e(f's_add_u32 s19, s19, {32*128*w}')
    e(f'v_mul_u32_u24 v4, {PS}, v16'); e('v_lshl_add_u32 v4, v17, 4, v4'); e('v_add_u32 v4, s19, v4')
    if w == 0:
        e('v_and_b32 v16, 1, v12'); e('v_mov_b32 v17, 0x3f80'); e('v_mov_b32 v18, 0x3f800000')
        e('v_cmp_eq_u32 vcc, 1, v16'); e('v_cndmask_b32 v17, v17, v18, vcc')
        e('v_lshrrev_b32 v16, 1, v12')
        for i in range(4):
            e(f'v_cmp_eq_u32 vcc, {i}, v16'); e(f'v_cndmask_b32 v{20+i}, 0, v17, vcc')
        e(f'ds_write_b128 v0, v[20:23] offset:{L_SEL}')
    e(f's_mov_b32 s21, {fbits(128**-0.5*math.log2(math.e))}')
    e('s_mov_b32 s20, 400000')
    e(f's_mov_b32 s12, {PART}')
    e(f's_mov_b32 s15, {MEMR}')
    e.wait(vm=0, lgkm=0)

CFG = {}
def load_frag(e, loc, f, slot):
    L = loc[f]; b = X[slot]
    if CFG.get('no'+L[0]): return
    sf = CFG.get('sf', '')
    if L[0] == 'L':
        e(f'ds_read_b128 {R(b,4)}, v5 offset:{L[1]}'); e(f'ds_read_b128 {R(b+4,4)}, v5 offset:{L[1]+1024}')
    else:
        sr = 90 + L[1]//2; of = (L[1] & 1)*2048
        if CFG.get('sadd', 1): e(f's_add_u32 s19, s18, {L[1]*2048}'); sr = 19; of = 0
        e(f'buffer_load_dwordx4 {R(b,4)}, v0, {WS}, s{sr} offen offset:{of} {sf}'); e(f'buffer_load_dwordx4 {R(b+4,4)}, v0, {WS}, s{sr} offen offset:{of+1024} {sf}')

def bop(loc, f, uses, pos):
    L = loc[f]
    if L[0] == 'R': return R(L[2], 8, L[1])
    for (p, ty, sl, ia) in uses:
        if p == pos: return R(X[sl], 8)
    raise KeyError

def check(e, regs, t0, t1):
    r = list(regs)
    e(f'v_max3_u32 v{t0}, v{r[0]}, v{r[1]}, v{r[2]}')
    r = r[3:]
    while len(r) >= 2:
        e(f'v_max3_u32 v{t0}, v{t0}, v{r[0]}, v{r[1]}'); r = r[2:]
    if r: e(f'v_max_u32 v{t0}, v{t0}, v{r[0]}')
    e(f'v_cmp_eq_u32 vcc, -1, v{t0}')

def spin_flag(e, need_sgpr, t):
    lp = e.newlabel('CF'); dn = e.newlabel('CFD')
    e.label(lp)
    e(f'buffer_load_dwordx2 {R(t,2)}, off, {WS}, s24 sc1')
    e(f'v_min_u32 v{t}, v{t}, v{t+1}')
    e(f'v_readfirstlane_b32 s25, v{t}')
    e(f's_cmp_ge_u32 s25, {need_sgpr}')
    e(f's_cbranch_scc1 {dn}')
    e('s_sleep 2')
    e('s_sub_u32 s20, s20, 1'); e('s_cmp_gt_i32 s20, 0'); e(f's_cbranch_scc1 {lp}')
    e.label(dn)

def kx_dma(e, w, soff, which=(0, 1)):
    for i in which:
        f = 2*w+i
        e(f's_add_u32 m0, s37, {2048 + f*1024}')
        e(f's_add_u32 s19, {soff}, {f*1024}')
        e(f'buffer_load_dwordx4 v0, {WS}, s19 offen {CFG.get("kvsc","sc1 nt")} lds')

def allred(e, op, x, t):
    e(f'v_mov_b32 v{t}, v{x}'); e(f'v_permlane32_swap_b32 v{x}, v{t}'); e(f'{op} v{x}, v{x}, v{t}')
    e(f'v_mov_b32 v{t}, v{x}'); e(f'v_permlane16_swap_b32 v{x}, v{t}'); e(f'{op} v{x}, v{x}, v{t}')

def zero(e, b, n, val=0):
    for k in range(0, n, 2): e(f'v_mov_b64 {R(b+k,2)}, {val}')

NST = 10
def steps(e, w, P, st='', stamp=False, cfg={}):
    order, qk, o, qu, ou, loc = P
    CFG.update(cfg)
    own = OWN[w]; nown = len(own)
    tag = f'w{w}' + ('x' if st else '')
    sm = 'v_smfmac_f32_16x16x64_bf16'; mf = 'v_mfma_f32_16x16x32_bf16'; m16 = 'v_mfma_f32_16x16x16_bf16'
    def T(i):
        if stamp: e.raw(f'    s_memtime s[{40+2*i}:{41+2*i}]')
    e(f's_lshl_b32 s24, s8, 7'); e(f's_add_u32 s26, s24, {F_CH}'); e(f's_add_u32 s24, s24, {F_KV}')
    e('s_mov_b32 s11, 0')
    e(f's_mul_i32 s17, s8, {BLK}'); e(f's_add_u32 s17, s17, {KX}')
    e(f's_add_u32 s27, s17, {KVM - KX + w*1024}')
    srd(e, 28, B_MEM0, 10240)
    e('s_mov_b32 s39, 0')
    for k in range(5): e(f's_add_u32 s{90+k}, s18, {4096*k}')
    e(f's_add_u32 s36, s8, {32*w}'); e('s_mul_i32 s22, s36, 205'); e('s_lshr_b32 s22, s22, 11'); e('s_mul_i32 s23, s22, 10'); e('s_sub_u32 s36, s36, s23')
    e('s_lshl_b32 s38, s36, 10'); e('s_lshr_b32 s23, s22, 1'); e('s_lshl_b32 s23, s23, 6'); e('s_add_u32 s38, s38, s23')
    e('s_and_b32 s23, s22, 1'); e('s_lshl_b32 s23, s23, 4'); e('s_add_u32 s38, s38, s23')
    e('s_cmp_ge_u32 s36, 8'); e('s_cselect_b32 s36, 1, 0')
    for i, r in enumerate((13, 14, 59)): e(f's_add_u32 s{r}, s12, {(i+1)*8*PS}')
    if cfg.get('scr1'): e(f's_and_b32 s18, s8, {cfg["scr1"]-1}'); e(f's_mul_i32 s18, s18, {4*NSCR*2048+SST}'); e(f's_add_u32 s18, s18, {SCR + w*NSCR*2048}')
    lo, hi = (47, 207) if not cfg.get('forcefb') else (126, 128)
    e(f's_mov_b32 s32, {lo << 23}'); e(f's_mov_b32 s33, {(hi-lo) << 23}')
    if w == 3:
        e('v_lshlrev_b32 v4, 3, v0')
        e('v_mov_b64 v[12:13], 0'); e(f'v_mov_b32 v14, {L_MISC+256}'); e('ds_write_b64 v14, v[12:13]')
    if stamp:
        for i in range(NST): e(f's_mov_b32 s{70+i}, 0')
    e.wait(lgkm=0)
    e.label(f'CL_{tag}')
    e('s_mov_b32 s10, 0')
    if w == 3:
        e('s_add_u32 s22, s11, 1')
        spin_flag(e, 's22', 12)
    e.barrier()
    if stamp:
        e('s_mov_b32 s84, s86'); e('s_mov_b32 s85, s87'); e('s_memrealtime s[86:87]'); e.wait(lgkm=0)
    e('s_mov_b32 s37, 8192'); e('v_mov_b32 v6, v0')
    kx_dma(e, w, 's17')
    for i, c in enumerate(own):
        e(f'buffer_load_dwordx4 {R(ABUF[i],4)}, v7, s[28:31], 0 offen offset:{c*128}')
    for (p, ty, sl, ia) in qu:
        if ia is None: load_frag(e, loc, qk[p], sl)
    zero(e, Q0, 24)
    e.wait(vm=0, lgkm=0)
    e.label(f'CS_{tag}')
    vq0 = [set(('v', X[k]+4*hf+j) for j in range(4)) for k in range(4) if cfg.get('pp', 'ccbd')[k] == 'd' for hf in range(2)]
    e.vq = list(vq0)
    T(0)
    for i, c in enumerate(own):
        e(f'ds_write_b128 v{6 if c >= 2 else 0}, {R(ABUF[i],4)} offset:{L_MEM + c*1024}')
    barpos = cfg.get('bar3', 6) if nown == 3 else cfg.get('bar2', 4)
    acc = {('q',0):Q0, ('q',1):Q0+4, ('k',0):Q1, ('k',1):Q1+4, ('v',0):VA, ('v',1):VA+4}
    lastpos = {}
    for i, f in enumerate(qk[:54]): lastpos[order.index(f[2])] = i
    nextA = nown
    def M(i):
        f = qk[i]; j = order.index(f[2])
        e(f'{sm} {R(acc[f[:2]],4)}, {R(ABUF[j%3],4)}, {bop(loc,f,qu,i)}, v1')
        for (p, ty, sl, ia) in qu:
            if ia == i: load_frag(aux.append, loc, qk[p], sl)
        n = len(aux) if (i >= 50 or not cfg.get('sch', 0)) else (1 if len(aux) <= cfg.get('bk', 3) else 2)
        for _ in range(min(n, len(aux))):
            x = aux.pop(0)
            for y in ([x] if isinstance(x, str) else x): e(y)
    aux = []
    qops = []
    for k in (0, 1, 4, 5): qops += [f'v_add_f32 v{Q0+k}, v{Q0+k}, v{Q0+k+2}']
    for k in (0, 1, 4, 5): qops += [f'v_mul_f32 v{Q0+k}, s21, v{Q0+k}']
    qops += [f'v_cvt_pk_bf16_f32 v{Q0+2+r}, v{Q0+r}, v{Q0+4+r}' for r in range(2)]
    qops += [f'ds_write2_b32 v8, v{Q0+2}, v{Q0+3} offset0:0 offset1:{QS//4}']
    pd = cfg.get('pd', 1); pf = cfg.get('pfsc', 'sc1')
    fprep = [f's_add_u32 s34, s17, {32*BLK}', ['s_cmp_eq_u32 s10, 63', 's_cselect_b32 s34, s17, s34'], 's_xor_b32 s37, s37, 8192']
    if cfg.get('samekv'): fprep[0] = 's_mov_b32 s34, s17'
    vpos = max(p for (p, ty, sl, ia) in qu if sl == 2); fpos = cfg.get('fpos', 40); late = w == 3 and not cfg.get('ev', 0) and not cfg.get('nofar')
    if w == 3 and not cfg.get('nofar'):
        fprep += ['s_add_u32 s22, s11, 2', ['s_cmp_lt_u32 s25, s22', 's_cselect_b32 s35, s17, s34'], f's_mov_b32 m0, {L_MISC}',
                  f'buffer_load_dword v4, {WS}, s35 offen {pf} lds', f's_add_u32 s35, s35, {VX-KX}', f'buffer_load_dword v4, {WS}, s35 offen {pf} lds']
        if not cfg.get('kpf', 0): del fprep[-3]
        if late: fprep = fprep[:3] + [f's_add_u32 s35, s34, {VX-KX}', fprep[-3], fprep[-1]]
    def qe(n):
        for _ in range(n):
            if qops: e(qops.pop(0))
    for i in range(54):
        if i == barpos:
            e.wait(lgkm=len(e.lq) - nown if len(e.lq) >= nown and e.lq[0] == set() else 0)
            e('s_barrier')
        if i >= barpos:
            while nextA < 10 and (nextA < 3 or lastpos[nextA-3] < i):
                x = f'ds_read_b128 {R(ABUF[nextA%3],4)}, v{6 if order[nextA] >= 2 else 0} offset:{L_MEM + order[nextA]*1024}'; nextA += 1
                e(x) if i == barpos else aux.insert(0, x)
        M(i)
        if i >= 51: qe(1)
        if i >= fpos-6 and len(fprep) > (2 if late else 0):
            if not aux: aux.append(fprep.pop(0))
        if i == 50:
            assert nextA == 10
            e('v_xor_b32 v6, 8192, v6')
        if i == vpos and w == 3 and cfg.get('fse'):
            e.nop(2); e(f'v_mov_b32 v{X[2]}, s11'); e(f'buffer_store_dword v{X[2]}, off, {WS}, s26 sc1')
        if i == vpos:
            e(f's_add_u32 s19, s17, {VX-KX + w*2048}')
            e(f'buffer_load_dwordx4 {R(X[2],4)}, v0, {WS}, s19 offen {CFG.get("kvsc","sc1 nt")}')
            e(f'buffer_load_dwordx4 {R(X[2]+4,4)}, v0, {WS}, s19 offen offset:1024 {CFG.get("kvsc","sc1 nt")}')
    T(1)
    def kxrd(tile, ks, b): e(f'ds_read_b128 {R(b,4)}, v6 offset:{2048 + (tile*4+ks)*1024}')
    M(54); qe(2)
    kxrd(0,0,X[3]); kxrd(1,0,X[3]+4)
    M(55); qe(9)
    kxrd(0,1,X[1]); kxrd(1,1,X[1]+4)
    for k in (0, 1, 4, 5): e(f'v_add_f32 v{Q1+k}, v{Q1+k}, v{Q1+k+2}')
    for r in range(2): e(f'v_cvt_pk_bf16_f32 v{12+r}, v{Q1+r}, v{Q1+4+r}')
    e(f'ds_write2_b32 v8, v12, v13 offset0:{8*QS//4-512} offset1:{9*QS//4-512}') if False else None
    e(f'ds_write_b32 v8, v12 offset:{8*QS}'); e(f'ds_write_b32 v8, v13 offset:{9*QS}')
    rs = 1
    M(56); M(57)
    assert len(fprep) == (2 if late else 0)
    if w == 3:
        sk = e.newlabel('CN')
        e('s_add_u32 s22, s11, 2'); e('s_cmp_ge_u32 s25, s22'); e(f's_cbranch_scc1 {sk}')
        e('s_cmp_eq_u32 s10, 63'); e(f's_cbranch_scc1 {sk}')
        sv = e.save(); spin_flag(e, 's22', 14); e.restore(sv)
        e.label(sk)
    e.barrier()
    T(2)
    def qrd(ks, b): e(f'ds_read_b128 {R(b,4)}, v9 offset:{ks*64}'); e(f'ds_read_b128 {R(b+4,4)}, v10 offset:{ks*64}')
    qrd(0, Q0); qrd(1, Q1)
    M(58); M(59)
    for x in fprep: e(x)
    kxrd(0,2,X[0]); kxrd(1,2,X[0]+4)
    vep = [f'v_add_f32 v{VA+k}, v{VA+k}, v{VA+k+2}' for k in (0, 1, 4, 5)] + [f'v_cvt_pk_bf16_f32 v14, v{VA}, v{VA+1}', f'v_cvt_pk_bf16_f32 v15, v{VA+4}, v{VA+5}']
    kst = f'buffer_store_dwordx4 v[12:15], v0, {WS}, s27 offen sc1 {cfg.get("kvmf","nt")}'
    vf = cfg.get('vf', 0)
    for x in (vep[:2] if vf else vep + [kst]): e(x)
    Sm, S0, S1 = VA, 40, 44
    def score(ks, qb, kb, fill=[]):
        z = ks == 0; fill = list(fill)
        for d, a in (((S1, kb+4), (S0, kb), (Sm, qb+4)) if z and vf else ((S1, kb+4), (Sm, qb+4), (S0, kb))):
            e(f'{mf} {R(d,4)}, {R(a,4)}, {R(qb,4)}, {0 if z else R(d,4)}')
            for x in fill[:2]: e(x)
            fill = fill[2:]
    ones = VA+4; Pb = Q0
    score(0, Q0, X[3], vep[2:] if vf else []); qrd(2, Q0); kxrd(0,3,X[3]); kxrd(1,3,X[3]+4)
    if vf: e(kst)
    if not cfg.get('k4'): kx_dma(e, w, 's34', (0,))
    score(1, Q1, X[1], [f'v_mov_b32 v{ones+k}, 0x3f803f80' for k in range(4)])
    qrd(3, Q1)
    load_frag(e, loc, o[1], 1)
    if not cfg.get('k4'): kx_dma(e, w, 's34', (1,))
    score(2, Q0, X[0])
    load_frag(e, loc, o[0], 0)
    if w == 3 and not cfg.get('nofar'):
        if not cfg.get('fse'): e(f'v_mov_b32 v12, s11'); e(f'buffer_store_dword v12, off, {WS}, s26 sc1')
        if not cfg.get('nofl'):
            e(f's_mov_b32 m0, {L_MISC+256}'); e('v_lshrrev_b32 v13, 2, v0')
            e(f'buffer_load_dword v13, {WS}, s24 offen sc1 lds')
    score(3, Q1, X[3], [f'v_mov_b32 v{Pb+5}, 0', f'v_mov_b32 v{Pb+6}, 0'])
    e('s_mov_b32 s23, 0')
    T(3)
    e.label(f'SX_{tag}')
    E = X[3]; Ls = X[3]
    for k in (4, 5, 6, 7): e(f'v_exp_f32 v{E+k}, v{S0+k}')
    e(f'v_exp_f32 v{Q1}, v{Sm}'); e(f'v_exp_f32 v{Q1+1}, v{Sm+1}')
    for k in (0, 1, 2, 3): e(f'v_exp_f32 v{E+k}, v{S0+k}')
    for k in (2, 3, 0, 1): e(f'v_cvt_pk_bf16_f32 v{Pb+k}, v{E+2*k}, v{E+2*k+1}')
    e(f'v_cvt_pk_bf16_f32 v{Pb+4}, v{Q1}, v{Q1+1}'); e(f'v_cvt_pk_bf16_f32 v{Pb+7}, v{Q1}, v{Q1+1}')
    e(f'{mf} {R(Ls,4)}, {R(ones,4)}, {R(Pb,4)}, 0')
    e(f'{mf} {R(Q1,4)}, {R(X[2],4)}, {R(Pb,4)}, 0')
    e(f'{mf} {R(Q1+4,4)}, {R(X[2]+4,4)}, {R(Pb,4)}, 0')
    e(f'{m16} {R(Ls,4)}, {R(ones,2)}, {R(Pb+4,2)}, {R(Ls,4)}')
    e(f'{m16} {R(Q1,4)}, v[14:15], {R(Pb+4,2)}, {R(Q1,4)}')
    zero(e, X[3]+4, 4)
    e(f'{m16} {R(Q1+4,4)}, v[14:15], {R(Pb+6,2)}, {R(Q1+4,4)}')
    e(f'v_subrev_u32 v{Ls+1}, s32, v{Ls}'); e(f'v_rcp_f32 v{Ls+2}, v{Ls}')
    e(f'v_cmp_le_u32 vcc, s33, v{Ls+1}')
    e(f'v_mov_b32 v{Ls+3}, v{Ls+2}')
    e(f's_cbranch_vccnz FB_{tag}')
    e.label(f'SO_{tag}')
    for k in range(4): e(f'v_pk_mul_f32 {R(Q1+2*k,2)}, {R(Q1+2*k,2)}, {R(Ls+2,2)}')
    for k in range(4): e(f'v_cvt_pk_bf16_f32 v{Q1+k}, v{Q1+k}, v{Q1+4+k}')
    e(f'ds_write_b128 v11, {R(Q1,4)}')
    if cfg.get('k4') == 2: kx_dma(e, w, 's34')
    zero(e, X[3], 4); zero(e, Q0, 8); zero(e, X[2], 8)
    e.barrier()
    T(4)
    e(f'ds_read_b128 v[40:43], v0 offset:{L_O}'); e(f'ds_read_b128 v[44:47], v0 offset:{L_O+1024}')
    e('s_cmp_eq_u32 s10, 63'); e(f's_cbranch_scc1 CE_{tag}')
    if cfg.get('k4') == 1: kx_dma(e, w, 's34')
    zero(e, Q1, 8)
    if not cfg.get('samekv'): e(f's_add_u32 s17, s17, {32*BLK}')
    pre = {sl: p for (p, ty, sl, ia) in qu if ia is None}
    if cfg.get('oo', 1):
        tacc = {0: X[3], 1: X[3]+4, 2: Q0, 3: Q0+4, 4: X[2], 5: X[2]+4, 6: Q1, 7: Q1+4, 8: VA, 9: VA+4}
        pk = (12, X[0])
        ad = lambda k, r: f'v_add_f32 v{tacc[k]+r}, v{tacc[k]+r}, v{tacc[k]+r+2}'
        cv = lambda k, r: f'v_cvt_pk_bf16_f32 v{pk[r]+k}, v{tacc[2*k]+r}, v{tacc[2*k+1]+r}'
        ex = {10: [cv(0,0)], 11: [cv(0,1)], 12: [cv(1,0)], 13: [cv(1,1)], 14: [f'v_bfi_b32 v{pk[0]}, 1, s39, v{pk[0]}'], 15: [f'v_bfi_b32 v{pk[1]}, 1, s39, v{pk[1]}'],
              16: [cv(2,0)], 17: [cv(2,1)], 18: [cv(3,0), f'buffer_store_dwordx4 {R(pk[0],4)}, v2, {WS}, s12 offen {st}'],
              19: [cv(3,1), f'buffer_store_dwordx4 {R(pk[1],4)}, v2, {WS}, s12 offen offset:1280 {st}']}
        for i, f in enumerate(o):
            e(f'{sm} {R(tacc[f[1]],4)}, {R(40+4*f[2],4)}, {bop(loc,f,ou,i)}, v1')
            if i < 4: zero(e, VA+2*i, 2)
            else: e(ad((i-4)//2, i & 1))
            for (p, ty, sl, ia) in ou:
                if ia == i: load_frag(e, loc, o[p], sl)
            for x in ex.get(i, []): e(x)
        e(ad(8, 0)); e(ad(8, 1))
        for r in range(2):
            e(ad(9, r)); e(f'v_cvt_pk_bf16_f32 v{X[1]+r}, v{tacc[8]+r}, v{tacc[9]+r}'); e(f'v_bfi_b32 v{X[1]+r}, 1, s39, v{X[1]+r}')
            e(f'buffer_store_dword v{X[1]+r}, v3, {WS}, s12 offen offset:{1280*r} {st}')
    else:
        tacc = {8: X[3], 9: X[3]+4, 0: Q0, 1: Q0+4, 2: X[2], 3: X[2]+4, 4: Q1, 5: Q1+4, 6: VA, 7: VA+4}
        tl = (8,9,0,1,2,3,4,5,6,7)
        pre = {sl: p for (p, ty, sl, ia) in qu if ia is None}
        def add(k, r): e(f'v_add_f32 v{tacc[tl[k]]+r}, v{tacc[tl[k]]+r}, v{tacc[tl[k]]+r+2}')
        def cv(k, r): e(f'v_cvt_pk_bf16_f32 v{40+4*r+k}, v{tacc[2*k]+r}, v{tacc[2*k+1]+r}')
        for i, f in enumerate(o):
            e(f'{sm} {R(tacc[f[1]],4)}, {R(40+4*f[2],4)}, {bop(loc,f,ou,i)}, v1')
            if i < 4: zero(e, VA+2*i, 2)
            else: add((i-4)//2, i & 1)
            for (p, ty, sl, ia) in ou:
                if ia == i: load_frag(e, loc, o[p], sl)
            if i in (7, 8) and cfg.get('pp', 'ccbd')[i-7] == 'o': load_frag(e, loc, qk[pre[i-7]], i-7)
            if i in (9, 10):
                r = i-9
                e(f'v_cvt_pk_bf16_f32 v{12+r}, v{tacc[8]+r}, v{tacc[9]+r}')
                e(f'v_bfi_b32 v{12+r}, 1, s39, v{12+r}')
                e(f'buffer_store_dword v{12+r}, v3, {WS}, s12 offen offset:{1280*r} {st}')
        add(8, 0); add(8, 1)
        for k in range(3): cv(k, 0)
        for k in range(3): cv(k, 1)
        e('v_bfi_b32 v40, 1, s39, v40'); e('v_bfi_b32 v44, 1, s39, v44')
        add(9, 0); cv(3, 0)
        e(f'buffer_store_dwordx4 v[40:43], v2, {WS}, s12 offen {st}')
        add(9, 1); cv(3, 1)
        e(f'buffer_store_dwordx4 v[44:47], v2, {WS}, s12 offen offset:1280 {st}')
    T(5)
    pp = cfg.get('pp', 'ccbd')
    def pl(ch):
        for k in range(4):
            if pp[k] == ch: load_frag(e, loc, qk[pre[k]], k)
    pl('a')
    e('s_xor_b32 s16, s15, 0x4000')
    e('s_add_u32 s10, s10, 1'); e('s_add_u32 s11, s11, 1'); e(f's_add_u32 s27, s27, {32*BLK}')
    def spin(lp): e('s_sub_u32 s20, s20, 1'); e('s_cmp_gt_i32 s20, 0'); e(f's_cbranch_scc1 {lp}')
    def idle():
        if cfg.get('ai', 0): e.wait(vm=0)
        if cfg.get('d1'): e(f's_sleep {cfg["d1"]}')
        pl('c'); pl('e')
    if w < 3:
        sk = f'P1S_{tag}'
        if w == 2:
            e('s_cmp_lt_u32 s8, 16'); e(f's_cbranch_scc1 P1G_{tag}')
            s0 = e.save(); idle(); sv = e.save(); e(f's_branch {sk}'); e.label(f'P1G_{tag}'); e.restore(s0)
        e(f'ds_read_b128 v[12:15], v0 offset:{L_SEL}')
        zero(e, VA+6, 2, -1)
        e('v_and_b32 v40, 0x60, v0'); e('v_lshl_add_u32 v40, v40, 3, s38'); e('v_and_b32 v41, 0x10, v0'); e('v_lshl_add_u32 v40, v41, 1, v40')
        e('v_lshrrev_b32 v41, 5, v0'); e('v_and_b32 v41, 8, v41'); e('v_add_u32 v40, v40, v41')
        e('v_and_b32 v41, 0x280, v0'); e(f'v_mov_b32 v42, {OOB}'); e('v_cmp_ne_u32 vcc, 0, v41'); e('v_cndmask_b32 v40, v40, v42, vcc')
        if cfg.get('a1', 1): e.wait(vm=0)
        if cfg.get('d1'): e(f's_sleep {cfg["d1"]}')
        e.wait(lgkm=0)
        lp = f'P1_{tag}'; dn = f'P1D_{tag}'
        def poll1(first):
            for i, r in enumerate((12, 13, 14, 59)): e(f'buffer_load_dwordx4 {R(Q0+4*i,4)}, v4, {WS}, s{r} offen sc1')
            cp = cfg.get('cp', -1)
            if first and cp < 0: pl('c')
            for i in range(4):
                e(f'{mf} {R(VA,4)}, v[12:15], {R(Q0+4*i,4)}, {R(VA,4) if i else 0}')
                if first and cp == i: pl('c')
                b = Q0+4*i
                A, Z = VA+4, VA+5
                e(f'v_xor_b32 v{A}, s39, v{b}' if i == 0 else f'v_bitop3_b32 v{A}, v{A}, v{b}, s39 bitop3:0xf6')
                for k in (1, 2, 3):
                    e(f'v_xor_b32 v{Z}, v{b+k}, v{b}' if i+k == 1 else f'v_bitop3_b32 v{Z}, v{Z}, v{b+k}, v{b} bitop3:0xf6')
            e(f'v_and_or_b32 v{A}, v{Z}, s36, v{A}'); e(f'v_and_b32 v{A}, 1, v{A}')
            e(f'v_cmp_ne_u32 vcc, 0, v{A}')
            e(f's_cbranch_vccz {dn}')
        if 'c' in pp: poll1(True); s1 = e.save()
        e.label(lp)
        poll1(False)
        spin(lp)
        e.n -= 3
        e.label(dn)
        if 'c' in pp: e.restore(s1)
        T(6)
        dp = 'row_mask:0xf bank_mask:0xf bound_ctrl:1'
        for k in range(4): e(f'v_add_f32_dpp v{Q0+k}, v{VA+k}, v{VA+k} row_shl:8 {dp}')
        e(f'v_cvt_pk_bf16_f32 v{VA+4}, v{Q0}, v{Q0+1}'); e(f'v_cvt_pk_bf16_f32 v{VA+5}, v{Q0+2}, v{Q0+3}')
        e(f'buffer_store_dwordx2 {R(VA+4,2)}, v40, {WS}, s15 offen {st}')
        e(f'buffer_store_dwordx2 {R(VA+6,2)}, v40, {WS}, s16 offen {st}')
        pl('e')
        if w == 2:
            e.label(sk); e.restore(sv)
    else:
        idle()
        T(6)
        e.wait(vm=2*(pp.count('a')+pp.count('c')+pp.count('e')))
        e(f'v_mov_b32 v14, {L_MISC+256}'); e('ds_read_b64 v[14:15], v14')
        e('v_min_u32 v14, v14, v15'); e('v_readfirstlane_b32 s22, v14'); e('s_max_u32 s25, s25, s22')
    e('s_barrier')
    T(7)
    pl('b')
    zero(e, Q0+2, 22)
    e('s_xor_b32 s39, s39, 1'); e(f's_add_u32 s22, s15, {own[0]*1024}')
    if cfg.get('d2'): e(f's_sleep {cfg["d2"]}')
    e.wait(lgkm=0)
    lp = f'P2_{tag}'; dn = f'P2D_{tag}'
    def poll2(first):
        for i, c in enumerate(own):
            e(f'buffer_load_dwordx4 {R(ABUF[i],4)}, v0, {WS}, s22 offen offset:{i*1024} sc1')
        if first:
            if cfg.get('dp', 1): e.wait(vm=nown-1 if cfg.get('dp', 1) == 1 else 0)
            pl('d')
        check(e, [ABUF[i]+k for i in range(nown) for k in range(4)], Q0, Q0+1)
        zero(e, Q0, 2)
        e(f's_cbranch_vccz {dn}')
    if 'd' in pp: poll2(True); s1 = e.save()
    e.label(lp)
    poll2(False)
    spin(lp)
    e.label(dn)
    if 'd' in pp: e.restore(s1)
    e('s_mov_b32 s15, s16')
    if stamp:
        T(8)
        e.raw('    s_waitcnt lgkmcnt(0)')
        if cfg.get('half'):
            e('s_lshr_b32 s22, s10, 4'); e(f's_cmp_lg_u32 s22, {cfg["half"]}'); e(f's_cbranch_scc1 CS_{tag}')
        for i in range(8):
            e(f's_sub_u32 s22, s{42+2*i}, s{40+2*i}')
            if cfg.get('half'): e('s_lshl_b32 s22, s22, 2')
            e(f's_add_u32 s{70+i}, s{70+i}, s22')
    assert e.vq == vq0 and not e.lq, (e.vq, vq0, e.lq)
    e.reset()
    e(f's_branch CS_{tag}')
    e.label(f'FB_{tag}')
    e('s_cmp_lg_u32 s23, 0'); e(f's_cbranch_scc1 SO_{tag}')
    e('s_mov_b32 s23, 1'); e.nop(12)
    sc = [S0+i for i in range(8)] + [Sm, Sm+1]
    mx, tt = Q1, Q1+1
    e(f'v_max3_f32 v{mx}, v{sc[0]}, v{sc[1]}, v{sc[2]}')
    for k in (3, 5, 7): e(f'v_max3_f32 v{mx}, v{mx}, v{sc[k]}, v{sc[k+1]}')
    e(f'v_max_f32 v{mx}, v{mx}, v{sc[9]}')
    allred(e, 'v_max_f32', mx, tt)
    for r in sc: e(f'v_sub_f32 v{r}, v{r}, v{mx}')
    e.wait(lgkm=0)
    e(f's_branch SX_{tag}')
    e.label(f'CE_{tag}')
    e.wait(vm=0, lgkm=0)
    e('s_barrier')
    e('s_add_u32 s11, s11, 1'); e(f's_add_u32 s27, s27, {32*BLK}'); e(f's_add_u32 s17, s17, {32*BLK}')
    if w == 3:
        e(f'v_mov_b32 v12, s11')
        e(f'buffer_store_dword v12, off, {WS}, s26 sc1')
    e(f's_mov_b32 s15, {MEMR + 0x8000}')
    if stamp:
        e('s_memrealtime s[88:89]'); e.wait(lgkm=0); e('s_mov_b32 s87, s88')
    e.wait(vm=0)
    e('s_cmp_lt_u32 s11, 128'); e(f's_cbranch_scc1 CL_{tag}')
```

```python
from em import Em, R
from layout import *
from chain import srd, fbits, allred, zero, WS
import math
mf = 'v_mfma_f32_16x16x32_bf16'; m16 = 'v_mfma_f32_16x16x16_bf16'

def lanes(e):
    e('v_and_b32 v0, 63, v0'); e('v_and_b32 v1, 15, v0'); e('v_lshrrev_b32 v2, 4, v0'); e('v_lshlrev_b32 v0, 4, v0')
    e('s_mov_b32 s22, 0x05040100'); e('s_mov_b32 s23, 0x07060302'); e('s_mov_b32 s20, 300000')

def flagaddr(e, v, nwords):
    e(f'v_lshrrev_b32 v{v}, 2, v0'); e(f'v_min_u32 v{v}, {4*(nwords-1)}, v{v}')

def wait_flag(e, v, soff, need, t):
    lp = e.newlabel('WF'); dn = e.newlabel('WD')
    e.label(lp)
    e(f'buffer_load_dword v{t}, v{v}, {WS}, {soff} offen sc1')
    e(f'v_cmp_gt_u32 vcc, {need}, v{t}')
    e(f's_cbranch_vccz {dn}')
    e('s_sleep 3')
    e('s_sub_u32 s20, s20, 1'); e('s_cmp_gt_i32 s20, 0'); e(f's_cbranch_scc1 {lp}')
    e.label(dn)

TRACE = [0]
def trace(e, val, t):
    if not TRACE[0]: return
    e('s_memrealtime s[92:93]'); e(f's_lshl_b32 s91, {val}, 2'); e('s_add_u32 s91, s91, s90')
    e(f'v_mov_b32 v{t}, s92'); e(f'buffer_store_dword v{t}, off, {WS}, s91')

def set_flag(e, soff, val, t):
    sk = e.newlabel('SF')
    e('s_cmp_lg_u32 s9, 0'); e(f's_cbranch_scc1 {sk}')
    sv = e.save()
    e(f'v_mov_b32 v{t}, {val}'); e(f'buffer_store_dword v{t}, off, {WS}, {soff} sc1')
    trace(e, val, t)
    e.label(sk); e.restore(sv)
    e.vq.append(set())

def load_w(e, nks, rowstride, ksstride, vlo, vhi, vdst=None):
    D = 6; tb = 64 if vdst is None else 16
    def issue(ks):
        for j in range(8):
            e(f's_add_u32 s19, s17, {ks*ksstride + j*rowstride}')
            e(f'buffer_load_dword v{tb+(ks%D)*8+j}, v{vlo if j<4 else vhi}, s[24:27], s19 offen')
    for ks in range(D): issue(ks)
    for ks in range(nks):
        b = tb+(ks % D)*8
        for t in range(2):
            for jj in range(4): e(f'v_perm_b32 v{(56 if vdst is None else vdst+8*ks)+4*t+jj}, v{b+2*jj+1}, v{b+2*jj}, {"s23" if t else "s22"}')
        if vdst is None:
            for k in range(8): e(f'v_accvgpr_write_b32 a{8*ks+k}, v{56+k}')
        if ks+D < nks: issue(ks+D)

def xn_setup(e):
    e('v_lshrrev_b32 v7, 7, v0'); e('v_lshrrev_b32 v8, 4, v0'); e('v_and_b32 v8, 7, v8'); e('v_xor_b32 v8, v8, v7')
    e('s_lshl_b32 s19, s9, 3'); e('v_add_u32 v7, s19, v7'); e('v_mul_u32_u24 v4, 1280, v7'); e('v_lshl_add_u32 v4, v8, 4, v4')
    e('v_and_b32 v7, 7, v1'); e('v_lshrrev_b32 v8, 3, v1'); e('v_lshlrev_b32 v8, 10, v8'); e('v_lshl_add_u32 v8, v7, 7, v8')
    e('v_xor_b32 v7, v2, v7'); e('v_lshl_add_u32 v5, v7, 4, v8'); e('v_xor_b32 v6, 64, v5')

DF = ['sc1']
OPT = {}
def set_rot(e, lin, idx):
    if lin: e(f's_mul_i32 s35, {idx}, 3072'); e('s_and_b32 s35, s35, 0x3fff')
    else:
        e(f's_and_b32 s35, {idx}, 31'); e('s_mul_i32 s34, s35, 26'); e('s_lshr_b32 s34, s34, 8'); e('s_mul_i32 s34, s34, 10')
        e('s_sub_u32 s35, s35, s34'); e('s_lshl_b32 s35, s35, 7')

def xn_dma1(e):
    e('s_lshl_b32 s34, s35, 5'); e(f's_add_u32 m0, s11, s34'); e(f's_add_u32 s37, s36, s35')
    e(f'buffer_load_dwordx4 v4, {WS}, s37 offen {DF[0]} lds')
    e('s_add_u32 s35, s35, 128'); e('s_cmp_eq_u32 s35, 1280'); e('s_cselect_b32 s35, 0, s35')

def lin_dma1(e):
    e(f's_add_u32 m0, s11, s35'); e(f's_add_u32 s37, s36, s35')
    e(f'buffer_load_dwordx4 v0, {WS}, s37 offen {DF[0]} lds')
    e('s_add_u32 s35, s35, 1024'); e('s_and_b32 s35, s35, 0x3fff')

SITES = []
def site(e, k):
    if k >= len(SITES): return
    sk = e.newlabel('ST')
    e('s_cmp_eq_u32 s15, 0'); e(f's_cbranch_scc1 {sk}')
    sv = e.save(); SITES[k](); e.label(sk); e.restore(sv)

ACC = 16
MID = [None]
WV = [0]
def MPOS(lin): return OPT.get('ml', 21) if lin else OPT.get('mx', 14)
SPOS = []
def gemm(e, nks, lin, vtype, q=False):
    NB = 6
    def rd(i):
        ks, a = divmod(i, 2)
        if lin: e(f'ds_read_b128 {R(32+4*(i%NB),4)}, v5 offset:{i*1024}')
        elif q: e(f'ds_read_b128 {R(32+4*(i%NB),4)}, v{12+2*a+(ks&1)} offset:{(ks>>1)*4096}')
        else: e(f'ds_read_b128 {R(32+4*(i%NB),4)}, v{5+(ks&1)} offset:{(ks>>1)*4096+a*2048}')
    for i in range(NB): rd(i)
    for i in range(2*nks):
        ks, a = divmod(i, 2)
        x = R(32+4*(i % NB), 4)
        for t in range(2):
            w = R(96+8*ks+4*t, 4) if WV[0] else R(8*ks+4*t, 4, 'a'); d = R(ACC+8*a+4*t, 4)
            A, Bo = (x, w) if vtype else (w, x)
            e(f'{mf} {d}, {A}, {Bo}, {d if ks else 0}')
        if q and a == 0:
            for t in range(2):
                d = R(56+4*t, 4); e(f'{mf} {d}, {R(96+8*ks+4*t,4)}, {x}, {d if ks else 0}')
        if i+NB < 2*nks: rd(i+NB)
        step = 3 if lin else 2
        if SPOS:
            if i in SPOS: site(e, SPOS.index(i))
        elif i % step == 0: site(e, i // step)
        if i == MPOS(lin) and MID[0]: MID[0]()
    if q:
        sk = e.newlabel('SW')
        e.nop(16)
        e('s_bitcmp0_b32 s9, 0'); e(f's_cbranch_scc1 {sk}')
        for k in range(8): e(f'v_swap_b32 v{ACC+k}, v{ACC+8+k}')
        e.label(sk)

def epi_k(e, scale=None):
    for a in range(2):
        if scale:
            for k in range(8): e(f'v_mul_f32 v{ACC+8*a+k}, {scale}, v{ACC+8*a+k}')
        for i in range(4): e(f'v_cvt_pk_bf16_f32 v{32+4*a+i}, v{ACC+8*a+i}, v{ACC+8*a+4+i}')
def epi_v(e):
    for t in range(2):
        for a in range(2):
            for i in range(2): e(f'v_cvt_pk_bf16_f32 v{32+4*t+2*a+i}, v{ACC+8*a+4*t+2*i}, v{ACC+8*a+4*t+2*i+1}')

def gemm_loop(e, name, lin, g0, gstep, body, srcbase, srcstride, nst, nwords, flag_off_fn=None):
    wsh = 14 if lin else 10
    nd = (16 if lin else 10) + 1
    LF = 131072
    flagaddr(e, 3, nwords)
    if lin: e('v_mov_b32 v5, v0')
    else: xn_setup(e)
    e(f's_mov_b32 s10, {g0}')
    set_rot(e, lin, 's31' if lin else 's8')
    e(f's_lshl_b32 s11, s9, {wsh}'); e('s_mov_b32 s15, 0'); e('s_mov_b32 s33, 0'); e(f's_mov_b32 s32, {LF}')
    e('v_lshrrev_b32 v11, 2, v0'); e(f'v_add_u32 v11, {LF}, v11')
    if lin: e('s_add_u32 s14, s14, s11')
    def foff(gs):
        if flag_off_fn: flag_off_fn(gs)
        else: e('s_mov_b32 s21, s12')
    def base(gs):
        e(f's_mul_i32 s36, {gs}, {srcstride}'); e(f's_add_u32 s36, s36, {srcbase}'); e('s_add_u32 s36, s36, s14')
        e(f's_add_u32 s16, {gs}, {gstep}'); foff('s16')
    def fin():
        e('s_mov_b32 m0, s32'); e(f'buffer_load_dword v3, {WS}, s21 offen sc1 lds')
        e('s_xor_b32 s11, s11, 0x10000'); e('s_xor_b32 s32, s32, 256')
    pieces = [(lambda: lin_dma1(e)) if lin else (lambda: xn_dma1(e))]*(nd-1) + [fin]
    def issue(gs):
        base(gs)
        for p in pieces: p()
    e.wait(vm=0, lgkm=0)
    e.label(f'{name}_L')
    e('s_cmp_lg_u32 s15, 0'); e(f's_cbranch_scc1 {name}_H')
    e('s_add_u32 s16, s10, 1'); foff('s10')
    wait_flag(e, 3, 's21', 's16', 9)
    issue('s10')
    e.wait(vm=0)
    e.label(f'{name}_H')
    e.wait(vm=nst); e.reset()
    e('s_barrier')
    e('ds_read_b32 v9, v11')
    e(f's_add_u32 s28, s10, {gstep}'); e('s_add_u32 s16, s28, 1')
    e('v_cmp_gt_u32 vcc, s16, v9')
    e('s_cmp_eq_u64 vcc, 0'); e('s_cselect_b32 s15, 1, 0')
    base('s28')
    SITES[:] = pieces
    def mid():
        sk = e.newlabel('MD'); s2 = e.newlabel('ME')
        e('s_cmp_eq_u32 s33, 0'); e(f's_cbranch_scc1 {sk}')
        sv = e.save()
        e.wait(vm=min(nd, MPOS(lin)//(3 if lin else 2)+1))
        e('s_cmp_lg_u32 s15, 0'); e(f's_cbranch_scc1 {s2}')
        e.wait(vm=0)
        e.label(s2)
        e('s_barrier')
        set_flag(e, 's13', 's33', 9)
        e.label(sk); e.restore(sv)
    MID[0] = mid
    body()
    MID[0] = None; SITES[:] = []
    e('s_add_u32 s33, s10, 1')
    e('s_and_b32 s16, s10, 63'); e('s_cselect_b32 s16, s15, 0')
    e('s_cmp_lg_u32 s16, 0'); e(f's_cbranch_scc1 {name}_N')
    e.wait(vm=0)
    e('s_barrier')
    set_flag(e, 's13', 's33', 9)
    e('s_mov_b32 s33, 0')
    e.label(f'{name}_N')
    e('v_xor_b32 v5, 0x10000, v5'); e('v_xor_b32 v11, 256, v11')
    if not lin: e('v_xor_b32 v6, 0x10000, v6')
    e('s_mov_b32 s10, s28'); e('s_cmp_lt_u32 s10, 128'); e(f's_cbranch_scc1 {name}_L')
    e.wait(vm=0)
    e('s_endpgm')

def par_off(e, base):
    def fo(gs):
        e(f's_and_b32 s21, {gs}, 1'); e('s_lshl_b32 s21, s21, 7'); e(f's_add_u32 s21, s21, {base}')
    return fo

def role_kv(e):
    lanes(e)
    e('s_and_b32 s30, s8, 1'); e('s_lshr_b32 s31, s8, 1')
    e('s_lshl_b32 s19, s30, 3'); e('s_add_u32 s34, s0, s19'); e('s_addc_u32 s35, s1, 0')
    e(f's_load_dwordx2 s[24:25], s[34:35], {B_WK}'); e(f's_mov_b32 s26, {640*8192}'); e('s_mov_b32 s27, 0x20000')
    e('v_lshlrev_b32 v4, 16, v2'); e('v_lshl_add_u32 v4, v1, 2, v4')
    e('s_lshl_b32 s17, s31, 8'); e('s_lshl_b32 s19, s9, 6'); e('s_add_u32 s17, s17, s19')
    load_w(e, 20, 8192, 32*8192, 4, 4)
    srd(e, 24, B_WQ, 640*8192)
    e('s_lshl_b32 s29, s30, 1'); e('s_lshr_b32 s19, s9, 1'); e('s_add_u32 s29, s29, s19')
    e('s_lshl_b32 s17, s31, 8'); e('s_lshl_b32 s19, s29, 6'); e('s_add_u32 s17, s17, s19')
    load_w(e, 20, 8192, 32*8192, 4, 4, 96)
    e('s_and_b32 s19, s9, 1'); e('s_lshl_b32 s38, s19, 11'); e('s_xor_b32 s39, s38, 2048')
    e('s_lshl_b32 s19, s19, 12'); e('s_lshl_b32 s29, s29, 10'); e('s_add_u32 s29, s29, s19'); e(f's_add_u32 s29, s29, {QB}')
    e(f's_mov_b32 s12, {F_XB}'); e('s_lshl_b32 s13, s31, 7'); e('s_lshl_b32 s19, s30, 2'); e('s_add_u32 s13, s13, s19')
    e('s_mov_b32 s14, 0')
    def body():
        e('v_add_u32 v12, s38, v5'); e('v_add_u32 v14, s39, v5'); e('v_add_u32 v13, s38, v6'); e('v_add_u32 v15, s39, v6')
        e('s_lshl_b32 s18, s10, 5'); e('s_add_u32 s18, s18, s31'); e('s_lshl_b32 s17, s18, 13'); e('s_add_u32 s17, s17, s29'); e(f's_mul_i32 s18, s18, {SEG}')
        e('s_cmp_lg_u32 s30, 0'); e('s_cbranch_scc1 KV_V')
        gemm(e, 20, False, False, True); epi_k(e)
        e('s_lshl_b32 s19, s9, 10'); e('s_add_u32 s18, s18, s19'); e(f's_add_u32 s18, s18, {KX}'); e('s_add_u32 s19, s18, 4096')
        e(f'buffer_store_dwordx4 v[32:35], v0, {WS}, s18 offen sc1'); e(f'buffer_store_dwordx4 v[36:39], v0, {WS}, s19 offen sc1')
        e('s_branch KV_E')
        e.label('KV_V'); e.reset()
        gemm(e, 20, False, True, True); epi_v(e)
        e('s_lshl_b32 s19, s9, 11'); e('s_add_u32 s18, s18, s19'); e(f's_add_u32 s18, s18, {VX}')
        e(f'buffer_store_dwordx4 v[32:35], v0, {WS}, s18 offen sc1'); e(f'buffer_store_dwordx4 v[36:39], v0, {WS}, s18 offen offset:1024 sc1')
        e.label('KV_E')
        for i in range(4): e(f'v_cvt_pk_bf16_f32 v{40+i}, v{56+i}, v{60+i}')
        e(f'buffer_store_dwordx4 v[40:43], v0, {WS}, s17 offen sc1')
    gemm_loop(e, 'KV', False, 0, 1, body, XNB, 40960, 3, 4, par_off(e, F_XB))

def aqkv_weights(e, akv):
    e(f'v_mov_b32 v9, {OOB}')
    if akv:
        e('s_and_b32 s19, s9, 1'); e('s_lshl_b32 s19, s19, 3'); e('s_add_u32 s34, s0, s19'); e('s_addc_u32 s35, s1, 0')
        e(f's_load_dwordx2 s[24:25], s[34:35], {A_WK}'); e(f's_mov_b32 s26, {640*40}'); e('s_mov_b32 s27, 0x20000')
        rs = 40; e('s_mov_b32 s17, 0')
    else:
        srd(e, 24, A_WQ, 640*1280); rs = 1280
        e('s_lshl_b32 s17, s8, 2'); e('s_add_u32 s17, s17, s9'); e('s_mul_i32 s17, s17, 40')
    e(f'v_mul_u32_u24 v4, {8*rs}, v2'); e('v_lshl_add_u32 v4, v1, 2, v4')
    e('v_cmp_le_u32 vcc, 10, v1'); e('v_cndmask_b32 v4, v4, v9, vcc')
    load_w(e, 20, rs, 32*rs, 4, 4)

def akv_body(e, tag, sc):
    e('s_lshl_b32 s18, s10, 12'); e(f's_add_u32 s18, s18, {KA}')
    e('s_cmp_lt_u32 s9, 2'); e(f's_cbranch_scc1 {tag}_W')
    for k in range(len(SITES)):
        site(e, k)
        if k == min(len(SITES)-1, MPOS(False)//2): MID[0]()
    e(f's_branch {tag}_E'); e.label(f'{tag}_W')
    e('s_cmp_eq_u32 s9, 1'); e(f's_cbranch_scc1 {tag}_V')
    gemm(e, 20, False, False); epi_k(e)
    e(f's_branch {tag}_S')
    e.label(f'{tag}_V'); e.reset()
    gemm(e, 20, False, True); epi_v(e)
    e('v_mov_b32 v40, 0x3f803f80'); e('v_cmp_eq_u32 vcc, 10, v1')
    for k in range(4): e(f'v_cndmask_b32 v{32+k}, v{32+k}, v40, vcc')
    e('s_add_u32 s18, s18, 2048')
    e.label(f'{tag}_S')
    e(f'buffer_store_dwordx4 v[32:35], v0, {WS}, s18 offen {sc}'); e(f'buffer_store_dwordx4 v[36:39], v0, {WS}, s18 offen offset:1024 {sc}')
    e.label(f'{tag}_E')

def role_aq(e):
    lanes(e); aqkv_weights(e, False)
    e(f's_mov_b32 s12, {F_XA}'); e('s_lshl_b32 s13, s8, 2'); e(f's_add_u32 s13, s13, {F_AQ}'); e('s_mov_b32 s14, 0')
    e(f's_mov_b32 s29, {fbits(20**-0.5*math.log2(math.e))}')
    e('s_lshl_b32 s31, s8, 2'); e('s_add_u32 s31, s31, s9')
    def body():
        e('s_lshl_b32 s18, s10, 5'); e('s_add_u32 s18, s18, s31'); e('s_lshl_b32 s18, s18, 11'); e(f's_add_u32 s18, s18, {QA}')
        gemm(e, 20, False, False); epi_k(e, 's29')
        e(f'buffer_store_dwordx4 v[32:35], v0, {WS}, s18 offen sc1'); e(f'buffer_store_dwordx4 v[36:39], v0, {WS}, s18 offen offset:1024 sc1')
    gemm_loop(e, 'AQ', False, 0, 1, body, XNA, 40960, 2, 8, par_off(e, F_XA))

def role_akv(e):
    lanes(e); aqkv_weights(e, True)
    e(f's_mov_b32 s12, {F_XA}'); e(f's_mov_b32 s13, {F_AKV}'); e('s_mov_b32 s14, 0')
    gemm_loop(e, 'AK', False, 64, 1, lambda: akv_body(e, 'AKB', 'sc1'), XNA, 40960, 0, 8, par_off(e, F_XA))

def role_out(e, isA):
    lanes(e)
    if isA:
        srd(e, 24, A_WO, 640*1280); e('s_mov_b32 s30, 0')
        e('s_cmp_ge_u32 s8, 5'); e('s_cselect_b32 s39, 1, 0'); e('s_mul_i32 s19, s39, 5'); e('s_sub_u32 s31, s8, s19')
        e('s_mul_i32 s19, s39, 27'); e('s_add_u32 s8, s8, s19')
    else:
        srd(e, 24, B_WO, 4096*1280)
        e('s_mul_i32 s30, s8, 52'); e('s_lshr_b32 s30, s30, 8'); e('s_mul_i32 s19, s30, 5'); e('s_sub_u32 s31, s8, s19')
    e('v_mul_u32_u24 v4, 10240, v2'); e('v_lshl_add_u32 v4, v1, 2, v4'); e('v_mov_b32 v5, v4')
    if isA:
        e(f'v_mov_b32 v9, {OOB}')
        e('v_cmp_le_u32 vcc, 3, v2'); e('v_cndmask_b32 v4, v4, v9, vcc')
        e('v_cmp_le_u32 vcc, 2, v2'); e('v_cndmask_b32 v5, v5, v9, vcc')
    e(f's_mul_i32 s17, s30, {1024*1280}'); e('s_lshl_b32 s19, s31, 8'); e('s_add_u32 s17, s17, s19'); e('s_lshl_b32 s19, s9, 6'); e('s_add_u32 s17, s17, s19')
    load_w(e, 32, 1280, (20 if isA else 32)*1280, 4, 5)
    e('v_mul_u32_u24 v10, 2560, v1'); e('v_lshl_add_u32 v10, v2, 4, v10')
    e('s_lshl_b32 s29, s31, 9'); e('s_lshl_b32 s19, s9, 7'); e('s_add_u32 s29, s29, s19')
    e('s_mul_i32 s19, s30, 81920'); e('s_add_u32 s29, s29, s19'); e(f's_add_u32 s29, s29, {PA if isA else PB}')
    e('s_lshl_b32 s13, s8, 2'); e(f's_add_u32 s13, s13, {F_AO if isA else F_BO}')
    e('s_lshl_b32 s14, s30, 16')
    e('s_lshl_b32 s12, s30, 5'); e(f's_add_u32 s12, s12, {F_BA}')
    def body():
        gemm(e, 32, True, False)
        e(f's_mul_i32 s18, s10, {81920 if isA else 4*81920}'); e('s_add_u32 s18, s18, s29'); e(f's_add_u32 s19, s18, {16*2560}')
        for a in range(2):
            for i in range(4):
                for t in range(2): e(f'v_mov_b32 v{32+8*a+2*i+t}, v{ACC+8*a+4*t+i}')
            for hh in range(2):
                if not OPT.get('nost') or (a+hh == 0): e(f'buffer_store_dwordx4 {R(32+8*a+4*hh,4)}, v10, {WS}, s{18+a} offen offset:{64*hh} sc1')
    gemm_loop(e, 'AO' if isA else 'BO', True, 's39' if isA else 0, 2 if isA else 1, body, OA if isA else OB, 65536 if isA else 262144, 1 if OPT.get('nost') else 4,
              32 if isA else 8, par_off(e, F_AT) if isA else None)

def wave_sum(e, x, t):
    dp = 'row_mask:0xf bank_mask:0xf'
    for sh in (8, 4, 2, 1): e(f'v_add_f32_dpp v{x}, v{x}, v{x} row_ror:{sh} {dp}')
    allred(e, 'v_add_f32', x, t)

def ln_token(e, xb):
    s, t = xb+15, xb+16
    e(f'v_add_f32 v{s}, v{xb}, v{xb+1}')
    for k in range(2, 10): e(f'v_add_f32 v{s}, v{s}, v{xb+k}')
    wave_sum(e, s, t)
    e(f'v_mul_f32 v{s}, {fbits(1/640)}, v{s}')
    for k in range(10): e(f'v_sub_f32 v{xb+k}, v{xb+k}, v{s}')
    e(f'v_mul_f32 v{s}, v{xb}, v{xb}')
    for k in range(1, 10): e(f'v_fmac_f32 v{s}, v{xb+k}, v{xb+k}')
    wave_sum(e, s, t)
    e(f'v_mov_b32 v{t}, {fbits(1e-5)}'); e(f'v_fmac_f32 v{t}, {fbits(1/640)}, v{s}')
    e(f'v_rsq_f32 v{t}, v{t}')
    for k in range(10): e(f'v_mul_f32 v{xb+k}, v{xb+k}, v{t}')
    for k in range(5): e(f'v_cvt_pk_bf16_f32 v{xb+10+k}, v{xb+2*k}, v{xb+2*k+1}')

def unpack(e, d, s):
    e(f'v_and_b32 v{d+1}, 0xffff0000, v{s}'); e(f'v_lshlrev_b32 v{d}, 16, v{s}')

def role_red(e, isA):
    lanes(e); nm = 'RA' if isA else 'RB'; NP = 1 if isA else 4; NT = 2 if isA else 1
    flagaddr(e, 3, 5 if isA else 20)
    e('v_lshrrev_b32 v4, 1, v0')
    e('v_lshrrev_b32 v6, 1, v1'); e('v_and_b32 v6, 3, v6'); e('v_lshlrev_b32 v5, 4, v6')
    e('v_lshrrev_b32 v6, 3, v1'); e('v_lshl_add_u32 v5, v6, 3, v5'); e('v_and_b32 v6, 1, v1'); e('v_lshl_add_u32 v5, v6, 2, v5')
    e('v_lshl_add_u32 v5, v2, 6, v5')
    e('s_lshr_b32 s30, s8, 1'); e('s_and_b32 s10, s8, 1')
    e('s_lshl_b32 s31, s30, 2'); e('s_add_u32 s31, s31, s9')
    if isA: e('s_lshl_b32 s31, s31, 1')
    srd(e, 24, A_X if isA else D_OUT, 2048*1280)
    e('s_lshl_b32 s13, s30, 2'); e('s_lshl_b32 s19, s10, 7'); e('s_add_u32 s13, s13, s19'); e(f's_add_u32 s13, s13, {F_XB if isA else F_XA}')
    e(f's_mov_b32 s12, {F_AO if isA else F_BO}')
    if isA: e('s_add_u32 s12, s12, s19')
    e.wait(lgkm=0)
    XO, XP, XF, PP = 16, 112, 128, 64
    e.label(f'{nm}_L')
    e('s_and_b32 s14, s10, 63'); e('s_lshl_b32 s14, s14, 5'); e('s_add_u32 s14, s14, s31'); e('s_mul_i32 s14, s14, 1280')
    e('s_lshr_b32 s15, s10, 6'); e(f's_mul_i32 s15, s15, {2*2048*1280}'); e('s_add_u32 s15, s15, s14'); e(f's_add_u32 s15, s15, {XR + (0 if isA else 2048*1280)}')
    e('s_add_u32 s16, s10, 1')
    wait_flag(e, 3, 's12', 's16', 9)
    e(f's_mul_i32 s18, s10, {NP*81920}'); e('s_mul_i32 s19, s31, 2560'); e('s_add_u32 s18, s18, s19'); e(f's_add_u32 s18, s18, {PA if isA else PB}')
    for p in range(NP*NT):
        for k in range(5): e(f'buffer_load_dwordx2 {R(PP+10*p+2*k,2)}, v4, {WS}, s18 offen offset:{512*k} sc1')
        if p+1 < NP*NT: e(f's_add_u32 s18, s18, {2560 if isA else 81920}')
    if isA:
        e('s_cmp_ge_u32 s10, 64'); e(f's_cbranch_scc1 {nm}_X')
        sv = e.save()
        for k in range(5*NT): e(f'buffer_load_dword v{XO+k}, v5, s[24:27], s14 offen offset:{256*k}')
        e(f's_branch {nm}_Y'); e.label(f'{nm}_X'); e.restore(sv)
    for k in range(5*NT): e(f'buffer_load_dword v{XO+k}, v5, {WS}, s15 offen offset:{256*k} sc1')
    if isA: e.label(f'{nm}_Y')
    for p in range(1, NP):
        for k in range(10): e(f'v_add_f32 v{PP+k}, v{PP+k}, v{PP+10*p+k}')
    for u in range(NT):
        for k in range(5):
            e(f'v_cvt_pk_bf16_f32 v{XP+5*u+k}, v{PP+10*u+2*k}, v{PP+10*u+2*k+1}')
            unpack(e, PP+10*u+2*k, XP+5*u+k); unpack(e, XF+20*u+2*k, XO+5*u+k)
        for k in range(10): e(f'v_add_f32 v{XF+20*u+k}, v{XF+20*u+k}, v{PP+10*u+k}')
        for k in range(5): e(f'v_cvt_pk_bf16_f32 v{XP+5*u+k}, v{XF+20*u+2*k}, v{XF+20*u+2*k+1}')
    e(f's_add_u32 s15, s15, {2048*1280}')
    if not isA:
        e('s_cmp_lt_u32 s10, 64'); e(f's_cbranch_scc1 {nm}_X')
        for k in range(5): e(f'buffer_store_dword v{XP+k}, v5, s[24:27], s14 offen offset:{256*k}')
        if TRACE[0]: e('s_add_u32 s16, s10, 65'); trace(e, 's16', 9)
        e(f's_branch {nm}_N'); e.label(f'{nm}_X')
    e('s_mul_i32 s18, s10, 40960'); e('s_mul_i32 s19, s31, 1280'); e('s_add_u32 s18, s18, s19'); e(f's_add_u32 s18, s18, {XNB if isA else XNA + 64*40960}')
    for u in range(NT):
        for k in range(5): unpack(e, XF+20*u+2*k, XP+5*u+k)
        ln_token(e, XF+20*u)
        for k in range(5): e(f'buffer_store_dword v{XF+20*u+10+k}, v5, {WS}, s18 offen offset:{1280*u+256*k} sc1')
    for k in range(5*NT): e(f'buffer_store_dword v{XP+k}, v5, {WS}, s15 offen offset:{256*k} sc1')
    e.wait(vm=0); e('s_barrier')
    e(f's_add_u32 s16, s10, {1 if isA else 65}')
    set_flag(e, 's13', 's16', 9)
    if not isA: e.label(f'{nm}_N')
    e('s_add_u32 s10, s10, 2'); e('s_cmp_lt_u32 s10, 128'); e(f's_cbranch_scc1 {nm}_L')
    e.wait(vm=0); e('s_endpgm')

def need_prog(e, sc, soff, need, t, two=False, sl=2):
    lp = e.newlabel('NP'); dn = e.newlabel('ND')
    e(f's_cmp_ge_u32 {sc}, {need}'); e(f's_cbranch_scc1 {dn}')
    sv = e.save()
    e.label(lp)
    if two:
        e(f'buffer_load_dwordx2 {R(t,2)}, off, {WS}, {soff} sc1'); e(f'v_min_u32 v{t}, v{t}, v{t+1}')
    else: e(f'buffer_load_dword v{t}, off, {WS}, {soff} sc1')
    e(f'v_readfirstlane_b32 {sc}, v{t}')
    e(f's_cmp_ge_u32 {sc}, {need}'); e(f's_cbranch_scc1 {dn}')
    e(f's_sleep {sl}')
    e('s_sub_u32 s20, s20, 1'); e('s_cmp_gt_i32 s20, 0'); e(f's_cbranch_scc1 {lp}')
    e.label(dn); e.restore(sv)

def ln0(e):
    srd(e, 28, A_X, 2048*1280)
    e('v_lshrrev_b32 v11, 2, v0')
    e('s_lshl_b32 s14, s8, 5'); e('s_lshl_b32 s19, s9, 3'); e('s_add_u32 s14, s14, s19'); e('s_mul_i32 s14, s14, 1280')
    for tk in range(8):
        e(f's_add_u32 s19, s14, {tk*1280}')
        for k in range(5): e(f'buffer_load_dword v{128+5*tk+k}, v11, s[28:31], s19 offen offset:{256*k}')
    LW = 65536
    e('s_and_b32 s17, s9, 1'); e('s_lshl_b32 s19, s17, 3'); e('s_add_u32 s34, s0, s19'); e('s_addc_u32 s35, s1, 0')
    e(f's_load_dwordx2 s[24:25], s[34:35], {A_WK}'); e(f's_mov_b32 s26, {640*40}'); e('s_mov_b32 s27, 0x20000')
    e('s_lshl_b32 s17, s17, 15'); e(f's_add_u32 s17, s17, {LW}')
    e('s_lshr_b32 s18, s9, 1'); e('s_mul_i32 s18, s18, 13312'); e('v_add_u32 v9, s18, v0'); e('s_add_u32 s18, s18, s17')
    for k in range(13):
        e(f's_add_u32 m0, s18, {1024*k}')
        e('buffer_load_dwordx4 v9, s[24:27], 0 offen lds')
        e('v_add_u32 v9, 1024, v9')
    xn_setup(e)
    e(f's_add_u32 s14, s14, {XNA}')
    e('v_lshrrev_b32 v12, 9, v0'); e('v_lshlrev_b32 v12, 12, v12'); e('s_lshl_b32 s19, s9, 10'); e('v_add_u32 v12, s19, v12')
    e('v_and_b32 v13, 12, v11'); e('v_add_u32 v12, v12, v13'); e('v_and_b32 v13, 0x70, v11')
    for tk in range(8):
        for k in range(5): unpack(e, 32+2*k, 128+5*tk+k)
        ln_token(e, 32)
        e(f's_add_u32 s19, s14, {tk*1280}')
        e(f'v_xor_b32 v14, {tk*16}, v13'); e('v_add_u32 v14, v14, v12')
        for k in range(5):
            e(f'buffer_store_dword v{42+k}, v11, {WS}, s19 offen offset:{256*k} sc1')
            e(f'ds_write_b32 v14, v{42+k} offset:{8192*k + tk*128}')
    zero(e, 16, 4); e(f'v_add_u32 v9, {LW+28672}, v0'); e('ds_write_b128 v9, v[16:19]')
    e.wait(vm=40, lgkm=0); e('s_barrier')
    e('s_cmp_ge_u32 s9, 2'); e('s_cbranch_scc1 K0B_E')
    e('v_mul_u32_u24 v9, 320, v2'); e('v_lshl_add_u32 v9, v1, 2, v9'); e('v_add_u32 v9, s17, v9')
    e(f'v_mov_b32 v10, {LW+28672}'); e('v_cmp_gt_u32 vcc, 10, v1'); e('v_cndmask_b32 v9, v10, v9, vcc')
    e('v_mov_b32 v10, 1280'); e('v_cndmask_b32 v10, 0, v10, vcc')
    def wr(ks):
        for j in range(0, 8, 2): e(f'ds_read2_b32 {R(16+(ks%3)*8+j,2)}, v9 offset0:{10*j} offset1:{10*j+10}')
        e('v_add_u32 v9, v10, v9')
    for ks in range(3): wr(ks)
    for ks in range(20):
        bb = 16+(ks % 3)*8
        for t in range(2):
            for jj in range(4): e(f'v_perm_b32 v{96+8*ks+4*t+jj}, v{bb+2*jj+1}, v{bb+2*jj}, {"s23" if t else "s22"}')
        if ks+3 < 20: wr(ks+3)
    e('s_mov_b32 s10, s8')
    WV[0] = 1; akv_body(e, 'K0B', 'sc1'); WV[0] = 0
    e.wait(vm=0, lgkm=0); e('s_barrier')
    e('s_cmp_lg_u32 s9, 0'); e('s_cbranch_scc1 L0_E')
    e('v_mov_b32 v9, 1'); e(f's_mov_b32 s19, {F_AKV+128}'); e('s_mov_b64 exec, 1')
    e(f'buffer_atomic_add v9, off, {WS}, s19 sc0 sc1')
    e.wait(vm=0)
    e('s_mov_b64 exec, -1'); e('v_readfirstlane_b32 s16, v9')
    e('s_cmp_lg_u32 s16, 63'); e('s_cbranch_scc1 L0_E')
    e('v_mov_b32 v9, 64'); e(f's_mov_b32 s19, {F_XA}'); e(f's_mov_b32 s18, {F_AKV}')
    e(f'buffer_store_dword v9, v11, {WS}, s19 offen sc1'); e(f'buffer_store_dword v9, off, {WS}, s18 sc1')
    e.wait(vm=0)
    e.label('L0_E'); e.reset()

def role_att(e):
    lanes(e); ln0(e)
    e('s_lshr_b32 s31, s8, 1'); e('s_and_b32 s30, s8, 1')
    e('s_lshr_b32 s12, s31, 2'); e('s_lshl_b32 s12, s12, 2'); e(f's_add_u32 s12, s12, {F_AQ}')
    e('s_lshl_b32 s13, s30, 7'); e('s_lshl_b32 s19, s31, 2'); e('s_add_u32 s13, s13, s19'); e(f's_add_u32 s13, s13, {F_AT}')
    e(f's_mov_b32 s14, {F_AKV}'); e('s_mov_b32 s25, 0'); e('s_mov_b32 s26, 0')
    e('s_lshl_b32 s19, s9, 12'); e('v_add_u32 v4, s19, v0')
    e('v_lshlrev_b32 v5, 12, v2'); e('v_lshl_add_u32 v5, v1, 4, v5')
    e('s_lshl_b32 s19, s9, 11'); e('v_add_u32 v6, s19, v0')
    e('s_lshl_b32 s19, s9, 7'); e('v_lshlrev_b32 v7, 3, v1'); e('v_add_u32 v7, s19, v7')
    e('v_lshlrev_b32 v8, 7, v2'); e('v_lshl_add_u32 v8, v1, 3, v8')
    e(f's_mov_b32 s28, {fbits(2.0**-80)}'); e(f's_mov_b32 s29, {fbits(2.0**80)}')
    zero(e, 24, 8)
    e('s_mov_b32 s24, 0'); e('s_lshl_b32 s40, s31, 7'); e(f's_add_u32 s40, s40, {F_CH}')
    e('s_mov_b32 s11, 0')
    e.label('AT_LAY')
    e('s_lshl_b32 s17, s8, 2'); e('s_cmp_eq_u32 s11, 0'); e('s_cselect_b32 s17, s17, 0'); e('s_add_u32 s17, s17, s9')
    def kblk(i, sn, sa):
        e('s_and_b32 s17, s17, 63'); e(f's_add_u32 {sn}, s11, s17'); e(f's_lshl_b32 {sa}, {sn}, 12'); e(f's_add_u32 {sa}, {sa}, {KA}'); e(f's_add_u32 {sn}, {sn}, 1')
        need_prog(e, 's25', 's14', sn, 9)
        for k in range(4): e(f'buffer_load_dwordx4 {R(16*i+4*k,4,"a")}, v0, {WS}, {sa} offen offset:{1024*k} sc1')
        e('s_add_u32 s17, s17, 4')
    for i in range(15):
        kblk(i, 's16', 's18')
        if i == 7: e.wait(vm=0)
    e('s_mov_b32 s27, 1'); e('s_cmp_lg_u32 s11, 0'); e('s_cbranch_scc1 AT_D')
    kblk(15, 's16', 's18'); e('s_mov_b32 s27, 0')
    e.label('AT_D')
    e('s_add_u32 s10, s11, s30')
    e.label('AT_U')
    if OPT.get('ahead', 0):
        e(f's_max_u32 s16, s10, {OPT["ahead"]}'); e(f's_sub_u32 s16, s16, {OPT["ahead"]}')
        need_prog(e, 's24', 's40', 's16', 9, sl=8)
    e('s_add_u32 s16, s10, 1')
    need_prog(e, 's26', 's12', 's16', 9)
    e('s_lshl_b32 s18, s10, 5'); e('s_add_u32 s18, s18, s31'); e('s_lshl_b32 s18, s18, 11'); e(f's_add_u32 s19, s18, {QA}')
    e(f'buffer_load_dwordx4 v[16:19], v0, {WS}, s19 offen sc1'); e(f'buffer_load_dwordx4 v[20:23], v0, {WS}, s19 offen offset:1024 sc1')
    e('s_mov_b32 s15, 0')
    e.wait(vm=0)
    e.label('AT_M')
    def sco(i, kt, a, c=None):
        return f'{mf} {R(32+16*(i&1)+8*a+4*kt,4)}, {R(16*i+4*kt,4,"a")}, {R(16+4*a,4)}, {c if c is not None else R(24+4*a,4)}'
    def pv(i, a, t):
        d = R(72+8*a+4*t, 4)
        return f'{mf} {d}, {R(16*i+8+4*t,4,"a")}, {R(64+4*a,4)}, {d if i else 0}'
    for a in range(2):
        for kt in range(2): e(sco(0, kt, a))
    for i in range(16):
        b = 32+16*(i & 1)
        if i == 14:
            e('s_cmp_eq_u32 s27, 0'); e('s_cbranch_scc1 AT_DN')
            sv = e.save(); kblk(15, 's21', 's19'); e('s_mov_b32 s27, 0'); e.wait(vm=0)
            e.label('AT_DN'); e.restore(sv)
        ms = {}
        if i: ms[1] = pv(i-1, 1, 0); ms[3] = pv(i-1, 1, 1)
        if i < 15:
            ms[5] = sco(i+1, 0, 0); ms[7] = sco(i+1, 1, 0); ms[18] = sco(i+1, 0, 1); ms[20] = sco(i+1, 1, 1)
        ms[14] = pv(i, 0, 0); ms[16] = pv(i, 0, 1)
        V = []
        for a in range(2):
            V += [f'v_exp_f32 v{b+8*a+k}, v{b+8*a+k}' for k in range(8)]
            V += [f'v_cvt_pk_bf16_f32 v{64+4*a+k}, v{b+8*a+2*k}, v{b+8*a+2*k+1}' for k in range(4)]
        for k, x in enumerate(V):
            if k in ms: e(ms[k])
            e(x)
    e(pv(15, 1, 0)); e(pv(15, 1, 1))
    for k in range(4): e(f'ds_write_b128 v4, {R(72+4*k,4)} offset:{1024*k}')
    e.barrier()
    e('ds_read_b32 v32, v5 offset:520'); e('ds_read_b32 v33, v5 offset:2568')
    for ww in range(4):
        for t in range(2): e(f'ds_read_b128 {R(40+8*ww+4*t,4)}, v6 offset:{4096*ww+1024*t}')
    allred(e, 'v_add_f32', 32, 34); allred(e, 'v_add_f32', 33, 34)
    e('v_cmp_lt_f32 s[32:33], s28, v32'); e('v_cmp_lt_f32 s[34:35], s28, v33')
    e('v_cmp_gt_f32 s[36:37], s29, v32'); e('v_cmp_gt_f32 s[38:39], s29, v33')
    e('s_nop 1')
    e('s_and_b64 s[32:33], s[32:33], s[34:35]'); e('s_and_b64 s[36:37], s[36:37], s[38:39]'); e('s_and_b64 s[32:33], s[32:33], s[36:37]')
    e('s_cmp_eq_u64 s[32:33], -1'); e('s_cbranch_scc1 AT_OK')
    e('s_cmp_lg_u32 s15, 0'); e('s_cbranch_scc1 AT_OK')
    sv = e.save()
    e.wait(lgkm=0)
    e('s_mov_b32 s15, 1')
    e('v_mov_b32 v10, 0xff800000'); e('v_mov_b32 v11, 0xff800000')
    for i in range(16):
        for a in range(2):
            for kt in range(2): e(sco(i, kt, a, 0))
        b = 32+16*(i & 1)
        for a in range(2):
            for k in range(4): e(f'v_max3_f32 v{10+a}, v{10+a}, v{b+8*a+2*k}, v{b+8*a+2*k+1}')
    allred(e, 'v_max_f32', 10, 12); allred(e, 'v_max_f32', 11, 12)
    e('ds_write_b64 v7, v[10:11] offset:16384')
    e.barrier()
    e('ds_read_b64 v[10:11], v8 offset:16384')
    allred(e, 'v_max_f32', 10, 12); allred(e, 'v_max_f32', 11, 12)
    for a in range(2):
        for k in range(4): e(f'v_sub_f32 v{24+4*a+k}, 0, v{10+a}')
    e('s_nop 1'); e('s_branch AT_M')
    e.label('AT_OK'); e.restore(sv)
    zero(e, 24, 8)
    e('s_cmp_ge_u32 s9, 2'); e('s_cbranch_scc1 AT_F')
    e('s_cmp_eq_u32 s9, 1'); e('s_cselect_b64 vcc, -1, 0'); e('v_cndmask_b32 v32, v32, v33, vcc')
    e('v_rcp_f32 v32, v32')
    for ww in range(1, 4):
        for k in range(8): e(f'v_add_f32 v{40+k}, v{40+k}, v{40+8*ww+k}')
    for k in range(8): e(f'v_mul_f32 v{40+k}, v{40+k}, v32')
    for k in range(4): e(f'v_cvt_pk_bf16_f32 v{36+k}, v{40+k}, v{44+k}')
    e('s_lshl_b32 s19, s9, 10'); e('s_add_u32 s18, s18, s19'); e(f's_add_u32 s18, s18, {OA}')
    e(f'buffer_store_dwordx4 v[36:39], v0, {WS}, s18 offen sc1')
    e.label('AT_F')
    e.wait(vm=0, lgkm=0); e('s_barrier')
    set_flag(e, 's13', 's16', 9)
    e('s_add_u32 s10, s10, 2'); e('s_sub_u32 s19, s10, s11'); e('s_cmp_lt_u32 s19, 64'); e('s_cbranch_scc1 AT_U')
    e('s_add_u32 s11, s11, 64'); e('s_cmp_lt_u32 s11, 128'); e('s_cbranch_scc1 AT_LAY')
    e.wait(vm=0); e('s_endpgm')

def role_batt(e):
    LM = 139264
    lanes(e)
    e('s_lshl_b32 s12, s8, 7'); e(f's_add_u32 s14, s12, {F_CH}'); e(f's_add_u32 s12, s12, {F_KV}')
    e('s_lshl_b32 s13, s8, 2'); e(f's_add_u32 s13, s13, {F_BA}')
    e('s_mov_b32 s25, 0'); e('s_mov_b32 s26, 0')
    e('s_lshr_b32 s30, s9, 1'); e('s_and_b32 s31, s9, 1')
    e('s_lshl_b32 s19, s30, 12'); e('v_add_u32 v8, s19, v0')
    e('v_lshrrev_b32 v10, 2, v1'); e('v_lshlrev_b32 v10, 8, v10'); e('v_lshl_add_u32 v10, v2, 6, v10')
    e('v_and_b32 v11, 1, v1'); e('v_lshl_add_u32 v10, v11, 2, v10'); e(f'v_add_u32 v10, {LM}, v10')
    e('s_lshl_b32 s19, s31, 11'); e(f's_add_u32 s19, s19, {LM+8}'); e('v_add_u32 v11, s19, v0')
    e('v_mov_b32 v12, v0')
    e('s_lshl_b32 s19, s31, 12'); e('v_add_u32 v13, s19, v0')
    e('s_lshl_b32 s19, s30, 4'); e('v_add_u32 v14, s19, v1'); e('v_lshlrev_b32 v15, 2, v2'); e('v_sub_u32 v14, v14, v15')
    for k in range(8): e(f'v_cmp_gt_i32 s[{40+2*k}:{41+2*k}], {16*(k>>2)+(k&3)}, v14')
    e(f's_mov_b32 s21, {fbits(128**-0.5*math.log2(math.e))}')
    e('s_lshl_b32 s11, s9, 10')
    def fetch(gs):
        e(f's_add_u32 s16, {gs}, 1')
        need_prog(e, 's25', 's12', 's16', 14, True)
        e(f's_lshl_b32 s18, {gs}, 5'); e(f's_add_u32 s18, s18, s8'); e('s_lshl_b32 s36, s18, 13'); e(f's_mul_i32 s18, s18, {SEG}')
        e('s_lshl_b32 s19, s9, 10'); e('s_add_u32 s18, s18, s19'); e('s_add_u32 s36, s36, s19')
        for sb, gb, lo in ((36, QB, 32768), (36, QB+4096, 36864), (18, KX, 40960), (18, KX+4096, 45056), (18, VX, 49152), (18, VX+4096, 53248)):
            e(f's_add_u32 m0, s11, {lo}'); e(f's_add_u32 s19, s{sb}, {gb}')
            e(f'buffer_load_dwordx4 v0, {WS}, s19 offen sc1 lds')
        e('s_xor_b32 s11, s11, 0x10000'); e(f'buffer_load_dword v116, off, {WS}, s14 sc1')
    def kvm():
        e(f's_mul_i32 s19, s38, {SEG}'); e('s_lshl_b32 s16, s9, 10'); e('s_add_u32 s19, s19, s16'); e(f's_add_u32 s19, s19, {KVM}')
        e(f's_add_u32 m0, s16, {LM}')
        e(f'buffer_load_dwordx4 v0, {WS}, s19 offen sc1 lds')
    e('s_mov_b32 s10, 0')
    e.label('BA_LAY')
    fetch('s10')
    e.wait(vm=0)
    e.label('BA_L')
    e.wait(vm=2, lgkm=0); e('s_barrier'); e.reset()
    for ks in range(4):
        e(f'ds_read_b128 {R(64+4*ks,4)}, v8 offset:{32768+1024*ks}')
        for b in range(2): e(f'ds_read_b128 {R(80+16*b+4*ks,4)}, v12 offset:{40960+(4*b+ks)*1024}')
    e('v_readfirstlane_b32 s16, v116'); e('s_max_u32 s26, s26, s16')
    e('s_add_u32 s28, s10, 1'); e('s_and_b32 s29, s28, 63')
    e('s_lshl_b32 s38, s10, 5'); e('s_add_u32 s38, s38, s8')
    e('s_cmp_ge_u32 s26, s28'); e('s_cselect_b32 s27, 1, 0'); e('s_cbranch_scc0 BA_P')
    sv = e.save(); kvm()
    e.label('BA_P'); e.restore(sv)
    S = 16
    for ks in range(4):
        for b in range(2): e(f'{mf} {R(S+4*b,4)}, {R(80+16*b+4*ks,4)}, {R(64+4*ks,4)}, {R(S+4*b,4) if ks else 0}')
    for k in range(4): e(f'ds_read_b128 {R(80+4*k,4)}, v13 offset:{49152+1024*k}')
    e('v_mov_b32 v15, 0xff800000')
    for k in range(8): e(f'v_cndmask_b32 v{S+k}, v{S+k}, v15, s[{40+2*k}:{41+2*k}]')
    for k in range(4): e(f'v_mov_b32 v{28+k}, 0x3f803f80')
    e.wait(vm=0, lgkm=0); e('s_barrier')
    set_flag(e, 's13', 's10', 9)
    e('s_cmp_eq_u32 s29, 0'); e('s_cbranch_scc1 BA_Q')
    fetch('s28')
    e.label('BA_Q'); e.reset()
    e('s_cmp_lg_u32 s27, 0'); e('s_cbranch_scc1 BA_J')
    need_prog(e, 's26', 's14', 's28', 14)
    kvm()
    e.wait(vm=0)
    e.label('BA_J'); e.reset()
    e('s_barrier')
    for ks in range(4):
        e(f'v_add_u32 v14, {1024*ks}, v10')
        e(f'ds_read2_b32 {R(96+4*ks,2)}, v14 offset0:0 offset1:4'); e(f'ds_read2_b32 {R(98+4*ks,2)}, v14 offset0:8 offset1:12')
    e('ds_read_b64 v[112:113], v11'); e('ds_read_b64 v[114:115], v11 offset:1024')
    Sm = 24
    for ks in range(4): e(f'{mf} {R(Sm,4)}, {R(96+4*ks,4)}, {R(64+4*ks,4)}, {R(Sm,4) if ks else 0}')
    sc = [S+k for k in range(10)]
    e(f'v_max3_f32 v14, v{sc[0]}, v{sc[1]}, v{sc[2]}')
    for k in (3, 5, 7): e(f'v_max3_f32 v14, v14, v{sc[k]}, v{sc[k+1]}')
    e(f'v_max_f32 v14, v14, v{sc[9]}')
    allred(e, 'v_max_f32', 14, 15)
    e('v_mul_f32 v14, s21, v14')
    for r in sc: e(f'v_fma_f32 v{r}, v{r}, s21, -v14')
    for r in sc: e(f'v_exp_f32 v{r}, v{r}')
    P = 32
    for k in range(5): e(f'v_cvt_pk_bf16_f32 v{P+k}, v{S+2*k}, v{S+2*k+1}')
    e(f'v_mov_b32 v{P+5}, 0'); e(f'v_mov_b32 v{P+6}, 0'); e(f'v_mov_b32 v{P+7}, v{P+4}')
    e(f'{mf} v[16:19], v[28:31], {R(P,4)}, 0')
    for k in range(4): e(f'{mf} {R(40+4*k,4)}, {R(80+4*k,4)}, {R(P,4)}, 0')
    e(f'{m16} v[16:19], v[28:29], {R(P+4,2)}, v[16:19]')
    for k in range(4):
        e(f'{m16} {R(40+4*k,4)}, {R(112+2*(k>>1),2)}, {R(P+4+2*(k&1),2)}, {R(40+4*k,4)}')
    e('v_rcp_f32 v14, v16')
    e('s_lshl_b32 s18, s38, 13'); e('s_lshl_b32 s19, s31, 12'); e('s_add_u32 s18, s18, s19'); e('s_lshl_b32 s19, s30, 10'); e('s_add_u32 s18, s18, s19'); e(f's_add_u32 s18, s18, {OB}')
    for sl in range(2):
        for k in range(8): e(f'v_mul_f32 v{40+8*sl+k}, v{40+8*sl+k}, v14')
        for k in range(4): e(f'v_cvt_pk_bf16_f32 v{56+4*sl+k}, v{40+8*sl+k}, v{44+8*sl+k}')
        e(f'buffer_store_dwordx4 {R(56+4*sl,4)}, v0, {WS}, s18 offen offset:{2048*sl} sc1')
    for r in (8, 12, 13): e(f'v_xor_b32 v{r}, 0x10000, v{r}')
    e('s_mov_b32 s10, s28')
    e('s_cmp_lg_u32 s29, 0'); e('s_cbranch_scc1 BA_L')
    e.wait(vm=0, lgkm=0); e('s_barrier')
    set_flag(e, 's13', 's10', 9)
    e('s_cmp_lt_u32 s10, 128'); e('s_cbranch_scc1 BA_LAY')
    e.wait(vm=0); e('s_endpgm')

def kernel0(e):
    e('s_cmp_ge_u32 s2, 64'); e('s_cbranch_scc1 K0_END')
    e(f's_load_dwordx2 s[4:5], s[0:1], {D_WS}'); e(f's_mov_b32 s6, {WS_BYTES}'); e('s_mov_b32 s7, 0x20000')
    e('v_lshlrev_b32 v10, 4, v0'); e('v_and_b32 v0, 1023, v10')
    zero(e, 12, 4, -1); zero(e, 16, 4, 0)
    e('s_mul_i32 s18, s2, 6144'); e(f's_add_u32 s18, s18, {PART}')
    e(f'buffer_store_dwordx4 v[12:15], v10, {WS}, s18 offen'); e(f'buffer_store_dwordx4 v[12:15], v10, {WS}, s18 offen offset:2048')
    e('s_lshl_b32 s19, s2, 10'); e(f's_add_u32 s19, s19, {MEMR}'); e(f'buffer_store_dwordx4 v[12:15], v0, {WS}, s19 offen')
    e('s_cmp_ge_u32 s2, 3'); e('s_cbranch_scc1 K0_NF')
    e('s_lshl_b32 s19, s2, 12')
    e(f'buffer_store_dwordx4 v[16:19], v10, {WS}, s19 offen')
    e.label('K0_NF')
    e.wait(vm=0)
    e.label('K0_END')
    e('s_endpgm')
```

```python
from em import Em, R
from layout import *
from chain import srd, fbits, allred, zero, WS
import math
mf = 'v_mfma_f32_16x16x32_bf16'; m16 = 'v_mfma_f32_16x16x16_bf16'

def lanes(e):
    e('v_and_b32 v0, 63, v0'); e('v_and_b32 v1, 15, v0'); e('v_lshrrev_b32 v2, 4, v0'); e('v_lshlrev_b32 v0, 4, v0')
    e('s_mov_b32 s22, 0x05040100'); e('s_mov_b32 s23, 0x07060302'); e('s_mov_b32 s20, 300000')

def flagaddr(e, v, nwords):
    e(f'v_lshrrev_b32 v{v}, 2, v0'); e(f'v_min_u32 v{v}, {4*(nwords-1)}, v{v}')

def wait_flag(e, v, soff, need, t):
    lp = e.newlabel('WF'); dn = e.newlabel('WD')
    e.label(lp)
    e(f'buffer_load_dword v{t}, v{v}, {WS}, {soff} offen sc1')
    e(f'v_cmp_gt_u32 vcc, {need}, v{t}')
    e(f's_cbranch_vccz {dn}')
    e(f's_sleep {OPT.get("sw", 3)}')
    e('s_sub_u32 s20, s20, 1'); e('s_cmp_gt_i32 s20, 0'); e(f's_cbranch_scc1 {lp}')
    e.label(dn)

TRACE = [0]
def trace(e, val, t):
    if not TRACE[0]: return
    e('s_memrealtime s[92:93]'); e(f's_lshl_b32 s91, {val}, 2'); e('s_add_u32 s91, s91, s90')
    e(f'v_mov_b32 v{t}, s92'); e(f'buffer_store_dword v{t}, off, {WS}, s91')

def set_flag(e, soff, val, t):
    sk = e.newlabel('SF')
    e('s_cmp_lg_u32 s9, 0'); e(f's_cbranch_scc1 {sk}')
    sv = e.save()
    e(f'v_mov_b32 v{t}, {val}'); e(f'buffer_store_dword v{t}, off, {WS}, {soff} sc1')
    trace(e, val, t)
    e.label(sk); e.restore(sv)
    e.vq.append(set())

def load_w(e, nks, rowstride, ksstride, vlo, vhi, vdst=None):
    D = 6; tb = 64 if vdst is None else 16
    def issue(ks):
        for j in range(8):
            e(f's_add_u32 s19, s17, {ks*ksstride + j*rowstride}')
            e(f'buffer_load_dword v{tb+(ks%D)*8+j}, v{vlo if j<4 else vhi}, s[24:27], s19 offen')
    for ks in range(D): issue(ks)
    for ks in range(nks):
        b = tb+(ks % D)*8
        for t in range(2):
            for jj in range(4): e(f'v_perm_b32 v{(56 if vdst is None else vdst+8*ks)+4*t+jj}, v{b+2*jj+1}, v{b+2*jj}, {"s23" if t else "s22"}')
        if vdst is None:
            for k in range(8): e(f'v_accvgpr_write_b32 a{8*ks+k}, v{56+k}')
        if ks+D < nks: issue(ks+D)

def xn_setup(e):
    e('v_lshrrev_b32 v7, 7, v0'); e('v_lshrrev_b32 v8, 4, v0'); e('v_and_b32 v8, 7, v8'); e('v_xor_b32 v8, v8, v7')
    e('s_lshl_b32 s19, s9, 3'); e('v_add_u32 v7, s19, v7'); e('v_mul_u32_u24 v4, 1280, v7'); e('v_lshl_add_u32 v4, v8, 4, v4')
    e('v_and_b32 v7, 7, v1'); e('v_lshrrev_b32 v8, 3, v1'); e('v_lshlrev_b32 v8, 10, v8'); e('v_lshl_add_u32 v8, v7, 7, v8')
    e('v_xor_b32 v7, v2, v7'); e('v_lshl_add_u32 v5, v7, 4, v8'); e('v_xor_b32 v6, 64, v5')

DF = ['sc1']
OPT = {}
def set_rot(e, lin, idx):
    if lin: e(f's_mul_i32 s35, {idx}, 3072'); e('s_and_b32 s35, s35, 0x1fff')
    else:
        e(f's_and_b32 s35, {idx}, 31'); e('s_mul_i32 s34, s35, 26'); e('s_lshr_b32 s34, s34, 8'); e('s_mul_i32 s34, s34, 10')
        e('s_sub_u32 s35, s35, s34'); e('s_lshl_b32 s35, s35, 7')

def xn_dma1(e):
    e('s_lshl_b32 s34, s35, 5'); e(f's_add_u32 m0, s11, s34'); e(f's_add_u32 s37, s36, s35')
    e(f'buffer_load_dwordx4 v4, {WS}, s37 offen {DF[0]} lds')
    e('s_add_u32 s35, s35, 128'); e('s_cmp_eq_u32 s35, 1280'); e('s_cselect_b32 s35, 0, s35')

def lin_dma1(e, half):
    if half: e('s_or_b32 s34, s35, 0x8000')
    r = 's34' if half else 's35'
    e(f's_add_u32 m0, s11, {r}'); e(f's_add_u32 s37, s36, {r}')
    e(f'buffer_load_dwordx4 v0, {WS}, s37 offen {DF[0]} lds')
    e('s_add_u32 s35, s35, 1024'); e('s_and_b32 s35, s35, 0x1fff')

SITES = []
def site(e, k):
    if k >= len(SITES): return
    sk = e.newlabel('ST')
    e('s_cmp_eq_u32 s15, 0'); e(f's_cbranch_scc1 {sk}')
    sv = e.save(); SITES[k](); e.label(sk); e.restore(sv)

ACC = 16
MID = [None]
WV = [0]
def MPOS(lin): return OPT.get('ml', 24) if lin else OPT.get('mx', 14)
SPOS = []
def gemm(e, nks, lin, vtype, q=False):
    NB = 6
    def rd(i):
        ks, a = divmod(i, 2)
        if lin: e(f'ds_read_b128 {R(32+4*(i%NB),4)}, v5 offset:{i*1024}')
        elif q: e(f'ds_read_b128 {R(32+4*(i%NB),4)}, v{12+2*a+(ks&1)} offset:{(ks>>1)*4096}')
        else: e(f'ds_read_b128 {R(32+4*(i%NB),4)}, v{5+(ks&1)} offset:{(ks>>1)*4096+a*2048}')
    for i in range(NB): rd(i)
    for i in range(2*nks):
        ks, a = divmod(i, 2)
        x = R(32+4*(i % NB), 4)
        for t in range(2):
            w = R(96+8*ks+4*t, 4) if WV[0] else R(8*ks+4*t, 4, 'a'); d = R(ACC+8*a+4*t, 4)
            A, Bo = (x, w) if vtype else (w, x)
            e(f'{mf} {d}, {A}, {Bo}, {d if ks else 0}')
        if q and a == 0:
            for t in range(2):
                d = R(56+4*t, 4); e(f'{mf} {d}, {R(96+8*ks+4*t,4)}, {x}, {d if ks else 0}')
        if i+NB < 2*nks: rd(i+NB)
        step = 3 if lin else 2
        if SPOS:
            if i in SPOS: site(e, SPOS.index(i))
        elif i % step == 0: site(e, i // step)
        if i == MPOS(lin) and MID[0]: MID[0]()
    if q:
        sk = e.newlabel('SW')
        e.nop(16)
        e('s_bitcmp0_b32 s9, 0'); e(f's_cbranch_scc1 {sk}')
        for k in range(8): e(f'v_swap_b32 v{ACC+k}, v{ACC+8+k}')
        e.label(sk)

def epi_k(e, scale=None):
    for a in range(2):
        if scale:
            for k in range(8): e(f'v_mul_f32 v{ACC+8*a+k}, {scale}, v{ACC+8*a+k}')
        for i in range(4): e(f'v_cvt_pk_bf16_f32 v{32+4*a+i}, v{ACC+8*a+i}, v{ACC+8*a+4+i}')
def epi_v(e):
    for t in range(2):
        for a in range(2):
            for i in range(2): e(f'v_cvt_pk_bf16_f32 v{32+4*t+2*a+i}, v{ACC+8*a+4*t+2*i}, v{ACC+8*a+4*t+2*i+1}')

def gemm_loop(e, name, lin, g0, gstep, body, srcbase, srcstride, nst, nwords, flag_off_fn=None):
    wsh = 13 if lin else 10
    nd = (16 if lin else 10) + 1
    LF = 131072
    flagaddr(e, 3, nwords)
    if lin: e('v_mov_b32 v5, v0')
    else: xn_setup(e)
    e(f's_mov_b32 s10, {g0}')
    set_rot(e, lin, 's31' if lin else 's8')
    e(f's_lshl_b32 s11, s9, {wsh}'); e('s_mov_b32 s15, 0'); e('s_mov_b32 s33, 0'); e(f's_mov_b32 s32, {LF}')
    e('v_lshrrev_b32 v11, 2, v0'); e(f'v_add_u32 v11, {LF}, v11')
    if lin: e('s_add_u32 s14, s14, s11')
    def foff(gs):
        if flag_off_fn: flag_off_fn(gs)
        else: e('s_mov_b32 s21, s12')
    def base(gs):
        e(f's_mul_i32 s36, {gs}, {srcstride}'); e(f's_add_u32 s36, s36, {srcbase}'); e('s_add_u32 s36, s36, s14')
        e(f's_add_u32 s16, {gs}, {gstep}'); foff('s16')
    def fin():
        e('s_mov_b32 m0, s32'); e(f'buffer_load_dword v3, {WS}, s21 offen sc1 lds')
        e('s_xor_b32 s11, s11, 0x10000'); e('s_xor_b32 s32, s32, 256')
    pieces = ([lambda: lin_dma1(e, 0)]*8 + [lambda: lin_dma1(e, 1)]*8 if lin else [lambda: xn_dma1(e)]*10) + [fin]
    e('s_mov_b32 s38, 0') if lin else None
    e.wait(vm=0, lgkm=0)
    e.label(f'{name}_L')
    e('s_cmp_lg_u32 s15, 0'); e(f's_cbranch_scc1 {name}_H')
    e('s_add_u32 s16, s10, 1'); foff('s10')
    wait_flag(e, 3, 's21', 's16', 9)
    base('s10')
    if lin:
        for p in pieces[:8]: p()
        e('s_mov_b32 m0, s32'); e(f'buffer_load_dword v3, {WS}, s21 offen sc1 lds')
        for p in pieces[8:16]: p()
        e('s_xor_b32 s11, s11, 0x10000'); e('s_xor_b32 s32, s32, 256'); e('s_mov_b32 s38, 1')
        e.wait(vm=8); e(f's_branch {name}_I')
    else:
        for p in pieces: p()
        e.wait(vm=0)
    e.label(f'{name}_H')
    e.wait(vm=nst)
    e.label(f'{name}_I'); e.reset()
    e('s_barrier')
    e('ds_read_b32 v9, v11')
    e(f's_add_u32 s28, s10, {gstep}'); e('s_add_u32 s16, s28, 1')
    e('v_cmp_gt_u32 vcc, s16, v9')
    e('s_cmp_eq_u64 vcc, 0'); e('s_cselect_b32 s15, 1, 0')
    base('s28')
    SITES[:] = pieces
    def mid():
        sk = e.newlabel('MD'); s2 = e.newlabel('ME')
        if lin: e('s_or_b32 s38, s38, s33'); e(f's_cbranch_scc0 {sk}'); e('s_mov_b32 s38, 0')
        else: e('s_cmp_eq_u32 s33, 0'); e(f's_cbranch_scc1 {sk}')
        sv = e.save()
        e.wait(vm=min(nd, MPOS(lin)//(3 if lin else 2)+1))
        e('s_cmp_lg_u32 s15, 0'); e(f's_cbranch_scc1 {s2}')
        e.wait(vm=0)
        e.label(s2)
        e('s_barrier')
        if lin: e('s_cmp_eq_u32 s33, 0'); e(f's_cbranch_scc1 {sk}')
        set_flag(e, 's13', 's33', 9)
        e.label(sk); e.restore(sv)
    MID[0] = mid
    body()
    MID[0] = None; SITES[:] = []
    e('s_add_u32 s33, s10, 1')
    e('s_and_b32 s16, s10, 63'); e('s_cselect_b32 s16, s15, 0')
    e('s_cmp_lg_u32 s16, 0'); e(f's_cbranch_scc1 {name}_N')
    if name == 'KV' and OPT.get('rs', 1):
        e('s_cmp_eq_u32 s15, 0'); e(f's_cbranch_scc1 {name}_R')
        e('s_xor_b32 m0, s32, 256'); e(f'buffer_load_dword v3, {WS}, s21 offen sc1 lds')
        e.label(f'{name}_R')
    e.wait(vm=0)
    e('s_barrier')
    set_flag(e, 's13', 's33', 9)
    e('s_mov_b32 s33, 0')
    e.label(f'{name}_N')
    e('v_xor_b32 v5, 0x10000, v5'); e('v_xor_b32 v11, 256, v11')
    if not lin: e('v_xor_b32 v6, 0x10000, v6')
    e('s_mov_b32 s10, s28'); e('s_cmp_lt_u32 s10, 128'); e(f's_cbranch_scc1 {name}_L')
    e.wait(vm=0)
    e('s_endpgm')

def par_off(e, base):
    def fo(gs):
        e(f's_and_b32 s21, {gs}, 1'); e('s_lshl_b32 s21, s21, 7'); e(f's_add_u32 s21, s21, {base}')
    return fo

def role_kv(e):
    lanes(e)
    e('s_and_b32 s30, s8, 1'); e('s_lshr_b32 s31, s8, 1')
    e('s_lshl_b32 s19, s30, 3'); e('s_add_u32 s34, s0, s19'); e('s_addc_u32 s35, s1, 0')
    e(f's_load_dwordx2 s[24:25], s[34:35], {B_WK}'); e(f's_mov_b32 s26, {640*8192}'); e('s_mov_b32 s27, 0x20000')
    e('v_lshlrev_b32 v4, 16, v2'); e('v_lshl_add_u32 v4, v1, 2, v4')
    e('s_lshl_b32 s17, s31, 8'); e('s_lshl_b32 s19, s9, 6'); e('s_add_u32 s17, s17, s19')
    load_w(e, 20, 8192, 32*8192, 4, 4)
    srd(e, 24, B_WQ, 640*8192)
    e('s_lshl_b32 s29, s30, 1'); e('s_lshr_b32 s19, s9, 1'); e('s_add_u32 s29, s29, s19')
    e('s_lshl_b32 s17, s31, 8'); e('s_lshl_b32 s19, s29, 6'); e('s_add_u32 s17, s17, s19')
    load_w(e, 20, 8192, 32*8192, 4, 4, 96)
    e('s_and_b32 s19, s9, 1'); e('s_lshl_b32 s38, s19, 11'); e('s_xor_b32 s39, s38, 2048')
    e('s_lshl_b32 s19, s19, 12'); e('s_lshl_b32 s29, s29, 10'); e('s_add_u32 s29, s29, s19'); e(f's_add_u32 s29, s29, {QB}')
    e(f's_mov_b32 s12, {F_XB}'); e('s_lshl_b32 s13, s31, 7'); e('s_lshl_b32 s19, s30, 2'); e('s_add_u32 s13, s13, s19')
    e('s_mov_b32 s14, 0')
    def body():
        e('v_add_u32 v12, s38, v5'); e('v_add_u32 v14, s39, v5'); e('v_add_u32 v13, s38, v6'); e('v_add_u32 v15, s39, v6')
        e('s_lshl_b32 s18, s10, 5'); e('s_add_u32 s18, s18, s31'); e('s_lshl_b32 s17, s18, 13'); e('s_add_u32 s17, s17, s29'); e(f's_mul_i32 s18, s18, {SEG}')
        e('s_cmp_lg_u32 s30, 0'); e('s_cbranch_scc1 KV_V')
        gemm(e, 20, False, False, True); epi_k(e)
        e('s_lshl_b32 s19, s9, 10'); e('s_add_u32 s18, s18, s19'); e(f's_add_u32 s18, s18, {KX}'); e('s_add_u32 s19, s18, 4096')
        e(f'buffer_store_dwordx4 v[32:35], v0, {WS}, s18 offen sc1'); e(f'buffer_store_dwordx4 v[36:39], v0, {WS}, s19 offen sc1')
        e('s_branch KV_E')
        e.label('KV_V'); e.reset()
        gemm(e, 20, False, True, True); epi_v(e)
        e('s_lshl_b32 s19, s9, 11'); e('s_add_u32 s18, s18, s19'); e(f's_add_u32 s18, s18, {VX}')
        e(f'buffer_store_dwordx4 v[32:35], v0, {WS}, s18 offen sc1'); e(f'buffer_store_dwordx4 v[36:39], v0, {WS}, s18 offen offset:1024 sc1')
        e.label('KV_E')
        for i in range(4): e(f'v_cvt_pk_bf16_f32 v{40+i}, v{56+i}, v{60+i}')
        e(f'buffer_store_dwordx4 v[40:43], v0, {WS}, s17 offen sc1')
    gemm_loop(e, 'KV', False, 0, 1, body, XNB, 40960, 3, 4, par_off(e, F_XB))

def aqkv_weights(e, akv):
    e(f'v_mov_b32 v9, {OOB}')
    if akv:
        e('s_and_b32 s19, s9, 1'); e('s_lshl_b32 s19, s19, 3'); e('s_add_u32 s34, s0, s19'); e('s_addc_u32 s35, s1, 0')
        e(f's_load_dwordx2 s[24:25], s[34:35], {A_WK}'); e(f's_mov_b32 s26, {640*40}'); e('s_mov_b32 s27, 0x20000')
        rs = 40; e('s_mov_b32 s17, 0')
    else:
        srd(e, 24, A_WQ, 640*1280); rs = 1280
        e('s_lshl_b32 s17, s8, 2'); e('s_add_u32 s17, s17, s9'); e('s_mul_i32 s17, s17, 40')
    e(f'v_mul_u32_u24 v4, {8*rs}, v2'); e('v_lshl_add_u32 v4, v1, 2, v4')
    e('v_cmp_le_u32 vcc, 10, v1'); e('v_cndmask_b32 v4, v4, v9, vcc')
    load_w(e, 20, rs, 32*rs, 4, 4)

def akv_body(e, tag, sc):
    e('s_lshl_b32 s18, s10, 12'); e(f's_add_u32 s18, s18, {KA}')
    e('s_cmp_lt_u32 s9, 2'); e(f's_cbranch_scc1 {tag}_W')
    for k in range(len(SITES)):
        site(e, k)
        if k == min(len(SITES)-1, MPOS(False)//2): MID[0]()
    e(f's_branch {tag}_E'); e.label(f'{tag}_W')
    e('s_cmp_eq_u32 s9, 1'); e(f's_cbranch_scc1 {tag}_V')
    gemm(e, 20, False, False); epi_k(e)
    e(f's_branch {tag}_S')
    e.label(f'{tag}_V'); e.reset()
    gemm(e, 20, False, True); epi_v(e)
    e('v_mov_b32 v40, 0x3f803f80'); e('v_cmp_eq_u32 vcc, 10, v1')
    for k in range(4): e(f'v_cndmask_b32 v{32+k}, v{32+k}, v40, vcc')
    e('s_add_u32 s18, s18, 2048')
    e.label(f'{tag}_S')
    e(f'buffer_store_dwordx4 v[32:35], v0, {WS}, s18 offen {sc}'); e(f'buffer_store_dwordx4 v[36:39], v0, {WS}, s18 offen offset:1024 {sc}')
    e.label(f'{tag}_E')

def role_aq(e):
    lanes(e); aqkv_weights(e, False)
    e(f's_mov_b32 s12, {F_XA}'); e('s_lshl_b32 s13, s8, 2'); e(f's_add_u32 s13, s13, {F_AQ}'); e('s_mov_b32 s14, 0')
    e(f's_mov_b32 s29, {fbits(20**-0.5*math.log2(math.e))}')
    e('s_lshl_b32 s31, s8, 2'); e('s_add_u32 s31, s31, s9')
    def body():
        e('s_lshl_b32 s18, s10, 5'); e('s_add_u32 s18, s18, s31'); e('s_lshl_b32 s18, s18, 11'); e(f's_add_u32 s18, s18, {QA}')
        gemm(e, 20, False, False); epi_k(e, 's29')
        e(f'buffer_store_dwordx4 v[32:35], v0, {WS}, s18 offen sc1'); e(f'buffer_store_dwordx4 v[36:39], v0, {WS}, s18 offen offset:1024 sc1')
    gemm_loop(e, 'AQ', False, 0, 1, body, XNA, 40960, 2, 8, par_off(e, F_XA))

def role_akv(e):
    lanes(e); aqkv_weights(e, True)
    e(f's_mov_b32 s12, {F_XA}'); e(f's_mov_b32 s13, {F_AKV}'); e('s_mov_b32 s14, 0')
    gemm_loop(e, 'AK', False, 64, 1, lambda: akv_body(e, 'AKB', 'sc1'), XNA, 40960, 0, 8, par_off(e, F_XA))

def role_out(e, isA):
    lanes(e)
    if isA:
        srd(e, 24, A_WO, 640*1280); e('s_mov_b32 s30, 0')
        e('s_cmp_ge_u32 s8, 5'); e('s_cselect_b32 s39, 1, 0'); e('s_mul_i32 s19, s39, 5'); e('s_sub_u32 s31, s8, s19')
        e('s_mul_i32 s19, s39, 27'); e('s_add_u32 s8, s8, s19')
    else:
        srd(e, 24, B_WO, 4096*1280)
        e('s_mul_i32 s30, s8, 52'); e('s_lshr_b32 s30, s30, 8'); e('s_mul_i32 s19, s30, 5'); e('s_sub_u32 s31, s8, s19')
    e('v_mul_u32_u24 v4, 10240, v2'); e('v_lshl_add_u32 v4, v1, 2, v4'); e('v_mov_b32 v5, v4')
    if isA:
        e(f'v_mov_b32 v9, {OOB}')
        e('v_cmp_le_u32 vcc, 3, v2'); e('v_cndmask_b32 v4, v4, v9, vcc')
        e('v_cmp_le_u32 vcc, 2, v2'); e('v_cndmask_b32 v5, v5, v9, vcc')
    e(f's_mul_i32 s17, s30, {1024*1280}'); e('s_lshl_b32 s19, s31, 8'); e('s_add_u32 s17, s17, s19'); e('s_lshl_b32 s19, s9, 6'); e('s_add_u32 s17, s17, s19')
    load_w(e, 32, 1280, (20 if isA else 32)*1280, 4, 5)
    e('v_mul_u32_u24 v10, 2560, v1'); e('v_lshl_add_u32 v10, v2, 4, v10')
    e('s_lshl_b32 s29, s31, 9'); e('s_lshl_b32 s19, s9, 7'); e('s_add_u32 s29, s29, s19')
    e('s_mul_i32 s19, s30, 81920'); e('s_add_u32 s29, s29, s19'); e(f's_add_u32 s29, s29, {PA if isA else PB}')
    e('s_lshl_b32 s13, s8, 2'); e(f's_add_u32 s13, s13, {F_AO if isA else F_BO}')
    e('s_lshl_b32 s14, s30, 16')
    e('s_lshl_b32 s12, s30, 5'); e(f's_add_u32 s12, s12, {F_BA}')
    def body():
        gemm(e, 32, True, False)
        e(f's_mul_i32 s18, s10, {81920 if isA else 4*81920}'); e('s_add_u32 s18, s18, s29'); e(f's_add_u32 s19, s18, {16*2560}')
        for a in range(2):
            for i in range(4):
                for t in range(2): e(f'v_mov_b32 v{32+8*a+2*i+t}, v{ACC+8*a+4*t+i}')
            for hh in range(2):
                if not OPT.get('nost') or (a+hh == 0): e(f'buffer_store_dwordx4 {R(32+8*a+4*hh,4)}, v10, {WS}, s{18+a} offen offset:{64*hh} sc1')
    gemm_loop(e, 'AO' if isA else 'BO', True, 's39' if isA else 0, 2 if isA else 1, body, OA if isA else OB, 65536 if isA else 262144, 1 if OPT.get('nost') else 4,
              32 if isA else 8, par_off(e, F_AT) if isA else None)

def wave_sum(e, x, t):
    dp = 'row_mask:0xf bank_mask:0xf'
    for sh in (8, 4, 2, 1): e(f'v_add_f32_dpp v{x}, v{x}, v{x} row_ror:{sh} {dp}')
    allred(e, 'v_add_f32', x, t)

def ln_token(e, xb):
    s, t = xb+15, xb+16
    e(f'v_add_f32 v{s}, v{xb}, v{xb+1}')
    for k in range(2, 10): e(f'v_add_f32 v{s}, v{s}, v{xb+k}')
    wave_sum(e, s, t)
    e(f'v_mul_f32 v{s}, {fbits(1/640)}, v{s}')
    for k in range(10): e(f'v_sub_f32 v{xb+k}, v{xb+k}, v{s}')
    e(f'v_mul_f32 v{s}, v{xb}, v{xb}')
    for k in range(1, 10): e(f'v_fmac_f32 v{s}, v{xb+k}, v{xb+k}')
    wave_sum(e, s, t)
    e(f'v_mov_b32 v{t}, {fbits(1e-5)}'); e(f'v_fmac_f32 v{t}, {fbits(1/640)}, v{s}')
    e(f'v_rsq_f32 v{t}, v{t}')
    for k in range(10): e(f'v_mul_f32 v{xb+k}, v{xb+k}, v{t}')
    for k in range(5): e(f'v_cvt_pk_bf16_f32 v{xb+10+k}, v{xb+2*k}, v{xb+2*k+1}')

def unpack(e, d, s):
    e(f'v_and_b32 v{d+1}, 0xffff0000, v{s}'); e(f'v_lshlrev_b32 v{d}, 16, v{s}')

def role_red(e, isA):
    lanes(e); nm = 'RA' if isA else 'RB'; NP = 1 if isA else 4; NT = 2 if isA else 1
    flagaddr(e, 3, 5 if isA else 20)
    e('v_lshrrev_b32 v4, 1, v0')
    e('v_lshrrev_b32 v6, 1, v1'); e('v_and_b32 v6, 3, v6'); e('v_lshlrev_b32 v5, 4, v6')
    e('v_lshrrev_b32 v6, 3, v1'); e('v_lshl_add_u32 v5, v6, 3, v5'); e('v_and_b32 v6, 1, v1'); e('v_lshl_add_u32 v5, v6, 2, v5')
    e('v_lshl_add_u32 v5, v2, 6, v5')
    e('s_lshr_b32 s30, s8, 1'); e('s_and_b32 s10, s8, 1')
    e('s_lshl_b32 s31, s30, 2'); e('s_add_u32 s31, s31, s9')
    if isA: e('s_lshl_b32 s31, s31, 1')
    srd(e, 24, A_X if isA else D_OUT, 2048*1280)
    e('s_lshl_b32 s13, s30, 2'); e('s_lshl_b32 s19, s10, 7'); e('s_add_u32 s13, s13, s19'); e(f's_add_u32 s13, s13, {F_XB if isA else F_XA}')
    e(f's_mov_b32 s12, {F_AO if isA else F_BO}')
    if isA: e('s_add_u32 s12, s12, s19')
    e.wait(lgkm=0)
    XO, XP, XF, PP = 16, 112, 128, 64
    e.label(f'{nm}_L')
    e('s_and_b32 s14, s10, 63'); e('s_lshl_b32 s14, s14, 5'); e('s_add_u32 s14, s14, s31'); e('s_mul_i32 s14, s14, 1280')
    e('s_lshr_b32 s15, s10, 6'); e(f's_mul_i32 s15, s15, {2*2048*1280}'); e('s_add_u32 s15, s15, s14'); e(f's_add_u32 s15, s15, {XR + (0 if isA else 2048*1280)}')
    e('s_add_u32 s16, s10, 1')
    wait_flag(e, 3, 's12', 's16', 9)
    e(f's_mul_i32 s18, s10, {NP*81920}'); e('s_mul_i32 s19, s31, 2560'); e('s_add_u32 s18, s18, s19'); e(f's_add_u32 s18, s18, {PA if isA else PB}')
    for p in range(NP*NT):
        for k in range(5): e(f'buffer_load_dwordx2 {R(PP+10*p+2*k,2)}, v4, {WS}, s18 offen offset:{512*k} sc1')
        if p+1 < NP*NT: e(f's_add_u32 s18, s18, {2560 if isA else 81920}')
    if isA:
        e('s_cmp_ge_u32 s10, 64'); e(f's_cbranch_scc1 {nm}_X')
        sv = e.save()
        for k in range(5*NT): e(f'buffer_load_dword v{XO+k}, v5, s[24:27], s14 offen offset:{256*k}')
        e(f's_branch {nm}_Y'); e.label(f'{nm}_X'); e.restore(sv)
    for k in range(5*NT): e(f'buffer_load_dword v{XO+k}, v5, {WS}, s15 offen offset:{256*k} sc1')
    if isA: e.label(f'{nm}_Y')
    for p in range(1, NP):
        for k in range(10): e(f'v_add_f32 v{PP+k}, v{PP+k}, v{PP+10*p+k}')
    for u in range(NT):
        for k in range(5):
            e(f'v_cvt_pk_bf16_f32 v{XP+5*u+k}, v{PP+10*u+2*k}, v{PP+10*u+2*k+1}')
            unpack(e, PP+10*u+2*k, XP+5*u+k); unpack(e, XF+20*u+2*k, XO+5*u+k)
        for k in range(10): e(f'v_add_f32 v{XF+20*u+k}, v{XF+20*u+k}, v{PP+10*u+k}')
        for k in range(5): e(f'v_cvt_pk_bf16_f32 v{XP+5*u+k}, v{XF+20*u+2*k}, v{XF+20*u+2*k+1}')
    e(f's_add_u32 s15, s15, {2048*1280}')
    if not isA:
        e('s_cmp_lt_u32 s10, 64'); e(f's_cbranch_scc1 {nm}_X')
        for k in range(5): e(f'buffer_store_dword v{XP+k}, v5, s[24:27], s14 offen offset:{256*k}')
        if TRACE[0]: e('s_add_u32 s16, s10, 65'); trace(e, 's16', 9)
        e(f's_branch {nm}_N'); e.label(f'{nm}_X')
    e('s_mul_i32 s18, s10, 40960'); e('s_mul_i32 s19, s31, 1280'); e('s_add_u32 s18, s18, s19'); e(f's_add_u32 s18, s18, {XNB if isA else XNA + 64*40960}')
    for u in range(NT):
        for k in range(5): unpack(e, XF+20*u+2*k, XP+5*u+k)
        ln_token(e, XF+20*u)
        for k in range(5): e(f'buffer_store_dword v{XF+20*u+10+k}, v5, {WS}, s18 offen offset:{1280*u+256*k} sc1')
    for k in range(5*NT): e(f'buffer_store_dword v{XP+k}, v5, {WS}, s15 offen offset:{256*k} sc1')
    e.wait(vm=0); e('s_barrier')
    e(f's_add_u32 s16, s10, {1 if isA else 65}')
    set_flag(e, 's13', 's16', 9)
    if not isA: e.label(f'{nm}_N')
    e('s_add_u32 s10, s10, 2'); e('s_cmp_lt_u32 s10, 128'); e(f's_cbranch_scc1 {nm}_L')
    e.wait(vm=0); e('s_endpgm')

def need_prog(e, sc, soff, need, t, two=False, sl=2):
    lp = e.newlabel('NP'); dn = e.newlabel('ND')
    e(f's_cmp_ge_u32 {sc}, {need}'); e(f's_cbranch_scc1 {dn}')
    sv = e.save()
    e.label(lp)
    if two:
        e(f'buffer_load_dwordx2 {R(t,2)}, off, {WS}, {soff} sc1'); e(f'v_min_u32 v{t}, v{t}, v{t+1}')
    else: e(f'buffer_load_dword v{t}, off, {WS}, {soff} sc1')
    e(f'v_readfirstlane_b32 {sc}, v{t}')
    e(f's_cmp_ge_u32 {sc}, {need}'); e(f's_cbranch_scc1 {dn}')
    e(f's_sleep {OPT.get("sn", sl)}')
    e('s_sub_u32 s20, s20, 1'); e('s_cmp_gt_i32 s20, 0'); e(f's_cbranch_scc1 {lp}')
    e.label(dn); e.restore(sv)

def ln0(e):
    srd(e, 28, A_X, 2048*1280)
    e('v_lshrrev_b32 v11, 2, v0')
    e('s_lshl_b32 s14, s8, 5'); e('s_lshl_b32 s19, s9, 3'); e('s_add_u32 s14, s14, s19'); e('s_mul_i32 s14, s14, 1280')
    for tk in range(8):
        e(f's_add_u32 s19, s14, {tk*1280}')
        for k in range(5): e(f'buffer_load_dword v{128+5*tk+k}, v11, s[28:31], s19 offen offset:{256*k}')
    LW = 65536
    e('s_and_b32 s17, s9, 1'); e('s_lshl_b32 s19, s17, 3'); e('s_add_u32 s34, s0, s19'); e('s_addc_u32 s35, s1, 0')
    e(f's_load_dwordx2 s[24:25], s[34:35], {A_WK}'); e(f's_mov_b32 s26, {640*40}'); e('s_mov_b32 s27, 0x20000')
    e('s_lshl_b32 s17, s17, 15'); e(f's_add_u32 s17, s17, {LW}')
    e('s_lshr_b32 s18, s9, 1'); e('s_mul_i32 s18, s18, 13312'); e('v_add_u32 v9, s18, v0'); e('s_add_u32 s18, s18, s17')
    for k in range(13):
        e(f's_add_u32 m0, s18, {1024*k}')
        e('buffer_load_dwordx4 v9, s[24:27], 0 offen lds')
        e('v_add_u32 v9, 1024, v9')
    xn_setup(e)
    e(f's_add_u32 s14, s14, {XNA}')
    e('v_lshrrev_b32 v12, 9, v0'); e('v_lshlrev_b32 v12, 12, v12'); e('s_lshl_b32 s19, s9, 10'); e('v_add_u32 v12, s19, v12')
    e('v_and_b32 v13, 12, v11'); e('v_add_u32 v12, v12, v13'); e('v_and_b32 v13, 0x70, v11')
    for tk in range(8):
        for k in range(5): unpack(e, 32+2*k, 128+5*tk+k)
        ln_token(e, 32)
        e(f's_add_u32 s19, s14, {tk*1280}')
        e(f'v_xor_b32 v14, {tk*16}, v13'); e('v_add_u32 v14, v14, v12')
        for k in range(5):
            e(f'buffer_store_dword v{42+k}, v11, {WS}, s19 offen offset:{256*k} sc1')
            e(f'ds_write_b32 v14, v{42+k} offset:{8192*k + tk*128}')
    zero(e, 16, 4); e(f'v_add_u32 v9, {LW+28672}, v0'); e('ds_write_b128 v9, v[16:19]')
    e.wait(vm=40, lgkm=0); e('s_barrier')
    e('s_cmp_ge_u32 s9, 2'); e('s_cbranch_scc1 K0B_E')
    e('v_mul_u32_u24 v9, 320, v2'); e('v_lshl_add_u32 v9, v1, 2, v9'); e('v_add_u32 v9, s17, v9')
    e(f'v_mov_b32 v10, {LW+28672}'); e('v_cmp_gt_u32 vcc, 10, v1'); e('v_cndmask_b32 v9, v10, v9, vcc')
    e('v_mov_b32 v10, 1280'); e('v_cndmask_b32 v10, 0, v10, vcc')
    def wr(ks):
        for j in range(0, 8, 2): e(f'ds_read2_b32 {R(16+(ks%3)*8+j,2)}, v9 offset0:{10*j} offset1:{10*j+10}')
        e('v_add_u32 v9, v10, v9')
    for ks in range(3): wr(ks)
    for ks in range(20):
        bb = 16+(ks % 3)*8
        for t in range(2):
            for jj in range(4): e(f'v_perm_b32 v{96+8*ks+4*t+jj}, v{bb+2*jj+1}, v{bb+2*jj}, {"s23" if t else "s22"}')
        if ks+3 < 20: wr(ks+3)
    e('s_mov_b32 s10, s8')
    WV[0] = 1; akv_body(e, 'K0B', 'sc1'); WV[0] = 0
    e.wait(vm=0, lgkm=0); e('s_barrier')
    e('s_cmp_lg_u32 s9, 0'); e('s_cbranch_scc1 L0_E')
    e('v_mov_b32 v9, 1'); e(f's_mov_b32 s19, {F_AKV+128}'); e('s_mov_b64 exec, 1')
    e(f'buffer_atomic_add v9, off, {WS}, s19 sc0 sc1')
    e.wait(vm=0)
    e('s_mov_b64 exec, -1'); e('v_readfirstlane_b32 s16, v9')
    e('s_cmp_lg_u32 s16, 63'); e('s_cbranch_scc1 L0_E')
    e('v_mov_b32 v9, 64'); e(f's_mov_b32 s19, {F_XA}'); e(f's_mov_b32 s18, {F_AKV}')
    e(f'buffer_store_dword v9, v11, {WS}, s19 offen sc1'); e(f'buffer_store_dword v9, off, {WS}, s18 sc1')
    e.wait(vm=0)
    e.label('L0_E'); e.reset()

def role_att(e):
    lanes(e); ln0(e)
    e('s_lshr_b32 s31, s8, 1'); e('s_and_b32 s30, s8, 1')
    e('s_lshr_b32 s12, s31, 2'); e('s_lshl_b32 s12, s12, 2'); e(f's_add_u32 s12, s12, {F_AQ}')
    e('s_lshl_b32 s13, s30, 7'); e('s_lshl_b32 s19, s31, 2'); e('s_add_u32 s13, s13, s19'); e(f's_add_u32 s13, s13, {F_AT}')
    e(f's_mov_b32 s14, {F_AKV}'); e('s_mov_b32 s25, 0'); e('s_mov_b32 s26, 0')
    e('s_lshl_b32 s19, s9, 12'); e('v_add_u32 v4, s19, v0')
    e('v_lshlrev_b32 v5, 12, v2'); e('v_lshl_add_u32 v5, v1, 4, v5')
    e('s_lshl_b32 s19, s9, 11'); e('v_add_u32 v6, s19, v0')
    e('s_lshl_b32 s19, s9, 7'); e('v_lshlrev_b32 v7, 3, v1'); e('v_add_u32 v7, s19, v7')
    e('v_lshlrev_b32 v8, 7, v2'); e('v_lshl_add_u32 v8, v1, 3, v8')
    e(f's_mov_b32 s28, {fbits(2.0**-80)}'); e(f's_mov_b32 s29, {fbits(2.0**80)}')
    zero(e, 24, 8)
    e('s_mov_b32 s24, 0'); e('s_lshl_b32 s40, s31, 7'); e(f's_add_u32 s40, s40, {F_CH}')
    e('s_mov_b32 s11, 0')
    e.label('AT_LAY')
    e('s_lshl_b32 s17, s8, 2'); e('s_cmp_eq_u32 s11, 0'); e('s_cselect_b32 s17, s17, 0'); e('s_add_u32 s17, s17, s9')
    def kblk(i, sn, sa):
        e('s_and_b32 s17, s17, 63'); e(f's_add_u32 {sn}, s11, s17'); e(f's_lshl_b32 {sa}, {sn}, 12'); e(f's_add_u32 {sa}, {sa}, {KA}'); e(f's_add_u32 {sn}, {sn}, 1')
        need_prog(e, 's25', 's14', sn, 9, sl=(OPT.get('ks', 32) if 0 < i < 15 else 2))
        for k in range(4): e(f'buffer_load_dwordx4 {R(16*i+4*k,4,"a")}, v0, {WS}, {sa} offen offset:{1024*k} sc1')
        e('s_add_u32 s17, s17, 4')
    for i in range(15):
        kblk(i, 's16', 's18')
        if i == 7: e.wait(vm=0)
    e('s_mov_b32 s27, 1'); e('s_cmp_lg_u32 s11, 0'); e('s_cbranch_scc1 AT_D')
    kblk(15, 's16', 's18'); e('s_mov_b32 s27, 0')
    e.label('AT_D')
    e('s_add_u32 s10, s11, s30')
    e.label('AT_U')
    if OPT.get('ahead', 0):
        e(f's_max_u32 s16, s10, {OPT["ahead"]}'); e(f's_sub_u32 s16, s16, {OPT["ahead"]}')
        need_prog(e, 's24', 's40', 's16', 9, sl=8)
    e('s_add_u32 s16, s10, 1')
    need_prog(e, 's26', 's12', 's16', 9)
    e('s_lshl_b32 s18, s10, 5'); e('s_add_u32 s18, s18, s31'); e('s_lshl_b32 s18, s18, 11'); e(f's_add_u32 s19, s18, {QA}')
    e(f'buffer_load_dwordx4 v[16:19], v0, {WS}, s19 offen sc1'); e(f'buffer_load_dwordx4 v[20:23], v0, {WS}, s19 offen offset:1024 sc1')
    e('s_mov_b32 s15, 0')
    e.wait(vm=0)
    e.label('AT_M')
    def sco(i, kt, a, c=None):
        return f'{mf} {R(32+16*(i&1)+8*a+4*kt,4)}, {R(16*i+4*kt,4,"a")}, {R(16+4*a,4)}, {c if c is not None else R(24+4*a,4)}'
    def pv(i, a, t):
        d = R(72+8*a+4*t, 4)
        return f'{mf} {d}, {R(16*i+8+4*t,4,"a")}, {R(64+4*a,4)}, {d if i else 0}'
    for a in range(2):
        for kt in range(2): e(sco(0, kt, a))
    for i in range(16):
        b = 32+16*(i & 1)
        if i == 14:
            e('s_cmp_eq_u32 s27, 0'); e('s_cbranch_scc1 AT_DN')
            sv = e.save(); kblk(15, 's21', 's19'); e('s_mov_b32 s27, 0'); e.wait(vm=0)
            e.label('AT_DN'); e.restore(sv)
        ms = {}
        if i: ms[1] = pv(i-1, 1, 0); ms[3] = pv(i-1, 1, 1)
        if i < 15:
            ms[5] = sco(i+1, 0, 0); ms[7] = sco(i+1, 1, 0); ms[18] = sco(i+1, 0, 1); ms[20] = sco(i+1, 1, 1)
        ms[14] = pv(i, 0, 0); ms[16] = pv(i, 0, 1)
        V = []
        for a in range(2):
            V += [f'v_exp_f32 v{b+8*a+k}, v{b+8*a+k}' for k in range(8)]
            V += [f'v_cvt_pk_bf16_f32 v{64+4*a+k}, v{b+8*a+2*k}, v{b+8*a+2*k+1}' for k in range(4)]
        for k, x in enumerate(V):
            if k in ms: e(ms[k])
            e(x)
    e(pv(15, 1, 0)); e(pv(15, 1, 1))
    for k in range(4): e(f'ds_write_b128 v4, {R(72+4*k,4)} offset:{1024*k}')
    e.barrier()
    e('ds_read_b32 v32, v5 offset:520'); e('ds_read_b32 v33, v5 offset:2568')
    for ww in range(4):
        for t in range(2): e(f'ds_read_b128 {R(40+8*ww+4*t,4)}, v6 offset:{4096*ww+1024*t}')
    allred(e, 'v_add_f32', 32, 34); allred(e, 'v_add_f32', 33, 34)
    e('v_cmp_lt_f32 s[32:33], s28, v32'); e('v_cmp_lt_f32 s[34:35], s28, v33')
    e('v_cmp_gt_f32 s[36:37], s29, v32'); e('v_cmp_gt_f32 s[38:39], s29, v33')
    e('s_nop 1')
    e('s_and_b64 s[32:33], s[32:33], s[34:35]'); e('s_and_b64 s[36:37], s[36:37], s[38:39]'); e('s_and_b64 s[32:33], s[32:33], s[36:37]')
    e('s_cmp_eq_u64 s[32:33], -1'); e('s_cbranch_scc1 AT_OK')
    e('s_cmp_lg_u32 s15, 0'); e('s_cbranch_scc1 AT_OK')
    sv = e.save()
    e.wait(lgkm=0)
    e('s_mov_b32 s15, 1')
    e('v_mov_b32 v10, 0xff800000'); e('v_mov_b32 v11, 0xff800000')
    for i in range(16):
        for a in range(2):
            for kt in range(2): e(sco(i, kt, a, 0))
        b = 32+16*(i & 1)
        for a in range(2):
            for k in range(4): e(f'v_max3_f32 v{10+a}, v{10+a}, v{b+8*a+2*k}, v{b+8*a+2*k+1}')
    allred(e, 'v_max_f32', 10, 12); allred(e, 'v_max_f32', 11, 12)
    e('ds_write_b64 v7, v[10:11] offset:16384')
    e.barrier()
    e('ds_read_b64 v[10:11], v8 offset:16384')
    allred(e, 'v_max_f32', 10, 12); allred(e, 'v_max_f32', 11, 12)
    for a in range(2):
        for k in range(4): e(f'v_sub_f32 v{24+4*a+k}, 0, v{10+a}')
    e('s_nop 1'); e('s_branch AT_M')
    e.label('AT_OK'); e.restore(sv)
    zero(e, 24, 8)
    e('s_cmp_ge_u32 s9, 2'); e('s_cbranch_scc1 AT_F')
    e('s_cmp_eq_u32 s9, 1'); e('s_cselect_b64 vcc, -1, 0'); e('v_cndmask_b32 v32, v32, v33, vcc')
    e('v_rcp_f32 v32, v32')
    for ww in range(1, 4):
        for k in range(8): e(f'v_add_f32 v{40+k}, v{40+k}, v{40+8*ww+k}')
    for k in range(8): e(f'v_mul_f32 v{40+k}, v{40+k}, v32')
    for k in range(4): e(f'v_cvt_pk_bf16_f32 v{36+k}, v{40+k}, v{44+k}')
    e('s_lshl_b32 s19, s9, 10'); e('s_add_u32 s18, s18, s19'); e(f's_add_u32 s18, s18, {OA}')
    e(f'buffer_store_dwordx4 v[36:39], v0, {WS}, s18 offen sc1')
    e.label('AT_F')
    e.wait(vm=0, lgkm=0); e('s_barrier')
    set_flag(e, 's13', 's16', 9)
    e('s_add_u32 s10, s10, 2'); e('s_sub_u32 s19, s10, s11'); e('s_cmp_lt_u32 s19, 64'); e('s_cbranch_scc1 AT_U')
    e('s_add_u32 s11, s11, 64'); e('s_cmp_lt_u32 s11, 128'); e('s_cbranch_scc1 AT_LAY')
    e.wait(vm=0); e('s_endpgm')

def role_batt(e):
    LM = 139264
    lanes(e)
    e('s_lshl_b32 s12, s8, 7'); e(f's_add_u32 s14, s12, {F_CH}'); e(f's_add_u32 s12, s12, {F_KV}')
    e('s_lshl_b32 s13, s8, 2'); e(f's_add_u32 s13, s13, {F_BA}')
    e('s_mov_b32 s25, 0'); e('s_mov_b32 s26, 0')
    e('s_lshr_b32 s30, s9, 1'); e('s_and_b32 s31, s9, 1')
    e('s_lshl_b32 s19, s30, 12'); e('v_add_u32 v8, s19, v0')
    e('v_lshrrev_b32 v10, 2, v1'); e('v_lshlrev_b32 v10, 8, v10'); e('v_lshl_add_u32 v10, v2, 6, v10')
    e('v_and_b32 v11, 1, v1'); e('v_lshl_add_u32 v10, v11, 2, v10'); e(f'v_add_u32 v10, {LM}, v10')
    e('s_lshl_b32 s19, s31, 11'); e(f's_add_u32 s19, s19, {LM+8}'); e('v_add_u32 v11, s19, v0')
    e('v_mov_b32 v12, v0')
    e('s_lshl_b32 s19, s31, 12'); e('v_add_u32 v13, s19, v0')
    e('s_lshl_b32 s19, s30, 4'); e('v_add_u32 v14, s19, v1'); e('v_lshlrev_b32 v15, 2, v2'); e('v_sub_u32 v14, v14, v15')
    for k in range(8): e(f'v_cmp_gt_i32 s[{40+2*k}:{41+2*k}], {16*(k>>2)+(k&3)}, v14')
    e(f's_mov_b32 s21, {fbits(128**-0.5*math.log2(math.e))}')
    e('s_lshl_b32 s11, s9, 10')
    def fetch(gs):
        e(f's_add_u32 s16, {gs}, 1')
        need_prog(e, 's25', 's12', 's16', 14, True)
        e(f's_lshl_b32 s18, {gs}, 5'); e(f's_add_u32 s18, s18, s8'); e('s_lshl_b32 s36, s18, 13'); e(f's_mul_i32 s18, s18, {SEG}')
        e('s_lshl_b32 s19, s9, 10'); e('s_add_u32 s18, s18, s19'); e('s_add_u32 s36, s36, s19')
        for sb, gb, lo in ((36, QB, 32768), (36, QB+4096, 36864), (18, KX, 40960), (18, KX+4096, 45056), (18, VX, 49152), (18, VX+4096, 53248)):
            e(f's_add_u32 m0, s11, {lo}'); e(f's_add_u32 s19, s{sb}, {gb}')
            e(f'buffer_load_dwordx4 v0, {WS}, s19 offen sc1 lds')
        e('s_xor_b32 s11, s11, 0x10000'); e(f'buffer_load_dword v116, off, {WS}, s14 sc1')
    def kvm():
        e(f's_mul_i32 s19, s38, {SEG}'); e('s_lshl_b32 s16, s9, 10'); e('s_add_u32 s19, s19, s16'); e(f's_add_u32 s19, s19, {KVM}')
        e(f's_add_u32 m0, s16, {LM}')
        e(f'buffer_load_dwordx4 v0, {WS}, s19 offen sc1 lds')
    e('s_mov_b32 s10, 0')
    e.label('BA_LAY')
    fetch('s10')
    e.wait(vm=0)
    e.label('BA_L')
    e.wait(vm=2, lgkm=0); e('s_barrier'); e.reset()
    for ks in range(4):
        e(f'ds_read_b128 {R(64+4*ks,4)}, v8 offset:{32768+1024*ks}')
        for b in range(2): e(f'ds_read_b128 {R(80+16*b+4*ks,4)}, v12 offset:{40960+(4*b+ks)*1024}')
    e('v_readfirstlane_b32 s16, v116'); e('s_max_u32 s26, s26, s16')
    e('s_add_u32 s28, s10, 1'); e('s_and_b32 s29, s28, 63')
    e('s_lshl_b32 s38, s10, 5'); e('s_add_u32 s38, s38, s8')
    e('s_cmp_ge_u32 s26, s28'); e('s_cselect_b32 s27, 1, 0'); e('s_cbranch_scc0 BA_P')
    sv = e.save(); kvm()
    e.label('BA_P'); e.restore(sv)
    S = 16
    for ks in range(4):
        for b in range(2): e(f'{mf} {R(S+4*b,4)}, {R(80+16*b+4*ks,4)}, {R(64+4*ks,4)}, {R(S+4*b,4) if ks else 0}')
    for k in range(4): e(f'ds_read_b128 {R(80+4*k,4)}, v13 offset:{49152+1024*k}')
    e('v_mov_b32 v15, 0xff800000')
    for k in range(8): e(f'v_cndmask_b32 v{S+k}, v{S+k}, v15, s[{40+2*k}:{41+2*k}]')
    for k in range(4): e(f'v_mov_b32 v{28+k}, 0x3f803f80')
    e.wait(vm=0, lgkm=0); e('s_barrier')
    set_flag(e, 's13', 's10', 9)
    e('s_cmp_eq_u32 s29, 0'); e('s_cbranch_scc1 BA_Q')
    fetch('s28')
    e.label('BA_Q'); e.reset()
    e('s_cmp_lg_u32 s27, 0'); e('s_cbranch_scc1 BA_J')
    need_prog(e, 's26', 's14', 's28', 14)
    kvm()
    e.wait(vm=0)
    e.label('BA_J'); e.reset()
    e('s_barrier')
    for ks in range(4):
        e(f'v_add_u32 v14, {1024*ks}, v10')
        e(f'ds_read2_b32 {R(96+4*ks,2)}, v14 offset0:0 offset1:4'); e(f'ds_read2_b32 {R(98+4*ks,2)}, v14 offset0:8 offset1:12')
    e('ds_read_b64 v[112:113], v11'); e('ds_read_b64 v[114:115], v11 offset:1024')
    Sm = 24
    for ks in range(4): e(f'{mf} {R(Sm,4)}, {R(96+4*ks,4)}, {R(64+4*ks,4)}, {R(Sm,4) if ks else 0}')
    sc = [S+k for k in range(10)]
    e(f'v_max3_f32 v14, v{sc[0]}, v{sc[1]}, v{sc[2]}')
    for k in (3, 5, 7): e(f'v_max3_f32 v14, v14, v{sc[k]}, v{sc[k+1]}')
    e(f'v_max_f32 v14, v14, v{sc[9]}')
    allred(e, 'v_max_f32', 14, 15)
    e('v_mul_f32 v14, s21, v14')
    for r in sc: e(f'v_fma_f32 v{r}, v{r}, s21, -v14')
    for r in sc: e(f'v_exp_f32 v{r}, v{r}')
    P = 32
    for k in range(5): e(f'v_cvt_pk_bf16_f32 v{P+k}, v{S+2*k}, v{S+2*k+1}')
    e(f'v_mov_b32 v{P+5}, 0'); e(f'v_mov_b32 v{P+6}, 0'); e(f'v_mov_b32 v{P+7}, v{P+4}')
    e(f'{mf} v[16:19], v[28:31], {R(P,4)}, 0')
    for k in range(4): e(f'{mf} {R(40+4*k,4)}, {R(80+4*k,4)}, {R(P,4)}, 0')
    e(f'{m16} v[16:19], v[28:29], {R(P+4,2)}, v[16:19]')
    for k in range(4):
        e(f'{m16} {R(40+4*k,4)}, {R(112+2*(k>>1),2)}, {R(P+4+2*(k&1),2)}, {R(40+4*k,4)}')
    e('v_rcp_f32 v14, v16')
    e('s_lshl_b32 s18, s38, 13'); e('s_lshl_b32 s19, s31, 12'); e('s_add_u32 s18, s18, s19'); e('s_lshl_b32 s19, s30, 10'); e('s_add_u32 s18, s18, s19'); e(f's_add_u32 s18, s18, {OB}')
    for sl in range(2):
        for k in range(8): e(f'v_mul_f32 v{40+8*sl+k}, v{40+8*sl+k}, v14')
        for k in range(4): e(f'v_cvt_pk_bf16_f32 v{56+4*sl+k}, v{40+8*sl+k}, v{44+8*sl+k}')
        e(f'buffer_store_dwordx4 {R(56+4*sl,4)}, v0, {WS}, s18 offen offset:{2048*sl} sc1')
    for r in (8, 12, 13): e(f'v_xor_b32 v{r}, 0x10000, v{r}')
    e('s_mov_b32 s10, s28')
    e('s_cmp_lg_u32 s29, 0'); e('s_cbranch_scc1 BA_L')
    e.wait(vm=0, lgkm=0); e('s_barrier')
    set_flag(e, 's13', 's10', 9)
    e('s_cmp_lt_u32 s10, 128'); e('s_cbranch_scc1 BA_LAY')
    e.wait(vm=0); e('s_endpgm')

def kernel0(e):
    e('s_cmp_ge_u32 s2, 64'); e('s_cbranch_scc1 K0_END')
    e(f's_load_dwordx2 s[4:5], s[0:1], {D_WS}'); e(f's_mov_b32 s6, {WS_BYTES}'); e('s_mov_b32 s7, 0x20000')
    e('v_lshlrev_b32 v10, 4, v0'); e('v_and_b32 v0, 1023, v10')
    zero(e, 12, 4, -1); zero(e, 16, 4, 0)
    e('s_mul_i32 s18, s2, 6144'); e(f's_add_u32 s18, s18, {PART}')
    e(f'buffer_store_dwordx4 v[12:15], v10, {WS}, s18 offen'); e(f'buffer_store_dwordx4 v[12:15], v10, {WS}, s18 offen offset:2048')
    e('s_lshl_b32 s19, s2, 10'); e(f's_add_u32 s19, s19, {MEMR}'); e(f'buffer_store_dwordx4 v[12:15], v0, {WS}, s19 offen')
    e('s_cmp_ge_u32 s2, 3'); e('s_cbranch_scc1 K0_NF')
    e('s_lshl_b32 s19, s2, 12')
    e(f'buffer_store_dwordx4 v[16:19], v10, {WS}, s19 offen')
    e.label('K0_NF')
    e.wait(vm=0)
    e.label('K0_END')
    e('s_endpgm')
```

```python
from em import Em, R
from layout import *
from chain import srd, fbits, allred, zero, WS
import math
mf = 'v_mfma_f32_16x16x32_bf16'; m16 = 'v_mfma_f32_16x16x16_bf16'

def lanes(e):
    e('v_and_b32 v0, 63, v0'); e('v_and_b32 v1, 15, v0'); e('v_lshrrev_b32 v2, 4, v0'); e('v_lshlrev_b32 v0, 4, v0')
    e('s_mov_b32 s22, 0x05040100'); e('s_mov_b32 s23, 0x07060302'); e('s_mov_b32 s20, 300000')

def flagaddr(e, v, nwords):
    e(f'v_lshrrev_b32 v{v}, 2, v0'); e(f'v_min_u32 v{v}, {4*(nwords-1)}, v{v}')

def wait_flag(e, v, soff, need, t, coarse=False):
    lp = e.newlabel('WF'); dn = e.newlabel('WD')
    if OPT.get('one', 1): e('s_cmp_lg_u32 s9, 0'); e(f's_cbranch_scc1 {dn}')
    if coarse and OPT.get('co', 1):
        e('s_lshr_b32 s41, s10, 1'); e('s_cmp_eq_u32 s41, 32'); e('s_cselect_b32 s43, 124, 0'); e('s_mov_b32 s41, 0'); e(f's_mov_b32 s42, {F_AKV}')
        need_prog(e, 's41', 's42', 's43', t, sl=32)
    e.label(lp)
    e(f'buffer_load_dword v{t}, v{v}, {WS}, {soff} offen sc1')
    e(f'v_cmp_gt_u32 vcc, {need}, v{t}')
    e(f's_cbranch_vccz {dn}')
    e(f's_sleep {OPT.get("sw", 3)}')
    e('s_sub_u32 s20, s20, 1'); e('s_cmp_gt_i32 s20, 0'); e(f's_cbranch_scc1 {lp}')
    e.label(dn)
    if OPT.get('one', 1): e('s_barrier')

TRACE = [0]
def trace(e, val, t):
    if not TRACE[0]: return
    e('s_memrealtime s[92:93]'); e(f's_lshl_b32 s91, {val}, 2'); e('s_add_u32 s91, s91, s90')
    e(f'v_mov_b32 v{t}, s92'); e(f'buffer_store_dword v{t}, off, {WS}, s91')

def set_flag(e, soff, val, t):
    sk = e.newlabel('SF')
    e('s_cmp_lg_u32 s9, 0'); e(f's_cbranch_scc1 {sk}')
    sv = e.save()
    e(f'v_mov_b32 v{t}, {val}'); e(f'buffer_store_dword v{t}, off, {WS}, {soff} sc1')
    trace(e, val, t)
    e.label(sk); e.restore(sv)
    e.vq.append(set())

def load_w(e, nks, rowstride, ksstride, vlo, vhi, vdst=None):
    D = 6; tb = 64 if vdst is None else 16
    def issue(ks):
        for j in range(8):
            e(f's_add_u32 s19, s17, {ks*ksstride + j*rowstride}')
            e(f'buffer_load_dword v{tb+(ks%D)*8+j}, v{vlo if j<4 else vhi}, s[24:27], s19 offen')
    for ks in range(D): issue(ks)
    for ks in range(nks):
        b = tb+(ks % D)*8
        for t in range(2):
            for jj in range(4): e(f'v_perm_b32 v{(56 if vdst is None else vdst+8*ks)+4*t+jj}, v{b+2*jj+1}, v{b+2*jj}, {"s23" if t else "s22"}')
        if vdst is None:
            for k in range(8): e(f'v_accvgpr_write_b32 a{8*ks+k}, v{56+k}')
        if ks+D < nks: issue(ks+D)

def xn_setup(e):
    e('v_lshrrev_b32 v7, 7, v0'); e('v_lshrrev_b32 v8, 4, v0'); e('v_and_b32 v8, 7, v8'); e('v_xor_b32 v8, v8, v7')
    e('s_lshl_b32 s19, s9, 3'); e('v_add_u32 v7, s19, v7'); e('v_mul_u32_u24 v4, 1280, v7'); e('v_lshl_add_u32 v4, v8, 4, v4')
    e('v_and_b32 v7, 7, v1'); e('v_lshrrev_b32 v8, 3, v1'); e('v_lshlrev_b32 v8, 10, v8'); e('v_lshl_add_u32 v8, v7, 7, v8')
    e('v_xor_b32 v7, v2, v7'); e('v_lshl_add_u32 v5, v7, 4, v8'); e('v_xor_b32 v6, 64, v5')

DF = ['sc1']
OPT = {}
def set_rot(e, lin, idx):
    if lin: e(f's_mul_i32 s35, {idx}, 3072'); e('s_and_b32 s35, s35, 0x1fff')
    else:
        e(f's_and_b32 s35, {idx}, 31'); e('s_mul_i32 s34, s35, 26'); e('s_lshr_b32 s34, s34, 8'); e('s_mul_i32 s34, s34, 10')
        e('s_sub_u32 s35, s35, s34'); e('s_lshl_b32 s35, s35, 7')

def xn_dma1(e):
    e('s_lshl_b32 s34, s35, 5'); e(f's_add_u32 m0, s11, s34'); e(f's_add_u32 s37, s36, s35')
    e(f'buffer_load_dwordx4 v4, {WS}, s37 offen {DF[0]} lds')
    e('s_add_u32 s35, s35, 128'); e('s_cmp_eq_u32 s35, 1280'); e('s_cselect_b32 s35, 0, s35')

def lin_dma1(e, half):
    if half: e('s_or_b32 s34, s35, 0x8000')
    r = 's34' if half else 's35'
    e(f's_add_u32 m0, s11, {r}'); e(f's_add_u32 s37, s36, {r}')
    e(f'buffer_load_dwordx4 v0, {WS}, s37 offen {DF[0]} lds')
    e('s_add_u32 s35, s35, 1024'); e('s_and_b32 s35, s35, 0x1fff')

SITES = []
def site(e, k):
    if k >= len(SITES): return
    sk = e.newlabel('ST')
    e('s_cmp_eq_u32 s15, 0'); e(f's_cbranch_scc1 {sk}')
    sv = e.save(); SITES[k](); e.label(sk); e.restore(sv)

ACC = 16
MID = [None]
WV = [0]
def MPOS(lin): return OPT.get('ml', 24) if lin else OPT.get('mx', 14)
SPOS = []
def gemm(e, nks, lin, vtype, q=False):
    NB = 6
    def rd(i):
        ks, a = divmod(i, 2)
        if lin: e(f'ds_read_b128 {R(32+4*(i%NB),4)}, v5 offset:{i*1024}')
        elif q: e(f'ds_read_b128 {R(32+4*(i%NB),4)}, v{12+2*a+(ks&1)} offset:{(ks>>1)*4096}')
        else: e(f'ds_read_b128 {R(32+4*(i%NB),4)}, v{5+(ks&1)} offset:{(ks>>1)*4096+a*2048}')
    for i in range(NB): rd(i)
    for i in range(2*nks):
        ks, a = divmod(i, 2)
        x = R(32+4*(i % NB), 4)
        for t in range(2):
            w = R(96+8*ks+4*t, 4) if WV[0] else R(8*ks+4*t, 4, 'a'); d = R(ACC+8*a+4*t, 4)
            A, Bo = (x, w) if vtype else (w, x)
            e(f'{mf} {d}, {A}, {Bo}, {d if ks else 0}')
        if q and a == 0:
            for t in range(2):
                d = R(56+4*t, 4); e(f'{mf} {d}, {R(96+8*ks+4*t,4)}, {x}, {d if ks else 0}')
        if i+NB < 2*nks: rd(i+NB)
        step = 3 if lin else 2
        if SPOS:
            if i in SPOS: site(e, SPOS.index(i))
        elif i % step == 0: site(e, i // step)
        if i == MPOS(lin) and MID[0]: MID[0]()
    if q:
        sk = e.newlabel('SW')
        e.nop(16)
        e('s_bitcmp0_b32 s9, 0'); e(f's_cbranch_scc1 {sk}')
        for k in range(8): e(f'v_swap_b32 v{ACC+k}, v{ACC+8+k}')
        e.label(sk)

def epi_k(e, scale=None):
    for a in range(2):
        if scale:
            for k in range(8): e(f'v_mul_f32 v{ACC+8*a+k}, {scale}, v{ACC+8*a+k}')
        for i in range(4): e(f'v_cvt_pk_bf16_f32 v{32+4*a+i}, v{ACC+8*a+i}, v{ACC+8*a+4+i}')
def epi_v(e):
    for t in range(2):
        for a in range(2):
            for i in range(2): e(f'v_cvt_pk_bf16_f32 v{32+4*t+2*a+i}, v{ACC+8*a+4*t+2*i}, v{ACC+8*a+4*t+2*i+1}')

def gemm_loop(e, name, lin, g0, gstep, body, srcbase, srcstride, nst, nwords, flag_off_fn=None):
    wsh = 13 if lin else 10
    nd = (16 if lin else 10) + 1
    LF = 131072
    flagaddr(e, 3, nwords)
    if lin: e('v_mov_b32 v5, v0')
    else: xn_setup(e)
    e(f's_mov_b32 s10, {g0}')
    set_rot(e, lin, 's31' if lin else 's8')
    e(f's_lshl_b32 s11, s9, {wsh}'); e('s_mov_b32 s15, 0'); e('s_mov_b32 s33, 0'); e(f's_mov_b32 s32, {LF}')
    e('v_lshrrev_b32 v11, 2, v0'); e(f'v_add_u32 v11, {LF}, v11')
    if lin: e('s_add_u32 s14, s14, s11')
    def foff(gs):
        if flag_off_fn: flag_off_fn(gs)
        else: e('s_mov_b32 s21, s12')
    def base(gs):
        e(f's_mul_i32 s36, {gs}, {srcstride}'); e(f's_add_u32 s36, s36, {srcbase}'); e('s_add_u32 s36, s36, s14')
        e(f's_add_u32 s16, {gs}, {gstep}'); foff('s16')
    def fin():
        e('s_mov_b32 m0, s32'); e(f'buffer_load_dword v3, {WS}, s21 offen sc1 lds')
        e('s_xor_b32 s11, s11, 0x10000'); e('s_xor_b32 s32, s32, 256')
    pieces = ([lambda: lin_dma1(e, 0)]*8 + [lambda: lin_dma1(e, 1)]*8 if lin else [lambda: xn_dma1(e)]*10) + [fin]
    e('s_mov_b32 s38, 0') if lin else None
    e.wait(vm=0, lgkm=0)
    e.label(f'{name}_L')
    e('s_cmp_lg_u32 s15, 0'); e(f's_cbranch_scc1 {name}_H')
    e('s_add_u32 s16, s10, 1'); foff('s10')
    wait_flag(e, 3, 's21', 's16', 9, name in ('KV', 'AO'))
    base('s10')
    if lin:
        for p in pieces[:8]: p()
        e('s_mov_b32 m0, s32'); e(f'buffer_load_dword v3, {WS}, s21 offen sc1 lds')
        for p in pieces[8:16]: p()
        e('s_xor_b32 s11, s11, 0x10000'); e('s_xor_b32 s32, s32, 256'); e('s_mov_b32 s38, 1')
        e.wait(vm=8); e(f's_branch {name}_I')
    else:
        for p in pieces: p()
        e.wait(vm=0)
    e.label(f'{name}_H')
    e.wait(vm=nst)
    e.label(f'{name}_I'); e.reset()
    e('s_barrier')
    e('ds_read_b32 v9, v11')
    e(f's_add_u32 s28, s10, {gstep}'); e('s_add_u32 s16, s28, 1')
    e('v_cmp_gt_u32 vcc, s16, v9')
    e('s_cmp_eq_u64 vcc, 0'); e('s_cselect_b32 s15, 1, 0')
    base('s28')
    SITES[:] = pieces
    def mid():
        sk = e.newlabel('MD'); s2 = e.newlabel('ME')
        if lin: e('s_or_b32 s38, s38, s33'); e(f's_cbranch_scc0 {sk}'); e('s_mov_b32 s38, 0')
        else: e('s_cmp_eq_u32 s33, 0'); e(f's_cbranch_scc1 {sk}')
        sv = e.save()
        e.wait(vm=min(nd, MPOS(lin)//(3 if lin else 2)+1))
        e('s_cmp_lg_u32 s15, 0'); e(f's_cbranch_scc1 {s2}')
        e.wait(vm=0)
        e.label(s2)
        e('s_barrier')
        if lin: e('s_cmp_eq_u32 s33, 0'); e(f's_cbranch_scc1 {sk}')
        set_flag(e, 's13', 's33', 9)
        e.label(sk); e.restore(sv)
    MID[0] = mid
    body()
    MID[0] = None; SITES[:] = []
    e('s_add_u32 s33, s10, 1')
    e('s_and_b32 s16, s10, 63'); e('s_cselect_b32 s16, s15, 0')
    e('s_cmp_lg_u32 s16, 0'); e(f's_cbranch_scc1 {name}_N')
    if name == 'KV' and OPT.get('rs', 1):
        e('s_cmp_eq_u32 s15, 0'); e(f's_cbranch_scc1 {name}_R')
        e('s_xor_b32 m0, s32, 256'); e(f'buffer_load_dword v3, {WS}, s21 offen sc1 lds')
        e.label(f'{name}_R')
    e.wait(vm=0)
    e('s_barrier')
    set_flag(e, 's13', 's33', 9)
    e('s_mov_b32 s33, 0')
    e.label(f'{name}_N')
    e('v_xor_b32 v5, 0x10000, v5'); e('v_xor_b32 v11, 256, v11')
    if not lin: e('v_xor_b32 v6, 0x10000, v6')
    e('s_mov_b32 s10, s28'); e('s_cmp_lt_u32 s10, 128'); e(f's_cbranch_scc1 {name}_L')
    e.wait(vm=0)
    e('s_endpgm')

def par_off(e, base):
    def fo(gs):
        e(f's_and_b32 s21, {gs}, 1'); e('s_lshl_b32 s21, s21, 7'); e(f's_add_u32 s21, s21, {base}')
    return fo

def role_kv(e):
    lanes(e)
    e('s_and_b32 s30, s8, 1'); e('s_lshr_b32 s31, s8, 1')
    e('s_lshl_b32 s19, s30, 3'); e('s_add_u32 s34, s0, s19'); e('s_addc_u32 s35, s1, 0')
    e(f's_load_dwordx2 s[24:25], s[34:35], {B_WK}'); e(f's_mov_b32 s26, {640*8192}'); e('s_mov_b32 s27, 0x20000')
    e('v_lshlrev_b32 v4, 16, v2'); e('v_lshl_add_u32 v4, v1, 2, v4')
    e('s_lshl_b32 s17, s31, 8'); e('s_lshl_b32 s19, s9, 6'); e('s_add_u32 s17, s17, s19')
    load_w(e, 20, 8192, 32*8192, 4, 4)
    srd(e, 24, B_WQ, 640*8192)
    e('s_lshl_b32 s29, s30, 1'); e('s_lshr_b32 s19, s9, 1'); e('s_add_u32 s29, s29, s19')
    e('s_lshl_b32 s17, s31, 8'); e('s_lshl_b32 s19, s29, 6'); e('s_add_u32 s17, s17, s19')
    load_w(e, 20, 8192, 32*8192, 4, 4, 96)
    e('s_and_b32 s19, s9, 1'); e('s_lshl_b32 s38, s19, 11'); e('s_xor_b32 s39, s38, 2048')
    e('s_lshl_b32 s19, s19, 12'); e('s_lshl_b32 s29, s29, 10'); e('s_add_u32 s29, s29, s19'); e(f's_add_u32 s29, s29, {QB}')
    e(f's_mov_b32 s12, {F_XB}'); e('s_lshl_b32 s13, s31, 7'); e('s_lshl_b32 s19, s30, 2'); e('s_add_u32 s13, s13, s19')
    e('s_mov_b32 s14, 0')
    def body():
        e('v_add_u32 v12, s38, v5'); e('v_add_u32 v14, s39, v5'); e('v_add_u32 v13, s38, v6'); e('v_add_u32 v15, s39, v6')
        e('s_lshl_b32 s18, s10, 5'); e('s_add_u32 s18, s18, s31'); e('s_lshl_b32 s17, s18, 13'); e('s_add_u32 s17, s17, s29'); e(f's_mul_i32 s18, s18, {SEG}')
        e('s_cmp_lg_u32 s30, 0'); e('s_cbranch_scc1 KV_V')
        gemm(e, 20, False, False, True); epi_k(e)
        e('s_lshl_b32 s19, s9, 10'); e('s_add_u32 s18, s18, s19'); e(f's_add_u32 s18, s18, {KX}'); e('s_add_u32 s19, s18, 4096')
        e(f'buffer_store_dwordx4 v[32:35], v0, {WS}, s18 offen sc1'); e(f'buffer_store_dwordx4 v[36:39], v0, {WS}, s19 offen sc1')
        e('s_branch KV_E')
        e.label('KV_V'); e.reset()
        gemm(e, 20, False, True, True); epi_v(e)
        e('s_lshl_b32 s19, s9, 11'); e('s_add_u32 s18, s18, s19'); e(f's_add_u32 s18, s18, {VX}')
        e(f'buffer_store_dwordx4 v[32:35], v0, {WS}, s18 offen sc1'); e(f'buffer_store_dwordx4 v[36:39], v0, {WS}, s18 offen offset:1024 sc1')
        e.label('KV_E')
        for i in range(4): e(f'v_cvt_pk_bf16_f32 v{40+i}, v{56+i}, v{60+i}')
        e(f'buffer_store_dwordx4 v[40:43], v0, {WS}, s17 offen sc1')
    gemm_loop(e, 'KV', False, 0, 1, body, XNB, 40960, 3, 4, par_off(e, F_XB))

def aqkv_weights(e, akv):
    e(f'v_mov_b32 v9, {OOB}')
    if akv:
        e('s_and_b32 s19, s9, 1'); e('s_lshl_b32 s19, s19, 3'); e('s_add_u32 s34, s0, s19'); e('s_addc_u32 s35, s1, 0')
        e(f's_load_dwordx2 s[24:25], s[34:35], {A_WK}'); e(f's_mov_b32 s26, {640*40}'); e('s_mov_b32 s27, 0x20000')
        rs = 40; e('s_mov_b32 s17, 0')
    else:
        srd(e, 24, A_WQ, 640*1280); rs = 1280
        e('s_lshl_b32 s17, s8, 2'); e('s_add_u32 s17, s17, s9'); e('s_mul_i32 s17, s17, 40')
    e(f'v_mul_u32_u24 v4, {8*rs}, v2'); e('v_lshl_add_u32 v4, v1, 2, v4')
    e('v_cmp_le_u32 vcc, 10, v1'); e('v_cndmask_b32 v4, v4, v9, vcc')
    load_w(e, 20, rs, 32*rs, 4, 4)

def akv_body(e, tag, sc):
    e('s_lshl_b32 s18, s10, 12'); e(f's_add_u32 s18, s18, {KA}')
    e('s_cmp_lt_u32 s9, 2'); e(f's_cbranch_scc1 {tag}_W')
    for k in range(len(SITES)):
        site(e, k)
        if k == min(len(SITES)-1, MPOS(False)//2): MID[0]()
    e(f's_branch {tag}_E'); e.label(f'{tag}_W')
    e('s_cmp_eq_u32 s9, 1'); e(f's_cbranch_scc1 {tag}_V')
    gemm(e, 20, False, False); epi_k(e)
    e(f's_branch {tag}_S')
    e.label(f'{tag}_V'); e.reset()
    gemm(e, 20, False, True); epi_v(e)
    e('v_mov_b32 v40, 0x3f803f80'); e('v_cmp_eq_u32 vcc, 10, v1')
    for k in range(4): e(f'v_cndmask_b32 v{32+k}, v{32+k}, v40, vcc')
    e('s_add_u32 s18, s18, 2048')
    e.label(f'{tag}_S')
    e(f'buffer_store_dwordx4 v[32:35], v0, {WS}, s18 offen {sc}'); e(f'buffer_store_dwordx4 v[36:39], v0, {WS}, s18 offen offset:1024 {sc}')
    e.label(f'{tag}_E')

def role_aq(e):
    lanes(e); aqkv_weights(e, False)
    e(f's_mov_b32 s12, {F_XA}'); e('s_lshl_b32 s13, s8, 2'); e(f's_add_u32 s13, s13, {F_AQ}'); e('s_mov_b32 s14, 0')
    e(f's_mov_b32 s29, {fbits(20**-0.5*math.log2(math.e))}')
    e('s_lshl_b32 s31, s8, 2'); e('s_add_u32 s31, s31, s9')
    def body():
        e('s_lshl_b32 s18, s10, 5'); e('s_add_u32 s18, s18, s31'); e('s_lshl_b32 s18, s18, 11'); e(f's_add_u32 s18, s18, {QA}')
        gemm(e, 20, False, False); epi_k(e, 's29')
        e(f'buffer_store_dwordx4 v[32:35], v0, {WS}, s18 offen sc1'); e(f'buffer_store_dwordx4 v[36:39], v0, {WS}, s18 offen offset:1024 sc1')
    gemm_loop(e, 'AQ', False, 0, 1, body, XNA, 40960, 2, 8, par_off(e, F_XA))

def role_akv(e):
    lanes(e); aqkv_weights(e, True)
    e(f's_mov_b32 s12, {F_XA}'); e(f's_mov_b32 s13, {F_AKV}'); e('s_mov_b32 s14, 0')
    gemm_loop(e, 'AK', False, 64, 1, lambda: akv_body(e, 'AKB', 'sc1'), XNA, 40960, 0, 8, par_off(e, F_XA))

def role_out(e, isA):
    lanes(e)
    if isA:
        srd(e, 24, A_WO, 640*1280); e('s_mov_b32 s30, 0')
        e('s_cmp_ge_u32 s8, 5'); e('s_cselect_b32 s39, 1, 0'); e('s_mul_i32 s19, s39, 5'); e('s_sub_u32 s31, s8, s19')
        e('s_mul_i32 s19, s39, 27'); e('s_add_u32 s8, s8, s19')
    else:
        srd(e, 24, B_WO, 4096*1280)
        e('s_mul_i32 s30, s8, 52'); e('s_lshr_b32 s30, s30, 8'); e('s_mul_i32 s19, s30, 5'); e('s_sub_u32 s31, s8, s19')
    e('v_mul_u32_u24 v4, 10240, v2'); e('v_lshl_add_u32 v4, v1, 2, v4'); e('v_mov_b32 v5, v4')
    if isA:
        e(f'v_mov_b32 v9, {OOB}')
        e('v_cmp_le_u32 vcc, 3, v2'); e('v_cndmask_b32 v4, v4, v9, vcc')
        e('v_cmp_le_u32 vcc, 2, v2'); e('v_cndmask_b32 v5, v5, v9, vcc')
    e(f's_mul_i32 s17, s30, {1024*1280}'); e('s_lshl_b32 s19, s31, 8'); e('s_add_u32 s17, s17, s19'); e('s_lshl_b32 s19, s9, 6'); e('s_add_u32 s17, s17, s19')
    load_w(e, 32, 1280, (20 if isA else 32)*1280, 4, 5)
    e('v_mul_u32_u24 v10, 2560, v1'); e('v_lshl_add_u32 v10, v2, 4, v10')
    e('s_lshl_b32 s29, s31, 9'); e('s_lshl_b32 s19, s9, 7'); e('s_add_u32 s29, s29, s19')
    e('s_mul_i32 s19, s30, 81920'); e('s_add_u32 s29, s29, s19'); e(f's_add_u32 s29, s29, {PA if isA else PB}')
    e('s_lshl_b32 s13, s8, 2'); e(f's_add_u32 s13, s13, {F_AO if isA else F_BO}')
    e('s_lshl_b32 s14, s30, 16')
    e('s_lshl_b32 s12, s30, 5'); e(f's_add_u32 s12, s12, {F_BA}')
    def body():
        gemm(e, 32, True, False)
        e(f's_mul_i32 s18, s10, {81920 if isA else 4*81920}'); e('s_add_u32 s18, s18, s29'); e(f's_add_u32 s19, s18, {16*2560}')
        for a in range(2):
            for i in range(4):
                for t in range(2): e(f'v_mov_b32 v{32+8*a+2*i+t}, v{ACC+8*a+4*t+i}')
            for hh in range(2):
                if not OPT.get('nost') or (a+hh == 0): e(f'buffer_store_dwordx4 {R(32+8*a+4*hh,4)}, v10, {WS}, s{18+a} offen offset:{64*hh} sc1')
    gemm_loop(e, 'AO' if isA else 'BO', True, 's39' if isA else 0, 2 if isA else 1, body, OA if isA else OB, 65536 if isA else 262144, 1 if OPT.get('nost') else 4,
              32 if isA else 8, par_off(e, F_AT) if isA else None)

def wave_sum(e, x, t):
    dp = 'row_mask:0xf bank_mask:0xf'
    for sh in (8, 4, 2, 1): e(f'v_add_f32_dpp v{x}, v{x}, v{x} row_ror:{sh} {dp}')
    allred(e, 'v_add_f32', x, t)

def ln_token(e, xb):
    s, t = xb+15, xb+16
    e(f'v_add_f32 v{s}, v{xb}, v{xb+1}')
    for k in range(2, 10): e(f'v_add_f32 v{s}, v{s}, v{xb+k}')
    wave_sum(e, s, t)
    e(f'v_mul_f32 v{s}, {fbits(1/640)}, v{s}')
    for k in range(10): e(f'v_sub_f32 v{xb+k}, v{xb+k}, v{s}')
    e(f'v_mul_f32 v{s}, v{xb}, v{xb}')
    for k in range(1, 10): e(f'v_fmac_f32 v{s}, v{xb+k}, v{xb+k}')
    wave_sum(e, s, t)
    e(f'v_mov_b32 v{t}, {fbits(1e-5)}'); e(f'v_fmac_f32 v{t}, {fbits(1/640)}, v{s}')
    e(f'v_rsq_f32 v{t}, v{t}')
    for k in range(10): e(f'v_mul_f32 v{xb+k}, v{xb+k}, v{t}')
    for k in range(5): e(f'v_cvt_pk_bf16_f32 v{xb+10+k}, v{xb+2*k}, v{xb+2*k+1}')

def unpack(e, d, s):
    e(f'v_and_b32 v{d+1}, 0xffff0000, v{s}'); e(f'v_lshlrev_b32 v{d}, 16, v{s}')

def role_red(e, isA):
    lanes(e); nm = 'RA' if isA else 'RB'; NP = 1 if isA else 4; NT = 2 if isA else 1
    flagaddr(e, 3, 5 if isA else 20)
    e('v_lshrrev_b32 v4, 1, v0')
    e('v_lshrrev_b32 v6, 1, v1'); e('v_and_b32 v6, 3, v6'); e('v_lshlrev_b32 v5, 4, v6')
    e('v_lshrrev_b32 v6, 3, v1'); e('v_lshl_add_u32 v5, v6, 3, v5'); e('v_and_b32 v6, 1, v1'); e('v_lshl_add_u32 v5, v6, 2, v5')
    e('v_lshl_add_u32 v5, v2, 6, v5')
    e('s_lshr_b32 s30, s8, 1'); e('s_and_b32 s10, s8, 1')
    e('s_lshl_b32 s31, s30, 2'); e('s_add_u32 s31, s31, s9')
    if isA: e('s_lshl_b32 s31, s31, 1')
    srd(e, 24, A_X if isA else D_OUT, 2048*1280)
    e('s_lshl_b32 s13, s30, 2'); e('s_lshl_b32 s19, s10, 7'); e('s_add_u32 s13, s13, s19'); e(f's_add_u32 s13, s13, {F_XB if isA else F_XA}')
    e(f's_mov_b32 s12, {F_AO if isA else F_BO}')
    if isA: e('s_add_u32 s12, s12, s19')
    e.wait(lgkm=0)
    XO, XP, XF, PP = 16, 112, 128, 64
    e.label(f'{nm}_L')
    e('s_and_b32 s14, s10, 63'); e('s_lshl_b32 s14, s14, 5'); e('s_add_u32 s14, s14, s31'); e('s_mul_i32 s14, s14, 1280')
    e('s_lshr_b32 s15, s10, 6'); e(f's_mul_i32 s15, s15, {2*2048*1280}'); e('s_add_u32 s15, s15, s14'); e(f's_add_u32 s15, s15, {XR + (0 if isA else 2048*1280)}')
    e('s_add_u32 s16, s10, 1')
    wait_flag(e, 3, 's12', 's16', 9, isA)
    e(f's_mul_i32 s18, s10, {NP*81920}'); e('s_mul_i32 s19, s31, 2560'); e('s_add_u32 s18, s18, s19'); e(f's_add_u32 s18, s18, {PA if isA else PB}')
    for p in range(NP*NT):
        for k in range(5): e(f'buffer_load_dwordx2 {R(PP+10*p+2*k,2)}, v4, {WS}, s18 offen offset:{512*k} sc1')
        if p+1 < NP*NT: e(f's_add_u32 s18, s18, {2560 if isA else 81920}')
    if isA:
        e('s_cmp_ge_u32 s10, 64'); e(f's_cbranch_scc1 {nm}_X')
        sv = e.save()
        for k in range(5*NT): e(f'buffer_load_dword v{XO+k}, v5, s[24:27], s14 offen offset:{256*k}')
        e(f's_branch {nm}_Y'); e.label(f'{nm}_X'); e.restore(sv)
    for k in range(5*NT): e(f'buffer_load_dword v{XO+k}, v5, {WS}, s15 offen offset:{256*k} sc1')
    if isA: e.label(f'{nm}_Y')
    for p in range(1, NP):
        for k in range(10): e(f'v_add_f32 v{PP+k}, v{PP+k}, v{PP+10*p+k}')
    for u in range(NT):
        for k in range(5):
            e(f'v_cvt_pk_bf16_f32 v{XP+5*u+k}, v{PP+10*u+2*k}, v{PP+10*u+2*k+1}')
            unpack(e, PP+10*u+2*k, XP+5*u+k); unpack(e, XF+20*u+2*k, XO+5*u+k)
        for k in range(10): e(f'v_add_f32 v{XF+20*u+k}, v{XF+20*u+k}, v{PP+10*u+k}')
        for k in range(5): e(f'v_cvt_pk_bf16_f32 v{XP+5*u+k}, v{XF+20*u+2*k}, v{XF+20*u+2*k+1}')
    e(f's_add_u32 s15, s15, {2048*1280}')
    if not isA:
        e('s_cmp_lt_u32 s10, 64'); e(f's_cbranch_scc1 {nm}_X')
        for k in range(5): e(f'buffer_store_dword v{XP+k}, v5, s[24:27], s14 offen offset:{256*k}')
        if TRACE[0]: e('s_add_u32 s16, s10, 65'); trace(e, 's16', 9)
        e(f's_branch {nm}_N'); e.label(f'{nm}_X')
    e('s_mul_i32 s18, s10, 40960'); e('s_mul_i32 s19, s31, 1280'); e('s_add_u32 s18, s18, s19'); e(f's_add_u32 s18, s18, {XNB if isA else XNA + 64*40960}')
    for u in range(NT):
        for k in range(5): unpack(e, XF+20*u+2*k, XP+5*u+k)
        ln_token(e, XF+20*u)
        for k in range(5): e(f'buffer_store_dword v{XF+20*u+10+k}, v5, {WS}, s18 offen offset:{1280*u+256*k} sc1')
    for k in range(5*NT): e(f'buffer_store_dword v{XP+k}, v5, {WS}, s15 offen offset:{256*k} sc1')
    e.wait(vm=0); e('s_barrier')
    e(f's_add_u32 s16, s10, {1 if isA else 65}')
    set_flag(e, 's13', 's16', 9)
    if not isA: e.label(f'{nm}_N')
    e('s_add_u32 s10, s10, 2'); e('s_cmp_lt_u32 s10, 128'); e(f's_cbranch_scc1 {nm}_L')
    e.wait(vm=0); e('s_endpgm')

def need_prog(e, sc, soff, need, t, two=False, sl=2):
    lp = e.newlabel('NP'); dn = e.newlabel('ND')
    e(f's_cmp_ge_u32 {sc}, {need}'); e(f's_cbranch_scc1 {dn}')
    sv = e.save()
    e.label(lp)
    if two:
        e(f'buffer_load_dwordx2 {R(t,2)}, off, {WS}, {soff} sc1'); e(f'v_min_u32 v{t}, v{t}, v{t+1}')
    else: e(f'buffer_load_dword v{t}, off, {WS}, {soff} sc1')
    e(f'v_readfirstlane_b32 {sc}, v{t}')
    e(f's_cmp_ge_u32 {sc}, {need}'); e(f's_cbranch_scc1 {dn}')
    e(f's_sleep {OPT.get("sn", sl)}')
    e('s_sub_u32 s20, s20, 1'); e('s_cmp_gt_i32 s20, 0'); e(f's_cbranch_scc1 {lp}')
    e.label(dn); e.restore(sv)

def ln0(e):
    srd(e, 28, A_X, 2048*1280)
    e('v_lshrrev_b32 v11, 2, v0')
    e('s_lshl_b32 s14, s8, 5'); e('s_lshl_b32 s19, s9, 3'); e('s_add_u32 s14, s14, s19'); e('s_mul_i32 s14, s14, 1280')
    for tk in range(8):
        e(f's_add_u32 s19, s14, {tk*1280}')
        for k in range(5): e(f'buffer_load_dword v{128+5*tk+k}, v11, s[28:31], s19 offen offset:{256*k}')
    LW = 65536
    e('s_and_b32 s17, s9, 1'); e('s_lshl_b32 s19, s17, 3'); e('s_add_u32 s34, s0, s19'); e('s_addc_u32 s35, s1, 0')
    e(f's_load_dwordx2 s[24:25], s[34:35], {A_WK}'); e(f's_mov_b32 s26, {640*40}'); e('s_mov_b32 s27, 0x20000')
    e('s_lshl_b32 s17, s17, 15'); e(f's_add_u32 s17, s17, {LW}')
    e('s_lshr_b32 s18, s9, 1'); e('s_mul_i32 s18, s18, 13312'); e('v_add_u32 v9, s18, v0'); e('s_add_u32 s18, s18, s17')
    for k in range(13):
        e(f's_add_u32 m0, s18, {1024*k}')
        e('buffer_load_dwordx4 v9, s[24:27], 0 offen lds')
        e('v_add_u32 v9, 1024, v9')
    xn_setup(e)
    e(f's_add_u32 s14, s14, {XNA}')
    e('v_lshrrev_b32 v12, 9, v0'); e('v_lshlrev_b32 v12, 12, v12'); e('s_lshl_b32 s19, s9, 10'); e('v_add_u32 v12, s19, v12')
    e('v_and_b32 v13, 12, v11'); e('v_add_u32 v12, v12, v13'); e('v_and_b32 v13, 0x70, v11')
    for tk in range(8):
        for k in range(5): unpack(e, 32+2*k, 128+5*tk+k)
        ln_token(e, 32)
        e(f's_add_u32 s19, s14, {tk*1280}')
        e(f'v_xor_b32 v14, {tk*16}, v13'); e('v_add_u32 v14, v14, v12')
        for k in range(5):
            e(f'buffer_store_dword v{42+k}, v11, {WS}, s19 offen offset:{256*k} sc1')
            e(f'ds_write_b32 v14, v{42+k} offset:{8192*k + tk*128}')
    zero(e, 16, 4); e(f'v_add_u32 v9, {LW+28672}, v0'); e('ds_write_b128 v9, v[16:19]')
    e.wait(vm=40, lgkm=0); e('s_barrier')
    e('s_cmp_ge_u32 s9, 2'); e('s_cbranch_scc1 K0B_E')
    e('v_mul_u32_u24 v9, 320, v2'); e('v_lshl_add_u32 v9, v1, 2, v9'); e('v_add_u32 v9, s17, v9')
    e(f'v_mov_b32 v10, {LW+28672}'); e('v_cmp_gt_u32 vcc, 10, v1'); e('v_cndmask_b32 v9, v10, v9, vcc')
    e('v_mov_b32 v10, 1280'); e('v_cndmask_b32 v10, 0, v10, vcc')
    def wr(ks):
        for j in range(0, 8, 2): e(f'ds_read2_b32 {R(16+(ks%3)*8+j,2)}, v9 offset0:{10*j} offset1:{10*j+10}')
        e('v_add_u32 v9, v10, v9')
    for ks in range(3): wr(ks)
    for ks in range(20):
        bb = 16+(ks % 3)*8
        for t in range(2):
            for jj in range(4): e(f'v_perm_b32 v{96+8*ks+4*t+jj}, v{bb+2*jj+1}, v{bb+2*jj}, {"s23" if t else "s22"}')
        if ks+3 < 20: wr(ks+3)
    e('s_mov_b32 s10, s8')
    WV[0] = 1; akv_body(e, 'K0B', 'sc1'); WV[0] = 0
    e.wait(vm=0, lgkm=0); e('s_barrier')
    e('s_cmp_lg_u32 s9, 0'); e('s_cbranch_scc1 L0_E')
    e('v_mov_b32 v9, 1'); e(f's_mov_b32 s19, {F_AKV+128}'); e('s_mov_b64 exec, 1')
    e(f'buffer_atomic_add v9, off, {WS}, s19 sc0 sc1')
    e.wait(vm=0)
    e('s_mov_b64 exec, -1'); e('v_readfirstlane_b32 s16, v9')
    e('s_cmp_lg_u32 s16, 63'); e('s_cbranch_scc1 L0_E')
    e('v_mov_b32 v9, 64'); e(f's_mov_b32 s19, {F_XA}'); e(f's_mov_b32 s18, {F_AKV}')
    e(f'buffer_store_dword v9, v11, {WS}, s19 offen sc1'); e(f'buffer_store_dword v9, off, {WS}, s18 sc1')
    e.wait(vm=0)
    e.label('L0_E'); e.reset()

def role_att(e):
    lanes(e); ln0(e)
    e('s_lshr_b32 s31, s8, 1'); e('s_and_b32 s30, s8, 1')
    e('s_lshr_b32 s12, s31, 2'); e('s_lshl_b32 s12, s12, 2'); e(f's_add_u32 s12, s12, {F_AQ}')
    e('s_lshl_b32 s13, s30, 7'); e('s_lshl_b32 s19, s31, 2'); e('s_add_u32 s13, s13, s19'); e(f's_add_u32 s13, s13, {F_AT}')
    e(f's_mov_b32 s14, {F_AKV}'); e('s_mov_b32 s25, 0'); e('s_mov_b32 s26, 0')
    e('s_lshl_b32 s19, s9, 12'); e('v_add_u32 v4, s19, v0')
    e('v_lshlrev_b32 v5, 12, v2'); e('v_lshl_add_u32 v5, v1, 4, v5')
    e('s_lshl_b32 s19, s9, 11'); e('v_add_u32 v6, s19, v0')
    e('s_lshl_b32 s19, s9, 7'); e('v_lshlrev_b32 v7, 3, v1'); e('v_add_u32 v7, s19, v7')
    e('v_lshlrev_b32 v8, 7, v2'); e('v_lshl_add_u32 v8, v1, 3, v8')
    e(f's_mov_b32 s28, {fbits(2.0**-80)}'); e(f's_mov_b32 s29, {fbits(2.0**80)}')
    zero(e, 24, 8)
    e('s_mov_b32 s24, 0'); e('s_lshl_b32 s40, s31, 7'); e(f's_add_u32 s40, s40, {F_CH}')
    e('s_mov_b32 s11, 0')
    e.label('AT_LAY')
    e('s_lshl_b32 s17, s8, 2'); e('s_cmp_eq_u32 s11, 0'); e('s_cselect_b32 s17, s17, 0'); e('s_add_u32 s17, s17, s9')
    def kblk(i, sn, sa):
        e('s_and_b32 s17, s17, 63'); e(f's_add_u32 {sn}, s11, s17'); e(f's_lshl_b32 {sa}, {sn}, 12'); e(f's_add_u32 {sa}, {sa}, {KA}'); e(f's_add_u32 {sn}, {sn}, 1')
        need_prog(e, 's25', 's14', sn, 9, sl=(OPT.get('ks', 32) if 0 < i < 15 else 2))
        for k in range(4): e(f'buffer_load_dwordx4 {R(16*i+4*k,4,"a")}, v0, {WS}, {sa} offen offset:{1024*k} sc1')
        e('s_add_u32 s17, s17, 4')
    for i in range(15):
        kblk(i, 's16', 's18')
        if i == 7: e.wait(vm=0)
    e('s_mov_b32 s27, 1'); e('s_cmp_lg_u32 s11, 0'); e('s_cbranch_scc1 AT_D')
    kblk(15, 's16', 's18'); e('s_mov_b32 s27, 0')
    e.label('AT_D')
    e('s_add_u32 s10, s11, s30')
    e.label('AT_U')
    if OPT.get('ahead', 0):
        e(f's_max_u32 s16, s10, {OPT["ahead"]}'); e(f's_sub_u32 s16, s16, {OPT["ahead"]}')
        need_prog(e, 's24', 's40', 's16', 9, sl=8)
    e('s_add_u32 s16, s10, 1')
    need_prog(e, 's26', 's12', 's16', 9)
    e('s_lshl_b32 s18, s10, 5'); e('s_add_u32 s18, s18, s31'); e('s_lshl_b32 s18, s18, 11'); e(f's_add_u32 s19, s18, {QA}')
    e(f'buffer_load_dwordx4 v[16:19], v0, {WS}, s19 offen sc1'); e(f'buffer_load_dwordx4 v[20:23], v0, {WS}, s19 offen offset:1024 sc1')
    e('s_mov_b32 s15, 0')
    e.wait(vm=0)
    e.label('AT_M')
    def sco(i, kt, a, c=None):
        return f'{mf} {R(32+16*(i&1)+8*a+4*kt,4)}, {R(16*i+4*kt,4,"a")}, {R(16+4*a,4)}, {c if c is not None else R(24+4*a,4)}'
    def pv(i, a, t):
        d = R(72+8*a+4*t, 4)
        return f'{mf} {d}, {R(16*i+8+4*t,4,"a")}, {R(64+4*a,4)}, {d if i else 0}'
    for a in range(2):
        for kt in range(2): e(sco(0, kt, a))
    for i in range(16):
        b = 32+16*(i & 1)
        if i == 14:
            e('s_cmp_eq_u32 s27, 0'); e('s_cbranch_scc1 AT_DN')
            sv = e.save(); kblk(15, 's21', 's19'); e('s_mov_b32 s27, 0'); e.wait(vm=0)
            e.label('AT_DN'); e.restore(sv)
        ms = {}
        if i: ms[1] = pv(i-1, 1, 0); ms[3] = pv(i-1, 1, 1)
        if i < 15:
            ms[5] = sco(i+1, 0, 0); ms[7] = sco(i+1, 1, 0); ms[18] = sco(i+1, 0, 1); ms[20] = sco(i+1, 1, 1)
        ms[14] = pv(i, 0, 0); ms[16] = pv(i, 0, 1)
        V = []
        for a in range(2):
            V += [f'v_exp_f32 v{b+8*a+k}, v{b+8*a+k}' for k in range(8)]
            V += [f'v_cvt_pk_bf16_f32 v{64+4*a+k}, v{b+8*a+2*k}, v{b+8*a+2*k+1}' for k in range(4)]
        for k, x in enumerate(V):
            if k in ms: e(ms[k])
            e(x)
    e(pv(15, 1, 0)); e(pv(15, 1, 1))
    for k in range(4): e(f'ds_write_b128 v4, {R(72+4*k,4)} offset:{1024*k}')
    e.barrier()
    e('ds_read_b32 v32, v5 offset:520'); e('ds_read_b32 v33, v5 offset:2568')
    for ww in range(4):
        for t in range(2): e(f'ds_read_b128 {R(40+8*ww+4*t,4)}, v6 offset:{4096*ww+1024*t}')
    allred(e, 'v_add_f32', 32, 34); allred(e, 'v_add_f32', 33, 34)
    e('v_cmp_lt_f32 s[32:33], s28, v32'); e('v_cmp_lt_f32 s[34:35], s28, v33')
    e('v_cmp_gt_f32 s[36:37], s29, v32'); e('v_cmp_gt_f32 s[38:39], s29, v33')
    e('s_nop 1')
    e('s_and_b64 s[32:33], s[32:33], s[34:35]'); e('s_and_b64 s[36:37], s[36:37], s[38:39]'); e('s_and_b64 s[32:33], s[32:33], s[36:37]')
    e('s_cmp_eq_u64 s[32:33], -1'); e('s_cbranch_scc1 AT_OK')
    e('s_cmp_lg_u32 s15, 0'); e('s_cbranch_scc1 AT_OK')
    sv = e.save()
    e.wait(lgkm=0)
    e('s_mov_b32 s15, 1')
    e('v_mov_b32 v10, 0xff800000'); e('v_mov_b32 v11, 0xff800000')
    for i in range(16):
        for a in range(2):
            for kt in range(2): e(sco(i, kt, a, 0))
        b = 32+16*(i & 1)
        for a in range(2):
            for k in range(4): e(f'v_max3_f32 v{10+a}, v{10+a}, v{b+8*a+2*k}, v{b+8*a+2*k+1}')
    allred(e, 'v_max_f32', 10, 12); allred(e, 'v_max_f32', 11, 12)
    e('ds_write_b64 v7, v[10:11] offset:16384')
    e.barrier()
    e('ds_read_b64 v[10:11], v8 offset:16384')
    allred(e, 'v_max_f32', 10, 12); allred(e, 'v_max_f32', 11, 12)
    for a in range(2):
        for k in range(4): e(f'v_sub_f32 v{24+4*a+k}, 0, v{10+a}')
    e('s_nop 1'); e('s_branch AT_M')
    e.label('AT_OK'); e.restore(sv)
    zero(e, 24, 8)
    e('s_cmp_ge_u32 s9, 2'); e('s_cbranch_scc1 AT_F')
    e('s_cmp_eq_u32 s9, 1'); e('s_cselect_b64 vcc, -1, 0'); e('v_cndmask_b32 v32, v32, v33, vcc')
    e('v_rcp_f32 v32, v32')
    for ww in range(1, 4):
        for k in range(8): e(f'v_add_f32 v{40+k}, v{40+k}, v{40+8*ww+k}')
    for k in range(8): e(f'v_mul_f32 v{40+k}, v{40+k}, v32')
    for k in range(4): e(f'v_cvt_pk_bf16_f32 v{36+k}, v{40+k}, v{44+k}')
    e('s_lshl_b32 s19, s9, 10'); e('s_add_u32 s18, s18, s19'); e(f's_add_u32 s18, s18, {OA}')
    e(f'buffer_store_dwordx4 v[36:39], v0, {WS}, s18 offen sc1')
    e.label('AT_F')
    e.wait(vm=0, lgkm=0); e('s_barrier')
    set_flag(e, 's13', 's16', 9)
    e('s_add_u32 s10, s10, 2'); e('s_sub_u32 s19, s10, s11'); e('s_cmp_lt_u32 s19, 64'); e('s_cbranch_scc1 AT_U')
    e('s_add_u32 s11, s11, 64'); e('s_cmp_lt_u32 s11, 128'); e('s_cbranch_scc1 AT_LAY')
    e.wait(vm=0); e('s_endpgm')

def role_batt(e):
    LM = 139264
    lanes(e)
    e('s_lshl_b32 s12, s8, 7'); e(f's_add_u32 s14, s12, {F_CH}'); e(f's_add_u32 s12, s12, {F_KV}')
    e('s_lshl_b32 s13, s8, 2'); e(f's_add_u32 s13, s13, {F_BA}')
    e('s_mov_b32 s25, 0'); e('s_mov_b32 s26, 0')
    e('s_lshr_b32 s30, s9, 1'); e('s_and_b32 s31, s9, 1')
    e('s_lshl_b32 s19, s30, 12'); e('v_add_u32 v8, s19, v0')
    e('v_lshrrev_b32 v10, 2, v1'); e('v_lshlrev_b32 v10, 8, v10'); e('v_lshl_add_u32 v10, v2, 6, v10')
    e('v_and_b32 v11, 1, v1'); e('v_lshl_add_u32 v10, v11, 2, v10'); e(f'v_add_u32 v10, {LM}, v10')
    e('s_lshl_b32 s19, s31, 11'); e(f's_add_u32 s19, s19, {LM+8}'); e('v_add_u32 v11, s19, v0')
    e('v_mov_b32 v12, v0')
    e('s_lshl_b32 s19, s31, 12'); e('v_add_u32 v13, s19, v0')
    e('s_lshl_b32 s19, s30, 4'); e('v_add_u32 v14, s19, v1'); e('v_lshlrev_b32 v15, 2, v2'); e('v_sub_u32 v14, v14, v15')
    for k in range(8): e(f'v_cmp_gt_i32 s[{40+2*k}:{41+2*k}], {16*(k>>2)+(k&3)}, v14')
    e(f's_mov_b32 s21, {fbits(128**-0.5*math.log2(math.e))}')
    e('s_lshl_b32 s11, s9, 10')
    def fetch(gs):
        e(f's_add_u32 s16, {gs}, 1')
        need_prog(e, 's25', 's12', 's16', 14, True)
        e(f's_lshl_b32 s18, {gs}, 5'); e(f's_add_u32 s18, s18, s8'); e('s_lshl_b32 s36, s18, 13'); e(f's_mul_i32 s18, s18, {SEG}')
        e('s_lshl_b32 s19, s9, 10'); e('s_add_u32 s18, s18, s19'); e('s_add_u32 s36, s36, s19')
        for sb, gb, lo in ((36, QB, 32768), (36, QB+4096, 36864), (18, KX, 40960), (18, KX+4096, 45056), (18, VX, 49152), (18, VX+4096, 53248)):
            e(f's_add_u32 m0, s11, {lo}'); e(f's_add_u32 s19, s{sb}, {gb}')
            e(f'buffer_load_dwordx4 v0, {WS}, s19 offen sc1 lds')
        e('s_xor_b32 s11, s11, 0x10000'); e(f'buffer_load_dword v116, off, {WS}, s14 sc1')
    def kvm():
        e(f's_mul_i32 s19, s38, {SEG}'); e('s_lshl_b32 s16, s9, 10'); e('s_add_u32 s19, s19, s16'); e(f's_add_u32 s19, s19, {KVM}')
        e(f's_add_u32 m0, s16, {LM}')
        e(f'buffer_load_dwordx4 v0, {WS}, s19 offen sc1 lds')
    e('s_mov_b32 s10, 0')
    e.label('BA_LAY')
    fetch('s10')
    e.wait(vm=0)
    e.label('BA_L')
    e.wait(vm=2, lgkm=0); e('s_barrier'); e.reset()
    for ks in range(4):
        e(f'ds_read_b128 {R(64+4*ks,4)}, v8 offset:{32768+1024*ks}')
        for b in range(2): e(f'ds_read_b128 {R(80+16*b+4*ks,4)}, v12 offset:{40960+(4*b+ks)*1024}')
    e('v_readfirstlane_b32 s16, v116'); e('s_max_u32 s26, s26, s16')
    e('s_add_u32 s28, s10, 1'); e('s_and_b32 s29, s28, 63')
    e('s_lshl_b32 s38, s10, 5'); e('s_add_u32 s38, s38, s8')
    e('s_cmp_ge_u32 s26, s28'); e('s_cselect_b32 s27, 1, 0'); e('s_cbranch_scc0 BA_P')
    sv = e.save(); kvm()
    e.label('BA_P'); e.restore(sv)
    S = 16
    for ks in range(4):
        for b in range(2): e(f'{mf} {R(S+4*b,4)}, {R(80+16*b+4*ks,4)}, {R(64+4*ks,4)}, {R(S+4*b,4) if ks else 0}')
    for k in range(4): e(f'ds_read_b128 {R(80+4*k,4)}, v13 offset:{49152+1024*k}')
    e('v_mov_b32 v15, 0xff800000')
    for k in range(8): e(f'v_cndmask_b32 v{S+k}, v{S+k}, v15, s[{40+2*k}:{41+2*k}]')
    for k in range(4): e(f'v_mov_b32 v{28+k}, 0x3f803f80')
    e.wait(vm=0, lgkm=0); e('s_barrier')
    set_flag(e, 's13', 's10', 9)
    e('s_cmp_eq_u32 s29, 0'); e('s_cbranch_scc1 BA_Q')
    fetch('s28')
    e.label('BA_Q'); e.reset()
    e('s_cmp_lg_u32 s27, 0'); e('s_cbranch_scc1 BA_J')
    need_prog(e, 's26', 's14', 's28', 14)
    kvm()
    e.wait(vm=0)
    e.label('BA_J'); e.reset()
    e('s_barrier')
    for ks in range(4):
        e(f'v_add_u32 v14, {1024*ks}, v10')
        e(f'ds_read2_b32 {R(96+4*ks,2)}, v14 offset0:0 offset1:4'); e(f'ds_read2_b32 {R(98+4*ks,2)}, v14 offset0:8 offset1:12')
    e('ds_read_b64 v[112:113], v11'); e('ds_read_b64 v[114:115], v11 offset:1024')
    Sm = 24
    for ks in range(4): e(f'{mf} {R(Sm,4)}, {R(96+4*ks,4)}, {R(64+4*ks,4)}, {R(Sm,4) if ks else 0}')
    sc = [S+k for k in range(10)]
    e(f'v_max3_f32 v14, v{sc[0]}, v{sc[1]}, v{sc[2]}')
    for k in (3, 5, 7): e(f'v_max3_f32 v14, v14, v{sc[k]}, v{sc[k+1]}')
    e(f'v_max_f32 v14, v14, v{sc[9]}')
    allred(e, 'v_max_f32', 14, 15)
    e('v_mul_f32 v14, s21, v14')
    for r in sc: e(f'v_fma_f32 v{r}, v{r}, s21, -v14')
    for r in sc: e(f'v_exp_f32 v{r}, v{r}')
    P = 32
    for k in range(5): e(f'v_cvt_pk_bf16_f32 v{P+k}, v{S+2*k}, v{S+2*k+1}')
    e(f'v_mov_b32 v{P+5}, 0'); e(f'v_mov_b32 v{P+6}, 0'); e(f'v_mov_b32 v{P+7}, v{P+4}')
    e(f'{mf} v[16:19], v[28:31], {R(P,4)}, 0')
    for k in range(4): e(f'{mf} {R(40+4*k,4)}, {R(80+4*k,4)}, {R(P,4)}, 0')
    e(f'{m16} v[16:19], v[28:29], {R(P+4,2)}, v[16:19]')
    for k in range(4):
        e(f'{m16} {R(40+4*k,4)}, {R(112+2*(k>>1),2)}, {R(P+4+2*(k&1),2)}, {R(40+4*k,4)}')
    e('v_rcp_f32 v14, v16')
    e('s_lshl_b32 s18, s38, 13'); e('s_lshl_b32 s19, s31, 12'); e('s_add_u32 s18, s18, s19'); e('s_lshl_b32 s19, s30, 10'); e('s_add_u32 s18, s18, s19'); e(f's_add_u32 s18, s18, {OB}')
    for sl in range(2):
        for k in range(8): e(f'v_mul_f32 v{40+8*sl+k}, v{40+8*sl+k}, v14')
        for k in range(4): e(f'v_cvt_pk_bf16_f32 v{56+4*sl+k}, v{40+8*sl+k}, v{44+8*sl+k}')
        e(f'buffer_store_dwordx4 {R(56+4*sl,4)}, v0, {WS}, s18 offen offset:{2048*sl} sc1')
    for r in (8, 12, 13): e(f'v_xor_b32 v{r}, 0x10000, v{r}')
    e('s_mov_b32 s10, s28')
    e('s_cmp_lg_u32 s29, 0'); e('s_cbranch_scc1 BA_L')
    e.wait(vm=0, lgkm=0); e('s_barrier')
    set_flag(e, 's13', 's10', 9)
    e('s_cmp_lt_u32 s10, 128'); e('s_cbranch_scc1 BA_LAY')
    e.wait(vm=0); e('s_endpgm')

def kernel0(e):
    e('s_cmp_ge_u32 s2, 64'); e('s_cbranch_scc1 K0_END')
    e(f's_load_dwordx2 s[4:5], s[0:1], {D_WS}'); e(f's_mov_b32 s6, {WS_BYTES}'); e('s_mov_b32 s7, 0x20000')
    e('v_lshlrev_b32 v10, 4, v0'); e('v_and_b32 v0, 1023, v10')
    zero(e, 12, 4, -1); zero(e, 16, 4, 0)
    e('s_mul_i32 s18, s2, 6144'); e(f's_add_u32 s18, s18, {PART}')
    e(f'buffer_store_dwordx4 v[12:15], v10, {WS}, s18 offen'); e(f'buffer_store_dwordx4 v[12:15], v10, {WS}, s18 offen offset:2048')
    e('s_lshl_b32 s19, s2, 10'); e(f's_add_u32 s19, s19, {MEMR}'); e(f'buffer_store_dwordx4 v[12:15], v0, {WS}, s19 offen')
    e('s_cmp_ge_u32 s2, 3'); e('s_cbranch_scc1 K0_NF')
    e('s_lshl_b32 s19, s2, 12')
    e(f'buffer_store_dwordx4 v[16:19], v10, {WS}, s19 offen')
    e.label('K0_NF')
    e.wait(vm=0)
    e.label('K0_END')
    e('s_endpgm')
```
